```python
import torch

def _softmax(x, axis=-1):
    return torch.softmax(x, dim=axis)
def _gelu(x):
    return torch.nn.functional.gelu(x, approximate="tanh")
def _silu(x):
    return torch.nn.functional.silu(x)
def _sigmoid(x):
    return torch.sigmoid(x)
def _layernorm(x, axis=-1, eps=1e-5):
    m = x.mean(dim=axis, keepdim=True)
    v = x.var(dim=axis, keepdim=True, unbiased=False)
    return (x - m) / torch.sqrt(v + eps)
def _scatter_add(tgt, idx, src, axis=0):
    return tgt.clone().index_add_(axis, idx, src)
def _segment_sum(src, seg, n):
    out = torch.zeros((n,) + src.shape[1:], dtype=src.dtype)
    return out.index_add_(0, seg, src)
def _pad(x, pw):
    flat = tuple(v for pair in reversed(pw) for v in pair)
    return torch.nn.functional.pad(x, flat)

kernel_name = 'concat_heads__sliding_block__softmax_full_mha__prompt'

def setup_inputs():

    _w = (lambda a: (lambda t: t.to(torch.bfloat16) if t.is_floating_point() else t)(torch.as_tensor(a)))
    def _A_setup():
        B, S, D = 1, 2048, 1024
        return {
            "x": _w((lambda *s: torch.randn(*s, dtype=torch.bfloat16) * 0.2)(B, S, D)),
            "wqkv": _w((lambda *s: torch.randn(*s, dtype=torch.bfloat16) * 0.8)(D, 3 * D)),
            "wo": _w((lambda *s: torch.randn(*s, dtype=torch.bfloat16) * 0.8)(D, D)),
        }
    _A_in = _A_setup()

    def _B_setup():
        B, S, D = 1, 2048, 1024
        return {
            "x": _w((lambda *s: torch.randn(*s, dtype=torch.bfloat16) * 0.2)(B, S, D)),
            "wqkv": _w((lambda *s: torch.randn(*s, dtype=torch.bfloat16) * 0.8)(D, 3 * D)),
            "wo": _w((lambda *s: torch.randn(*s, dtype=torch.bfloat16) * 0.8)(D, D)),
        }
    _B_in = _B_setup()

    return {
        "A_x": _A_in["x"],
        "A_wqkv": _A_in["wqkv"],
        "A_wo": _A_in["wo"],
        "B_x": _B_in["x"],
        "B_wqkv": _B_in["wqkv"],
        "B_wo": _B_in["wo"],
    }

def reference(A_x, A_wqkv, A_wo, B_x, B_wqkv, B_wo):
    def _A_ref(x, wqkv, wo):
        B, S, D = x.shape
        H = 32; Dh = D // H; W = 256
        qkv = (lambda x, *d: x.permute(*d))((x @ wqkv).reshape(B, S, 3, H, Dh), 2, 0, 3, 1, 4)
        q, k, v = qkv[0], qkv[1], qkv[2]
        scores = torch.einsum("bhqd,bhkd->bhqk", q, k) * (Dh ** -0.5)
        idx = torch.arange(S)
        mask = (idx[:, None] - idx[None, :] >= 0) & (idx[:, None] - idx[None, :] < W)
        scores = torch.where(mask[None, None], scores, -1e9)
        p = _softmax(scores, axis=-1)
        o = torch.einsum("bhqk,bhkd->bhqd", p, v)
        return (lambda x, *d: x.permute(*d))(o, 0, 2, 1, 3).reshape(B, S, D) @ wo

    def _B_ref(x, wqkv, wo):
        B, S, D = x.shape
        H = 32; Dh = D // H
        qkv = (lambda x, *d: x.permute(*d))((x @ wqkv).reshape(B, S, 3, H, Dh), 2, 0, 3, 1, 4)
        q, k, v = qkv[0], qkv[1], qkv[2]
        scale = Dh ** -0.5
        scores = torch.einsum("bhqd,bhkd->bhqk", q, k) * scale
        p = _softmax(scores, axis=-1)
        o = torch.einsum("bhqk,bhkd->bhqd", p, v)
        return (lambda x, *d: x.permute(*d))(o, 0, 2, 1, 3).reshape(B, S, D) @ wo

    a = _A_ref(A_x, A_wqkv, A_wo)
    b = _B_ref(B_x, B_wqkv, B_wo)
    return torch.concatenate([a, b], axis=-1)
```

```python
class Asm:
    def __init__(self):
        self.L=[]
    def __call__(self, s):
        for line in s.split('\n'):
            line=line.strip()
            if not line: continue
            if line.endswith(':') or line.startswith('.'):
                self.L.append(line)
            else:
                self.L.append('    '+line)
    def text(self): return '\n'.join(self.L)+'\n'
def vr(a,n=1): return f'v{a}' if n==1 else f'v[{a}:{a+n-1}]'
def ar(a,n=1): return f'a{a}' if n==1 else f'a[{a}:{a+n-1}]'
def sr(a,n=1): return f's{a}' if n==1 else f's[{a}:{a+n-1}]'
class Alloc:
    def __init__(self, start=0): self.n=start; self.names={}
    def __call__(self, name, cnt=1, align=1):
        self.n=(self.n+align-1)//align*align
        r=self.n; self.n+=cnt; self.names[name]=(r,cnt); return r
def kernel_header(name):
    return f'.text\n.globl {name}\n.p2align 8\n.type {name},@function\n{name}:\n'
def kernel_desc(name, nv, ns=102, ao=None):
    if ao is None: ao=min((nv+3)//4*4,256)
    return f'''.amdhsa_kernel {name}
  .amdhsa_next_free_vgpr {nv}
  .amdhsa_next_free_sgpr {ns}
  .amdhsa_accum_offset {ao}
  .amdhsa_group_segment_fixed_size 0
  .amdhsa_kernarg_size 72
  .amdhsa_user_sgpr_count 2
  .amdhsa_user_sgpr_kernarg_segment_ptr 1
  .amdhsa_system_sgpr_workgroup_id_x 1
.end_amdhsa_kernel
'''
def interleave(main, fill, slots=None):
    out=[]
    for i,m in enumerate(main):
        out.append(m)
        if i < len(fill): out+=fill[i]
    return out
```

```python
import sys
from asm import *
import k1
def build(stamps=False, opt={}, kernels=('k1',)):
    hdr=''; body=''; desc=''
    if 'k1' in kernels:
        t,nv=k1.gen_k1('qkv_kernel',stamps,opt); hdr+='; @launch kernel=qkv_kernel grid=(256,1,1) block=(512,1,1) lds=163840\n'; body+=t; desc+=kernel_desc('qkv_kernel',nv)
    if 'k2' in kernels:
        import k2
        t,nv,lds=k2.gen_k2('attn_kernel',stamps,opt); hdr+=f'; @launch kernel=attn_kernel grid=(256,1,1) block=(512,1,1) lds={lds}\n'; body+=t; desc+='.p2align 6\n'+kernel_desc('attn_kernel',nv)
    if 'k3' in kernels:
        import k3
        t,nv,lds,blk=k3.gen_k3('oproj_kernel',stamps,opt); hdr+=f'; @launch kernel=oproj_kernel grid=(256,1,1) block=({blk},1,1) lds={lds}\n'; body+=t; desc+='.p2align 6\n'+kernel_desc('oproj_kernel',nv)
    return hdr+'.amdgcn_target "amdgcn-amd-amdhsa--gfx950"\n'+body+'.section .rodata,"a"\n.p2align 6\n'+desc
if __name__=='__main__':
    print(build())
```

```python
from asm import *
WS_QF=0; WS_KV=8<<20; WS_OF=24<<20; WS_STAMP=128<<20
QSCALE=0x3e82947d
import struct, math
QSCALE=struct.unpack('<I',struct.pack('<f',(32**-0.5)*math.log2(math.e)))[0]

def stamp_begin(a):
    a('s_memrealtime s[84:85]\ns_memtime s[86:87]')
def stamp_mid(a, idx):
    a(f's_memtime s[88:89]\ns_waitcnt lgkmcnt(0)\ns_sub_u32 s{92+idx}, s88, s86')
def stamp_end(a, kidx, ws_lo, vtmp):
    a('s_waitcnt vmcnt(0)\ns_memrealtime s[88:89]\ns_memtime s[90:91]\ns_waitcnt lgkmcnt(0)')
    a('s_sub_u32 s90, s90, s86')
    for i,s in enumerate((84,88,90,92,93,94,95,96)): a(f'v_mov_b32 v{vtmp+i}, s{s}')
    a(f's_lshl_b32 s88, s2, 5\ns_add_u32 s88, s88, {WS_STAMP+kidx*65536}\nv_mov_b32 v{vtmp+8}, s88')
    a(f'global_store_dwordx4 v{vtmp+8}, {vr(vtmp,4)}, s[{ws_lo}:{ws_lo+1}]')
    a(f'global_store_dwordx4 v{vtmp+8}, {vr(vtmp+4,4)}, s[{ws_lo}:{ws_lo+1}] offset:16')

def gen_k1(name='qkv_kernel', stamps=False, opt={}):
    a=Asm()
    V=Alloc(1)
    acc=[[[None]*2 for s in range(3)] for m in range(4)]
    for m in range(4):
        for s in range(2):
            for fb in range(2): acc[m][s][fb]=V(f'acc{m}{s}{fb}',4,4)
    for tl in range(2):
        for fb in range(2):
            for mm in range(2): acc[2*tl+mm][2][fb]=V(f'accv{tl}{fb}{mm}',4,4)
    XF=[[V(f'xf{b}{m}',4,4) for m in range(4)] for b in range(2)]
    WF=[[[V(f'wf{b}{s}{fb}',4,4) for fb in range(2)] for s in range(3)] for b in range(2)]
    vxa=[V(f'vxa{j}') for j in range(2)]
    vwa=[V(f'vwa{j}') for j in range(2)]
    vgx=[V(f'vgx{j}') for j in range(4)]
    vgw=V('vgw')
    t=[V(f't{i}') for i in range(6)]
    vst=V('vst')
    sX=8; sW=12; sWS=16
    sWave=20; sMT=21; sHP=22; sBR=23; sM0X=24; sM0W=25; sKX=26; sKW=27; sT=28; sT2=29
    a('s_cmp_ge_u32 s2, 256\ns_cbranch_scc1 K1_END')
    if stamps: stamp_begin(a)
    a('s_and_b32 s3, s2, 7')
    a(f's_lshr_b32 s{sBR}, s3, 2')
    a(f's_mul_i32 s{sT}, s{sBR}, 24')
    a(f's_add_u32 s4, s0, s{sT}\ns_addc_u32 s5, s1, 0')
    a(f's_load_dwordx4 s[32:35], s[4:5], 0')
    a(f's_load_dwordx2 s[36:37], s[0:1], 64')
    a(f'v_lshrrev_b32 v{t[0]}, 6, v0')
    a(f's_lshr_b32 s{sT}, s2, 3')
    a(f'v_readfirstlane_b32 s{sWave}, v{t[0]}')
    a(f's_and_b32 s{sMT}, s{sT}, 3\ns_and_b32 s{sT2}, s3, 1\ns_lshl_b32 s{sT2}, s{sT2}, 2\ns_add_u32 s{sMT}, s{sMT}, s{sT2}')
    a(f's_lshr_b32 s{sHP}, s{sT}, 2\ns_and_b32 s{sT2}, s3, 2\ns_lshl_b32 s{sT2}, s{sT2}, 2\ns_add_u32 s{sHP}, s{sHP}, s{sT2}')
    lane=t[1]
    a(f'v_and_b32 v{lane}, 63, v0')
    a(f'v_lshrrev_b32 v{t[2]}, 3, v{lane}')
    a(f'v_and_b32 v{t[3]}, 7, v{lane}')
    a(f'v_lshrrev_b32 v{t[4]}, 4, v{lane}')
    a(f's_lshl_b32 s{sT}, s{sMT}, 8\ns_lshl_b32 s{sT2}, s{sWave}, 5\ns_add_u32 s{sT}, s{sT}, s{sT2}')
    a(f'v_add_u32 v{t[5]}, s{sT}, v{t[2]}')
    a(f'v_lshlrev_b32 v{t[5]}, 11, v{t[5]}')
    a(f'v_xor_b32 v{vgx[0]}, v{t[3]}, v{t[4]}')
    a(f'v_lshl_add_u32 v{vgx[0]}, v{vgx[0]}, 4, v{t[5]}')
    a(f'v_xor_b32 v{vgx[1]}, 64, v{vgx[0]}')
    a(f'v_add_u32 v{vgx[1]}, {8*2048}, v{vgx[1]}')
    a(f'v_add_u32 v{vgx[2]}, {16*2048}, v{vgx[0]}')
    a(f'v_add_u32 v{vgx[3]}, {16*2048}, v{vgx[1]}')
    a(f's_lshl_b32 s{sT}, s{sWave}, 3')
    a(f'v_add_u32 v{t[5]}, s{sT}, v{t[2]}')
    a(f'v_mul_u32_u24 v{t[5]}, 6144, v{t[5]}')
    a(f's_and_b32 s{sT}, s{sWave}, 1\ns_lshl_b32 s{sT}, s{sT}, 2')
    a(f'v_and_b32 v{t[4]}, 1, v{t[4]}\nv_lshl_add_u32 v{t[4]}, v{t[4]}, 1, s{sT}\nv_xor_b32 v{t[4]}, v{t[4]}, v{t[3]}')
    a(f'v_lshl_add_u32 v{vgw}, v{t[4]}, 4, v{t[5]}')
    a(f's_lshl_b32 s{sT}, s{sHP}, 7')
    a(f'v_add_u32 v{vgw}, s{sT}, v{vgw}')
    a(f's_lshr_b32 s{sT}, s{sWave}, 1\ns_mul_i32 s{sM0X}, s{sT}, 24576\ns_and_b32 s{sT}, s{sWave}, 1\ns_lshl_b32 s{sT}, s{sT}, 12\ns_add_u32 s{sM0X}, s{sM0X}, s{sT}')
    a(f's_lshl_b32 s{sM0W}, s{sWave}, 10\ns_add_u32 s{sM0W}, s{sM0W}, {96*1024}')
    a(f's_mov_b32 s{sX+2}, 0x400000\ns_mov_b32 s{sX+3}, 0x20000\ns_mov_b32 s{sW+2}, 0x600000\ns_mov_b32 s{sW+3}, 0x20000')
    a('s_waitcnt lgkmcnt(0)')
    a(f's_mov_b32 s{sX}, s32\ns_mov_b32 s{sX+1}, s33\ns_mov_b32 s{sW}, s34\ns_mov_b32 s{sW+1}, s35')
    aux=opt.get('k1aux','')
    def dmaX(s,j):
        return [f's_add_u32 m0, s{sM0X}, {(s%3)*8192+j*1024}', f's_movk_i32 s{sKX}, {s*128}', f'buffer_load_dwordx4 v{vgx[j]}, {sr(sX,4)}, s{sKX} offen{aux} lds']
    def dmaW(n):
        s,seg=divmod(n,3)
        return [f's_add_u32 m0, s{sM0W}, {(n%8)*8192}', f's_mov_b32 s{sKW}, {s*64*6144+seg*2048}', f'buffer_load_dwordx4 v{vgw}, {sr(sW,4)}, s{sKW} offen{aux} lds']
    for d in [dmaX(0,0),dmaW(0),dmaX(0,1),dmaW(1),dmaX(0,2),dmaW(2),dmaX(0,3)]:
        for x in d: a(x)
    a(f's_and_b32 s{sT}, s{sWave}, 3\ns_mul_i32 s{sT}, s{sT}, 24576')
    a(f'v_and_b32 v{t[2]}, 15, v{lane}')
    a(f'v_lshrrev_b32 v{t[3]}, 4, v{lane}')
    a(f'v_bfe_u32 v{t[4]}, v{lane}, 1, 3')
    a(f'v_xor_b32 v{t[4]}, v{t[4]}, v{t[3]}')
    a(f'v_lshlrev_b32 v{t[4]}, 4, v{t[4]}')
    a(f'v_lshl_add_u32 v{t[4]}, v{t[2]}, 7, v{t[4]}')
    a(f'v_add_u32 v{vxa[0]}, s{sT}, v{t[4]}')
    a(f'v_xor_b32 v{vxa[1]}, 64, v{vxa[0]}')
    a(f'v_lshlrev_b32 v{vst}, 4, v{t[2]}\nv_lshl_add_u32 v{vst}, v{t[3]}, 9, v{vst}')
    a(f'v_bfe_u32 v{t[2]}, v{lane}, 2, 2')
    a(f'v_lshl_add_u32 v{t[4]}, v{t[3]}, 3, v{t[2]}')
    a(f'v_lshlrev_b32 v{t[4]}, 7, v{t[4]}')
    a(f'v_and_b32 v{t[5]}, 3, v{lane}')
    a(f'v_lshl_add_u32 v{t[4]}, v{t[5]}, 3, v{t[4]}')
    a(f'v_lshrrev_b32 v{t[2]}, 1, v{t[2]}')
    a(f'v_lshl_add_u32 v{t[4]}, v{t[2]}, 5, v{t[4]}')
    a(f's_lshr_b32 s{sT}, s{sWave}, 2')
    a(f'v_and_b32 v{t[3]}, 1, v{t[3]}\nv_xor_b32 v{t[3]}, s{sT}, v{t[3]}')
    a(f'v_lshl_add_u32 v{t[4]}, v{t[3]}, 6, v{t[4]}')
    a(f'v_add_u32 v{vwa[0]}, {96*1024}, v{t[4]}')
    a(f'v_xor_b32 v{vwa[1]}, 32, v{vwa[0]}')
    a('s_barrier')
    for d in [dmaX(1,0),dmaW(3),dmaX(1,1),dmaW(4),dmaX(1,2),dmaW(5),dmaX(1,3)]:
        for x in d: a(x)
    cols=[(s,fb) for s in range(3) for fb in range(2)]
    def reads(s,j,b):
        def wr(seg,fb):
            off=((3*s+seg)%8)*8192+j*4096
            return [f'ds_read_b64_tr_b16 {vr(WF[b][seg][fb],2)}, v{vwa[fb]} offset:{off}', f'ds_read_b64_tr_b16 {vr(WF[b][seg][fb]+2,2)}, v{vwa[fb]} offset:{off+512}']
        def xr(m): return [f'ds_read_b128 {vr(XF[b][m],4)}, v{vxa[j]} offset:{(s%3)*8192+m*2048}']
        R=xr(0)
        for c in cols: R+=wr(*c)
        return R+xr(1)+xr(2)+xr(3)
    def mfmas(b, first):
        M=[]
        for m in range(4):
            for seg,fb in (cols if m%2==0 else cols[::-1]):
                A_,B_=(WF[b][seg][fb],XF[b][m]) if seg<2 else (XF[b][m],WF[b][seg][fb])
                d=vr(acc[m][seg][fb],4)
                M.append(f'v_mfma_f32_16x16x32_bf16 {d}, {vr(A_,4)}, {vr(B_,4)}, {"0" if first else d}')
        return M
    a('s_waitcnt vmcnt(7)\ns_barrier')
    if stamps: stamp_mid(a,0)
    for x in reads(0,0,0): a(x)
    pend=[dmaW(6),dmaW(7)]+[dmaX(2,jj) for jj in range(4)]
    rslots=opt.get('k1_rslots',list(range(16)))
    dslots=opt.get('k1_dslots',[[1,5,9],[1,5,9,13]])
    for s in range(16):
        for j in range(2):
            b=j
            if j==1 and s<15:
                assert not pend
                a(f's_waitcnt vmcnt({6 if s<14 else 0}) lgkmcnt(0)\ns_barrier')
                sn=s+1
                if 3*sn+5<48: pend.append(dmaW(3*sn+5))
                if sn+2<16: pend+= [dmaW(3*sn+6),dmaW(3*sn+7)]+[dmaX(sn+2,jj) for jj in range(4)]
            else:
                a('s_waitcnt lgkmcnt(0)')
            if j==0: R=reads(s,1,1)
            elif s<15: R=reads(s+1,0,0)
            else: R=[]
            M=mfmas(b, s==0 and j==0)
            fill=[[] for _ in M]
            for r_,sl in zip(R,rslots): fill[sl].append(r_)
            ds=dslots[j]
            if s==0 and j==0: ds=[2,5,8,11,14,17]
            for sl in ds:
                if pend: fill[sl]+=pend.pop(0)
            for x in interleave(M,fill): a(x)
    assert not pend
    if stamps: stamp_mid(a,1)
    a(f's_mov_b32 s{sWS}, s36\ns_mov_b32 s{sWS+1}, s37\ns_mov_b32 s{sWS+2}, 0x2000000\ns_mov_b32 s{sWS+3}, 0x20000')
    a(f's_lshr_b32 s{sT}, s{sWave}, 2\ns_lshl_b32 s{sT2}, s{sHP}, 1\ns_add_u32 s{sT}, s{sT}, s{sT2}\ns_lshl_b32 s{sT2}, s{sBR}, 5\ns_add_u32 s{sT}, s{sT}, s{sT2}')
    a(f's_lshl_b32 s{sT}, s{sT}, 6')
    a(f's_lshl_b32 s{sT2}, s{sMT}, 3\ns_add_u32 s{sT}, s{sT}, s{sT2}\ns_and_b32 s{sT2}, s{sWave}, 3\ns_lshl_b32 s{sT2}, s{sT2}, 1\ns_add_u32 s{sT}, s{sT}, s{sT2}')
    a(f's_lshl_b32 s{sKX}, s{sT}, 11')
    a(f's_lshl_b32 s{sKW}, s{sT}, 12\ns_add_u32 s{sKW}, s{sKW}, {WS_KV}')
    a(f's_add_u32 s{sT2}, s{sKW}, 4096')
    a(f's_mov_b32 s{sT}, {QSCALE}')
    staux=opt.get('k1st','')
    def st(c,so,off): a(f'buffer_store_dwordx4 {vr(c,4)}, v{vst}, {sr(sWS,4)}, s{so} offen offset:{off}{staux}')
    def pack(c):
        for i in range(4): a(f'v_cvt_pk_bf16_f32 v{c+i}, v{c+2*i}, v{c+2*i+1}')
    for tl in range(2):
        so=sKW if tl==0 else sT2
        for mm in range(2):
            c=acc[2*tl+mm][1][0]; pack(c); st(c,so,mm*256)
        for fb in range(2):
            c=acc[2*tl][2][fb]; pack(c); st(c,so,2048+fb*256)
        for mm in range(2):
            c=acc[2*tl+mm][0][0]
            for i in range(8): a(f'v_mul_f32 v{c+i}, s{sT}, v{c+i}')
            pack(c); st(c,sKX,tl*2048+mm*256)
    if stamps: stamp_end(a,0,36,XF[0][0])
    a('K1_END:\ns_endpgm')
    return kernel_header(name)+a.text(), V.n
```

```python
from asm import *
from k1 import WS_QF, WS_KV, WS_OF, stamp_begin, stamp_mid, stamp_end
import struct
def f2u(x): return struct.unpack('<I',struct.pack('<f',x))[0]
OFFS=88.0
def gen_k2(name='attn_kernel', stamps=False, opt={}):
    a=Asm()
    V=Alloc(1)
    Q=[V(f'q{i}',8,4) for i in range(2)]
    NM=[V(f'nm{i}',16,4) for i in range(2)]
    O=[V(f'o{i}',16,4) for i in range(2)]
    L=[V(f'l{i}',4,4) for i in range(2)]
    S=[V(f's{i}',16,4) for i in range(2)]
    KF=[V(f'k{i}',8,4) for i in range(2)]
    VF=[V(f'v{i}',8,4) for i in range(2)]
    SEL=V('sel',4,4)
    QA=V('qa',8,4)
    XM=V('xm',16,4)
    vidx=V('idx'); vka=V('vka'); vva=V('vva'); vl16=V('vl16'); vst=V('vst'); vxw=V('vxw'); vxr=V('vxr'); vfl=V('vfl')
    t=[V(f't{i}') for i in range(8)]
    sWS=8
    sWave=20; sHead=21; sQC=22; sT=23; sT2=24; sM0=25; sKV=26; sExact=27; sKVA=28; sM0A=29; sO=30; sJQ=31; sCnt=32; sKVx=33; sOffs=34; sQoff=35
    P='K2_'
    a(f's_cmp_ge_u32 s2, 256\ns_cbranch_scc1 {P}END')
    if stamps: stamp_begin(a)
    a('s_load_dwordx2 s[36:37], s[0:1], 64')
    a(f'v_lshrrev_b32 v{t[0]}, 6, v0')
    a(f's_and_b32 s{sHead}, s2, 7\ns_lshl_b32 s{sHead}, s{sHead}, 2')
    a(f'v_readfirstlane_b32 s{sWave}, v{t[0]}')
    a(f's_lshr_b32 s{sT}, s2, 3\ns_and_b32 s{sT}, s{sT}, 3\ns_add_u32 s{sHead}, s{sHead}, s{sT}\ns_lshr_b32 s{sQC}, s2, 5')
    lane=t[1]
    a(f'v_and_b32 v{lane}, 63, v0\nv_lshlrev_b32 v{vl16}, 4, v{lane}')
    a(f's_lshr_b32 s{sT}, s{sWave}, 2\ns_and_b32 s{sT2}, s{sWave}, 3')
    a(f's_mul_i32 s{sM0}, s{sT}, 49152\ns_lshl_b32 s{sKV}, s{sT2}, 12\ns_add_u32 s{sM0}, s{sM0}, s{sKV}')
    a(f's_lshl_b32 s{sKVx}, s{sT}, 17\ns_lshl_b32 s{sT}, s{sHead}, 18\ns_add_u32 s{sKVx}, s{sKVx}, s{sT}\ns_add_u32 s{sKVx}, s{sKVx}, {WS_KV+(32<<18)}')
    a(f's_add_u32 s{sKV}, s{sKV}, s{sKVx}')
    a(f's_lshl_b32 s{sQoff}, s{sHead}, 6\ns_lshl_b32 s{sT}, s{sQC}, 3\ns_add_u32 s{sQoff}, s{sQoff}, s{sT}')
    a(f's_lshl_b32 s{sT}, s{sT2}, 1\ns_add_u32 s{sT}, s{sT}, s{sQoff}\ns_lshl_b32 s{sT}, s{sT}, 11\ns_add_u32 s{sT}, s{sT}, {WS_QF+(32<<17)}')
    a(f's_mov_b32 s{sWS+2}, 0x2000000\ns_mov_b32 s{sWS+3}, 0x20000\ns_mov_b32 s{sExact}, 0')
    a('s_waitcnt lgkmcnt(0)')
    a(f's_mov_b32 s{sWS}, s36\ns_mov_b32 s{sWS+1}, s37')
    for qb in range(2):
        for c in range(2):
            a(f'buffer_load_dwordx4 {vr(Q[qb]+4*c,4)}, v{vl16}, {sr(sWS,4)}, s{sT} offen offset:{qb*2048+c*1024}')
    def dmaB(s):
        return [[f's_add_u32 m0, s{sM0}, {(s%3)*16384}', f's_add_u32 s{sT}, s{sKV}, {s*16384}', f'buffer_load_dwordx4 v{vl16}, {sr(sWS,4)}, s{sT} offen lds']]+[[f'buffer_load_dwordx4 v{vl16}, {sr(sWS,4)}, s{sT} offen offset:{c*1024} lds'] for c in range(1,4)]
    def dmaA(i):
        return [[f's_add_u32 m0, s{sM0A}, {i*32768}', f's_add_u32 s{sT}, s{sKVA}, {i*32768}', f'buffer_load_dwordx4 v{vl16}, {sr(sWS,4)}, s{sT} offen lds']]+[[f'buffer_load_dwordx4 v{vl16}, {sr(sWS,4)}, s{sT} offen offset:{c*1024} lds'] for c in range(1,4)]
    a(f'{P}BSTART:')
    for s in (0,1):
        for d in dmaB(s):
            for x in d: a(x)
    a(f'v_mov_b32 v{vidx}, 0xdddddddd')
    a(f'v_bfe_u32 v{t[2]}, v{lane}, 2, 1\nv_mul_u32_u24 v{t[2]}, 0x3f80, v{t[2]}\nv_lshl_or_b32 v{SEL+2}, v{t[2]}, 16, v{t[2]}')
    a(f'v_mov_b32 v{SEL+3}, v{SEL+2}\nv_xor_b32 v{SEL}, 0x3f803f80, v{SEL+2}\nv_xor_b32 v{SEL+1}, 0x3f803f80, v{SEL+2}')
    a(f'v_bfe_u32 v{t[2]}, v{lane}, 3, 2\nv_and_b32 v{t[3]}, 35, v{lane}\nv_lshl_add_u32 v{t[3]}, v{t[2]}, 2, v{t[3]}\nv_bfe_u32 v{t[2]}, v{lane}, 2, 1\nv_lshl_add_u32 v{t[3]}, v{t[2]}, 4, v{t[3]}')
    a(f's_lshr_b32 s{sT}, s{sWave}, 2\ns_mul_i32 s{sT}, s{sT}, 49152')
    a(f'v_lshl_add_u32 v{vka}, v{t[3]}, 4, s{sT}\nv_add_u32 v{vva}, s{sT}, v{vl16}')
    for qb in range(2):
        for i in range(16): a(f'v_mov_b32 v{O[qb]+i}, 0')
        for i in range(4): a(f'v_mov_b32 v{L[qb]+i}, 0')
    a(f's_add_u32 s{sT}, s{sQoff}, s{sWave}\ns_lshl_b32 s{sKVA}, s{sT}, 12\ns_add_u32 s{sKVA}, s{sKVA}, {WS_KV-8*4096}')
    a(f's_lshl_b32 s{sM0A}, s{sWave}, 12\ns_add_u32 s{sM0A}, s{sM0A}, {96*1024}')
    a('s_waitcnt vmcnt(4)\ns_barrier')
    if stamps: stamp_mid(a,0)
    def rdK(buf,T,addr=None):
        off=((T//4)%3)*16384+(T%4)*4096
        return [f'ds_read_b128 {vr(KF[buf]+4*c,4)}, v{vka} offset:{off+c*1024}' for c in range(2)]
    def rdV(buf,T):
        off=((T//4)%3)*16384+(T%4)*4096+2048
        return [f'ds_read_b128 {vr(VF[buf]+4*c,4)}, v{vva} offset:{off+c*1024}' for c in range(2)]
    def QK(sb,kb,q,c):
        return [f'v_mfma_f32_32x32x16_bf16 {vr(sb,16)}, {vr(kb,4)}, {vr(q,4)}, {c}', f'v_mfma_f32_32x32x16_bf16 {vr(sb,16)}, {vr(kb+4,4)}, {vr(q+4,4)}, {vr(sb,16)}']
    def maxtree(dst, sb, first):
        o=[]
        if first:
            o.append(f'v_max3_f32 v{dst}, v{sb}, v{sb+1}, v{sb+2}')
            for i in range(3,15,2): o.append(f'v_max3_f32 v{dst}, v{dst}, v{sb+i}, v{sb+i+1}')
            o.append(f'v_max_f32 v{dst}, v{dst}, v{sb+15}')
        else:
            for i in range(0,16,2): o.append(f'v_max3_f32 v{dst}, v{dst}, v{sb+i}, v{sb+i+1}')
        return o
    def finish_max(mx, tmp, nm, soffs):
        a(f'v_mov_b32 v{tmp}, v{mx}\ns_nop 1\nv_permlane32_swap_b32 v{tmp}, v{mx}\ns_nop 1\nv_max_f32 v{mx}, v{mx}, v{tmp}')
        a(f'v_sub_f32 v{nm}, s{soffs}, v{mx}')
        for i in range(1,16): a(f'v_mov_b32 v{nm+i}, v{nm}')
    for x in rdK(0,0)+rdK(1,1)+rdV(0,0): a(x)
    for d in dmaB(2):
        for x in d: a(x)
    a(f's_cmp_lg_u32 s{sExact}, 0\ns_cbranch_scc1 {P}BMAIN')
    a(f's_mov_b32 s{sOffs}, {f2u(-OFFS)}')
    a('s_waitcnt lgkmcnt(4)')
    for x in QK(S[0],KF[0],Q[0],'0')+QK(S[1],KF[0],Q[1],'0'): a(x)
    a('s_waitcnt lgkmcnt(2)')
    for x in QK(NM[0],KF[1],Q[0],'0')+QK(NM[1],KF[1],Q[1],'0'): a(x)
    a('s_nop 7')
    for x in maxtree(t[4],S[0],True)+maxtree(t[5],S[1],True)+maxtree(t[4],NM[0],False)+maxtree(t[5],NM[1],False): a(x)
    finish_max(t[4],t[2],NM[0],sOffs); finish_max(t[5],t[2],NM[1],sOffs)
    a(f'{P}BMAIN:')
    a('s_waitcnt lgkmcnt(0)\ns_nop 0')
    for x in QK(S[0],KF[0],Q[0],vr(NM[0],16)): a(x)
    a('s_nop 11')
    def PV(o,vb,sb,c): return f'v_smfmac_f32_32x32x32_bf16 {vr(o,16)}, {vr(vb+4*c,4)}, {vr(sb+8*c,8)}, v{vidx}'
    def SM(l,sb,c): return f'v_smfmac_f32_16x16x64_bf16 {vr(l,4)}, {vr(SEL,4)}, {vr(sb+8*c,8)}, v{vidx}'
    def slot(sc, prev, nxt, cur, F):
        E=[f'v_exp_f32 v{sc+i}, v{sc+i}' for i in range(16)]
        g=lambda k: F.get(k,[])
        seq=E[0:2]
        if prev: seq+=[prev[0]]+g('S1')+E[2:3]+[prev[1]]+g('P1')
        else: seq+=g('S1')+E[2:3]+g('P1')
        seq+=E[3:6]
        if nxt: seq+=[nxt[0]]+g('Q0')+E[6:9]+[nxt[1]]+g('Q1')
        else: seq+=g('Q0')+E[6:9]+g('Q1')
        seq+=E[9:12]+[cur[0]]+g('S0')+E[12:13]+[cur[1]]+g('P0')+E[13:16]
        for x in seq: a(x)
    NT=32
    pend=[]
    for T in range(NT):
        kb=T&1
        for qb in range(2):
            F={}
            if qb==0:
                prev=(SM(L[1],S[1],1),PV(O[1],VF[kb^1],S[1],1)) if T>0 else None
                nxt=QK(S[1],KF[kb],Q[1],vr(NM[1],16))
                R=rdK(kb^1,T+1) if (T+1<NT and T>0) else []
                if T%4==3 and T+1<NT:
                    s=T//4+1
                    F['S1']=['s_waitcnt vmcnt(4) lgkmcnt(0)','s_barrier']
                    if s+2<8: pend=dmaB(s+2)
                    else: pend=dmaA(s-6)
            else:
                prev=(SM(L[0],S[0],1),PV(O[0],VF[kb],S[0],1))
                nxt=QK(S[0],KF[kb^1],Q[0],vr(NM[0],16)) if T+1<NT else None
                R=rdV(kb^1,T+1) if T+1<NT else []
            F.setdefault('S1',['s_waitcnt lgkmcnt(0)'])
            F['P1']=R[0:1]; F['Q0']=R[1:2]
            F['Q1']=['s_nop 0']; F['S0']=['s_nop 0']; F['P0']=['s_nop 0']
            if pend:
                d=pend.pop(0)
                if len(d)==3: F['Q1']=d[0:1]; F['S0']=d[1:2]
                F['P0']=d[-1:]
            slot(S[qb],prev,nxt,(SM(L[qb],S[qb],0),PV(O[qb],VF[kb],S[qb],0)),F)
    assert not pend
    a('s_nop 1')
    a(SM(L[1],S[1],1)); a(PV(O[1],VF[1],S[1],1))
    if stamps: stamp_mid(a,1)
    a(f's_add_u32 s{sT}, s{sQoff}, s{sWave}\ns_lshl_b32 s{sT}, s{sT}, 11')
    for c in range(2): a(f'buffer_load_dwordx4 {vr(QA+4*c,4)}, v{vl16}, {sr(sWS,4)}, s{sT} offen offset:{WS_QF+c*1024}')
    a(f'v_add_u32 v{vxw}, s{sM0}, v{vl16}')
    a(f's_lshr_b32 s{sT}, s{sWave}, 2\ns_xor_b32 s{sT}, s{sT}, 1\ns_mul_i32 s{sT}, s{sT}, 49152\ns_and_b32 s{sT2}, s{sWave}, 3\ns_lshl_b32 s{sT2}, s{sT2}, 12\ns_add_u32 s{sT}, s{sT}, s{sT2}')
    a(f'v_add_u32 v{vxr}, s{sT}, v{vl16}')
    a(f'v_bfe_u32 v{t[2]}, v{lane}, 2, 1\nv_mul_u32_u24 v{t[2]}, 49152, v{t[2]}\nv_and_b32 v{t[3]}, 3, v{lane}\nv_lshl_add_u32 v{vfl}, v{t[3]}, 12, v{t[2]}')
    a(f'v_bfe_u32 v{t[2]}, v{lane}, 4, 1\nv_lshrrev_b32 v{t[3]}, 5, v{lane}\nv_and_b32 v{vst}, 15, v{lane}\nv_lshlrev_b32 v{vst}, 4, v{vst}\nv_lshl_add_u32 v{vst}, v{t[2]}, 10, v{vst}\nv_lshl_add_u32 v{vst}, v{t[3]}, 8, v{vst}')
    def check(o,l,tmp,first):
        a(f'v_add_f32 v{tmp}, abs(v{o}), abs(v{o+1})')
        for i in range(2,16): a(f'v_add_f32 v{tmp}, abs(v{o+i}), v{tmp}')
        a(f'v_cmp_lt_f32 s[42:43], s44, v{tmp}\nv_cmp_gt_f32 s[46:47], s45, v{tmp}\nv_cmp_gt_f32 vcc, s48, v{l}')
        a('s_and_b64 s[42:43], s[42:43], s[46:47]\ns_and_b64 s[42:43], s[42:43], vcc')
        a('s_mov_b64 s[40:41], s[42:43]' if first else 's_and_b64 s[40:41], s[40:41], s[42:43]')
    a(f's_mov_b32 s44, {f2u(2.0**-104)}\ns_mov_b32 s45, 0x7f800000\ns_mov_b32 s48, {f2u(2.0**120)}')
    check(O[0],L[0],t[2],True); check(O[1],L[1],t[2],False)
    a(f's_cmp_eq_u64 s[40:41], -1\ns_cselect_b32 s{sT}, 0, 1\nv_mov_b32 v{t[7]}, s{sT}')
    for qb in range(2):
        a(f'v_rcp_f32 v{t[2]}, v{L[qb]}\nv_log_f32 v{L[qb]+1}, v{L[qb]}')
        for i in range(16): a(f'v_mul_f32 v{O[qb]+i}, v{t[2]}, v{O[qb]+i}')
        a(f'v_sub_f32 v{L[qb]}, v{L[qb]+1}, v{NM[qb]}')
    a(f's_cmp_ge_u32 s{sWave}, 4\ns_cbranch_scc1 {P}X1')
    for i in range(4): a(f'ds_write_b128 v{vxw}, {vr(O[1]+4*i,4)} offset:{i*1024}')
    a(f'v_mov_b32 v{t[6]}, v{L[1]}')
    a(f's_branch {P}X2\n{P}X1:')
    for i in range(4): a(f'ds_write_b128 v{vxw}, {vr(O[0]+4*i,4)} offset:{i*1024}')
    a(f'v_mov_b32 v{t[6]}, v{L[0]}\nv_mov_b32 v{L[0]}, v{L[1]}')
    a('s_waitcnt lgkmcnt(0)')
    for i in range(16): a(f'v_mov_b32 v{O[0]+i}, v{O[1]+i}')
    a(f'{P}X2:')
    assert t[6]%2==0 and t[7]==t[6]+1
    a(f'ds_write_b64 v{vxw}, {vr(t[6],2)} offset:32768')
    a('s_waitcnt vmcnt(2) lgkmcnt(0)\ns_barrier')
    a(f'ds_read_b32 v{t[2]}, v{vxr} offset:32768\nds_read_b32 v{t[3]}, v{vfl} offset:32772')
    for i in range(4): a(f'ds_read_b128 {vr(O[1]+4*i,4)}, v{vxr} offset:{i*1024}')
    a(f's_lshl_b32 s{sO}, s{sQC}, 3\ns_and_b32 s{sT}, s{sWave}, 3\ns_lshl_b32 s{sT}, s{sT}, 1\ns_add_u32 s{sO}, s{sO}, s{sT}\ns_lshr_b32 s{sT}, s{sWave}, 2\ns_add_u32 s{sO}, s{sO}, s{sT}')
    a(f's_lshl_b32 s{sO}, s{sO}, 5\ns_add_u32 s{sO}, s{sO}, s{sHead}\ns_lshl_b32 s{sO}, s{sO}, 11\ns_add_u32 s{sO}, s{sO}, {WS_OF+(64<<16)}')
    a('s_waitcnt lgkmcnt(4)')
    a(f'v_cmp_ne_u32 vcc, 0, v{t[3]}')
    a(f'v_max_f32 v{t[4]}, v{t[2]}, v{L[0]}\nv_sub_f32 v{t[2]}, v{t[2]}, v{t[4]}\nv_sub_f32 v{t[4]}, v{L[0]}, v{t[4]}')
    a(f's_cmp_lg_u64 vcc, 0\ns_cselect_b32 s{sT}, 1, 0\ns_cmp_gt_u32 s{sT}, s{sExact}\ns_cbranch_scc1 {P}BFALL')
    a(f'v_exp_f32 v{t[2]}, v{t[2]}\nv_exp_f32 v{t[4]}, v{t[4]}\ns_nop 0\nv_add_f32 v{t[5]}, v{t[2]}, v{t[4]}\nv_rcp_f32 v{t[5]}, v{t[5]}\ns_nop 0\nv_mul_f32 v{t[2]}, v{t[2]}, v{t[5]}\nv_mul_f32 v{t[4]}, v{t[4]}, v{t[5]}')
    for i in range(16): a(f'v_mul_f32 v{O[0]+i}, v{t[4]}, v{O[0]+i}')
    a('s_waitcnt lgkmcnt(0)')
    for i in range(16): a(f'v_fmac_f32 v{O[0]+i}, v{t[2]}, v{O[1]+i}')
    ost=opt.get('k2st','')
    def storeO(o,dst):
        for i in range(8): a(f'v_cvt_pk_bf16_f32 v{dst+i}, v{o+2*i}, v{o+2*i+1}')
        for c in range(2): a(f'buffer_store_dwordx4 {vr(dst+4*c,4)}, v{vst}, {sr(sWS,4)}, s{sO} offen offset:{c*512}{ost}')
    storeO(O[0],Q[0])
    if stamps: stamp_mid(a,2)
    a(f's_lshl_b32 s{sJQ}, s{sQC}, 3\ns_add_u32 s{sJQ}, s{sJQ}, s{sWave}')
    a(f's_lshr_b32 s{sT}, s{sWave}, 2\ns_mul_i32 s{sT}, s{sT}, 49152\ns_sub_u32 s{sT}, s{sM0A}, s{sT}')
    a(f'v_add_u32 v{vka}, s{sT}, v{vka}\nv_add_u32 v{vva}, s{sT}, v{vva}')
    def rdKA(buf,tt): return [f'ds_read_b128 {vr(KF[buf]+4*c,4)}, v{vka} offset:{(8-tt)*4096+c*1024}' for c in range(2)]
    def rdVA(buf,tt): return [f'ds_read_b128 {vr(VF[buf]+4*c,4)}, v{vva} offset:{(8-tt)*4096+2048+c*1024}' for c in range(2)]
    a(f'v_and_b32 v{t[2]}, 31, v{lane}\nv_lshrrev_b32 v{t[3]}, 5, v{lane}\nv_lshlrev_b32 v{t[3]}, 4, v{t[3]}\nv_sub_u32 v{t[2]}, v{t[2]}, v{t[3]}\nv_cvt_f32_i32 v{t[2]}, v{t[2]}')
    a(f'v_mul_f32 v{t[2]}, {f2u(2.0**100)}, v{t[2]}')
    for r in range(16): a(f'v_add_f32 v{XM+r}, {f2u((0.5-r)*2.0**100)}, v{t[2]}')
    a(f's_lshl_b32 s{sO}, s{sJQ}, 5\ns_add_u32 s{sO}, s{sO}, s{sHead}\ns_lshl_b32 s{sO}, s{sO}, 11\ns_add_u32 s{sO}, s{sO}, {WS_OF}')
    a(f's_mov_b32 s{sExact}, 0\ns_mov_b32 s{sOffs}, {f2u(-OFFS)}\ns_min_u32 s{sCnt}, s{sJQ}, 1')
    CD=NM[1]; NA=NM[0]; OA=O[1]; LA=L[1]
    a(f'{P}AMAX:')
    for x in rdKA(0,0): a(x)
    for r in range(16): a(f'v_min_f32 v{CD+r}, 0, v{XM+r}')
    a(f'v_mov_b32 v{t[5]}, v{vka}')
    a('s_waitcnt vmcnt(2) lgkmcnt(0)')
    for x in QK(S[0],KF[0],QA,vr(CD,16)): a(x)
    a('s_nop 11')
    for x in maxtree(t[4],S[0],True): a(x)
    a(f's_mov_b32 s{sT2}, 0')
    a(f'{P}AMAXL:')
    a(f's_cmp_ge_u32 s{sT2}, s{sCnt}\ns_cbranch_scc1 {P}AMAXD')
    for c in range(2): a(f'ds_read_b128 {vr(KF[1]+4*c,4)}, v{t[5]} offset:{7*4096+c*1024}')
    a(f's_add_u32 s{sT2}, s{sT2}, 1\nv_subrev_u32 v{t[5]}, 4096, v{t[5]}')
    a('s_waitcnt lgkmcnt(0)')
    for x in QK(S[1],KF[1],QA,'0'): a(x)
    a('s_nop 11')
    a(f's_cmp_lg_u32 s{sT2}, 8\ns_cbranch_scc1 {P}AMAXN')
    for r in range(16): a(f'v_min_f32 v{S[1]+r}, v{S[1]+r}, -v{XM+r}')
    a(f'{P}AMAXN:')
    for x in maxtree(t[4],S[1],False): a(x)
    a(f's_branch {P}AMAXL')
    a(f'{P}AMAXD:')
    for x in rdKA(1,1)+rdVA(0,0): a(x)
    finish_max(t[4],t[2],NA,sOffs)
    for r in range(16): a(f'v_min_f32 v{CD+r}, v{NA}, v{XM+r}')
    for i in range(16): a(f'v_mov_b32 v{OA+i}, 0')
    for i in range(4): a(f'v_mov_b32 v{LA+i}, 0')
    for x in QK(S[0],KF[0],QA,vr(CD,16)): a(x)
    a('s_nop 11')
    stubs=[]
    for tt in range(9):
        b=tt&1
        F={}
        prev=(SM(LA,S[b^1],1),PV(OA,VF[b^1],S[b^1],1)) if tt>0 else None
        nxt=None
        if tt<8:
            F['S1']=[f's_cmp_eq_u32 s{sJQ}, {tt}', f's_cbranch_scc1 {P}APOI{tt}', f'{P}ARET{tt}:']
            stubs.append(tt)
            F['P1']=['s_waitcnt lgkmcnt(0)']
            if tt==7:
                F['P1']+=[f'v_min_f32 v{CD+r}, v{NA}, -v{XM+r}' for r in range(16)]
            nxt=QK(S[b^1],KF[b^1],QA,vr(CD if tt==7 else NA,16))
            RV=rdVA(b^1,tt+1); RK=rdKA(b,tt+2) if tt+2<=8 else ['s_nop 0','s_nop 0']
            F['Q0']=RV[0:1]; F['Q1']=RV[1:2]; F['S0']=RK[0:1]; F['P0']=RK[1:2]
        else:
            F['P1']=['s_waitcnt lgkmcnt(0)']
        slot(S[b],prev,nxt,(SM(LA,S[b],0),PV(OA,VF[b],S[b],0)),F)
    a('s_nop 1')
    a(SM(LA,S[0],1)); a(PV(OA,VF[0],S[0],1))
    a('s_nop 11')
    check(OA,LA,t[2],True)
    a(f'v_rcp_f32 v{t[2]}, v{LA}')
    a(f's_cmp_eq_u64 s[40:41], -1\ns_cselect_b32 s{sT}, 0, 1\ns_cmp_gt_u32 s{sT}, s{sExact}\ns_cbranch_scc1 {P}AFALL')
    for i in range(16): a(f'v_mul_f32 v{OA+i}, v{t[2]}, v{OA+i}')
    storeO(OA,Q[1])
    if stamps: stamp_end(a,1,36,S[0])
    a(f'{P}END:\ns_endpgm')
    for tt in stubs:
        a(f'{P}APOI{tt}:\ns_nop 7')
        for r in range(16): a(f'v_mov_b32 v{NA+r}, {f2u(-2.0**120)}')
        a(f's_branch {P}ARET{tt}')
    a(f'{P}AFALL:')
    a(f's_mov_b32 s{sExact}, 1\ns_mov_b32 s{sOffs}, 0\ns_min_u32 s{sCnt}, s{sJQ}, 8\ns_branch {P}AMAX')
    a(f'{P}BFALL:')
    a('s_waitcnt vmcnt(0) lgkmcnt(0)\ns_barrier')
    a(f's_mov_b32 s{sExact}, 1\ns_mov_b32 s{sOffs}, 0\ns_mov_b32 s{sCnt}, 0')
    a(f'v_mov_b32 v{t[4]}, 0xff800000\nv_mov_b32 v{t[5]}, 0xff800000')
    a(f'{P}BFL:')
    a(f's_lshl_b32 s{sT}, s{sCnt}, 12\ns_add_u32 s{sT}, s{sT}, s{sKVx}')
    for c in range(2): a(f'buffer_load_dwordx4 {vr(KF[0]+4*c,4)}, v{vl16}, {sr(sWS,4)}, s{sT} offen offset:{c*1024}')
    a('s_waitcnt vmcnt(0)')
    for x in QK(S[0],KF[0],Q[0],'0')+QK(S[1],KF[0],Q[1],'0'): a(x)
    a('s_nop 11')
    for x in maxtree(t[4],S[0],False)+maxtree(t[5],S[1],False): a(x)
    a(f's_add_u32 s{sCnt}, s{sCnt}, 1\ns_cmp_lt_u32 s{sCnt}, 32\ns_cbranch_scc1 {P}BFL')
    finish_max(t[4],t[2],NM[0],sOffs); finish_max(t[5],t[2],NM[1],sOffs)
    a(f's_branch {P}BSTART')
    return kernel_header(name)+a.text(), V.n, 163840
```

```python
from asm import *
from k1 import WS_QF, WS_KV, WS_OF, stamp_begin, stamp_mid, stamp_end
def gen_k3(name='oproj_kernel', stamps=False, opt={}):
    a=Asm()
    V=Alloc(1)
    NS=opt.get('k3_slots',4)
    acc=[[V(f'acc{m}{f}',4,4) for f in range(4)] for m in range(4)]
    OF=[[V(f'of{b}{m}',4,4) for m in range(4)] for b in range(2)]
    WF=[[V(f'wf{b}{f}',4,4) for f in range(4)] for b in range(2)]
    voa=V('voa'); vwa=[V(f'vwa{f}') for f in range(4)]
    vgo=V('vgo'); vgw=[V(f'vgw{i}') for i in range(2)]
    vst=V('vst'); t=[V(f't{i}') for i in range(6)]
    sWS=8; sW=12; sOut=16
    sWave=20; sMT=21; sNT=22; sBR=23; sT=24; sT2=25; sM0=26; sKO=27; sKW=28; sOb=29
    P='K3_'
    a(f's_cmp_ge_u32 s2, 256\ns_cbranch_scc1 {P}END')
    if stamps: stamp_begin(a)
    a('s_and_b32 s3, s2, 7')
    a(f's_lshr_b32 s{sBR}, s3, 2\ns_mul_i32 s{sT}, s{sBR}, 24\ns_add_u32 s4, s0, s{sT}\ns_addc_u32 s5, s1, 0')
    a('s_load_dwordx2 s[32:33], s[4:5], 16\ns_load_dwordx2 s[34:35], s[0:1], 48\ns_load_dwordx2 s[36:37], s[0:1], 64')
    a(f'v_lshrrev_b32 v{t[0]}, 6, v0')
    a(f's_lshr_b32 s{sT}, s2, 3')
    a(f'v_readfirstlane_b32 s{sWave}, v{t[0]}')
    a(f's_and_b32 s{sMT}, s{sT}, 7\ns_and_b32 s{sT2}, s3, 1\ns_lshl_b32 s{sT2}, s{sT2}, 3\ns_add_u32 s{sMT}, s{sMT}, s{sT2}')
    a(f's_lshr_b32 s{sNT}, s{sT}, 3\ns_and_b32 s{sT2}, s3, 2\ns_lshl_b32 s{sT2}, s{sT2}, 1\ns_add_u32 s{sNT}, s{sNT}, s{sT2}')
    lane=t[1]
    a(f'v_and_b32 v{lane}, 63, v0')
    a(f's_mov_b32 s{sWS+2}, 0x2000000\ns_mov_b32 s{sWS+3}, 0x20000\ns_mov_b32 s{sW+2}, 0x200000\ns_mov_b32 s{sW+3}, 0x20000\ns_mov_b32 s{sOut+2}, 0x800000\ns_mov_b32 s{sOut+3}, 0x20000')
    a(f's_cmp_lt_u32 s{sWave}, 4\ns_cbranch_scc1 {P}COMP')
    a(f's_sub_u32 s{sWave}, s{sWave}, 4')
    a(f'v_lshlrev_b32 v{vgo}, 4, v{lane}')
    a(f's_lshl_b32 s{sOb}, s{sBR}, 6\ns_lshl_b32 s{sT}, s{sMT}, 2\ns_add_u32 s{sOb}, s{sOb}, s{sT}\ns_add_u32 s{sOb}, s{sOb}, s{sWave}\ns_lshl_b32 s{sOb}, s{sOb}, 16\ns_add_u32 s{sOb}, s{sOb}, {WS_OF}')
    a(f'v_lshrrev_b32 v{t[2]}, 4, v{lane}\nv_and_b32 v{t[3]}, 15, v{lane}\nv_lshlrev_b32 v{t[4]}, 1, v{t[2]}\nv_xor_b32 v{t[3]}, v{t[3]}, v{t[4]}')
    a(f's_lshl_b32 s{sT}, s{sWave}, 4\nv_add_u32 v{t[2]}, s{sT}, v{t[2]}\nv_lshlrev_b32 v{t[2]}, 11, v{t[2]}\nv_lshl_add_u32 v{vgw[0]}, v{t[3]}, 4, v{t[2]}')
    a(f's_lshl_b32 s{sT}, s{sNT}, 8\nv_add_u32 v{vgw[0]}, s{sT}, v{vgw[0]}')
    a(f'v_xor_b32 v{vgw[1]}, 128, v{vgw[0]}\nv_add_u32 v{vgw[1]}, {4*2048-1024}, v{vgw[1]}')
    a(f's_lshl_b32 s{sM0}, s{sWave}, 12')
    a('s_waitcnt lgkmcnt(0)')
    a(f's_add_u32 s{sWS}, s36, {opt.get("wsbase",0)<<20}\ns_addc_u32 s{sWS+1}, s37, 0\ns_mov_b32 s{sW}, s32\ns_mov_b32 s{sW+1}, s33')
    def issue(s):
        sl=s%NS
        a(f's_add_u32 m0, s{sM0}, {NS*16384+sl*16384}\ns_mov_b32 s{sKW}, {s*64*2048}')
        a(f'buffer_load_dwordx4 v{vgw[0]}, {sr(sW,4)}, s{sKW} offen lds')
        a(f'buffer_load_dwordx4 v{vgw[1]}, {sr(sW,4)}, s{sKW} offen offset:1024 lds')
        a(f's_mov_b32 s{sKW}, {s*64*2048+8*2048-2048}')
        a(f'buffer_load_dwordx4 v{vgw[0]}, {sr(sW,4)}, s{sKW} offen offset:2048 lds')
        a(f'buffer_load_dwordx4 v{vgw[1]}, {sr(sW,4)}, s{sKW} offen offset:3072 lds')
        a(f's_add_u32 m0, s{sM0}, {sl*16384}\ns_add_u32 s{sKO}, s{sOb}, {s*4096}')
        for c in range(4): a(f'buffer_load_dwordx4 v{vgo}, {sr(sWS,4)}, s{sKO} offen offset:{c*1024} lds')
    for s in range(NS-1): issue(s)
    for s in range(16):
        infl=min(NS-2,15-s)
        a(f's_waitcnt vmcnt({8*infl})\ns_barrier')
        if s+NS-1<16: issue(s+NS-1)
    a(f's_branch {P}END2')
    a(f'{P}COMP:')
    a(f's_and_b32 s{sT}, s{sWave}, 1\ns_lshl_b32 s{sT}, s{sT}, 13\nv_lshl_add_u32 v{voa}, v{lane}, 4, s{sT}')
    a(f'v_bfe_u32 v{t[2]}, v{lane}, 2, 3')
    a(f'v_lshrrev_b32 v{t[3]}, 5, v{lane}\nv_lshl_add_u32 v{t[3]}, v{t[3]}, 4, v{t[2]}\nv_lshlrev_b32 v{t[3]}, 8, v{t[3]}')
    a(f'v_and_b32 v{t[4]}, 3, v{lane}\nv_lshl_add_u32 v{t[3]}, v{t[4]}, 3, v{t[3]}')
    a(f's_lshr_b32 s{sT}, s{sWave}, 1\ns_lshl_b32 s{sT}, s{sT}, 2\nv_xor_b32 v{t[2]}, s{sT}, v{t[2]}\nv_lshl_add_u32 v{t[3]}, v{t[2]}, 5, v{t[3]}')
    a(f'v_add_u32 v{vwa[0]}, {NS*16384}, v{t[3]}')
    for f in range(1,4): a(f'v_xor_b32 v{vwa[f]}, {32*f}, v{vwa[0]}')
    a(f'v_and_b32 v{t[2]}, 15, v{lane}\nv_lshlrev_b32 v{vst}, 12, v{t[2]}\nv_bfe_u32 v{t[2]}, v{lane}, 4, 1\nv_lshl_add_u32 v{vst}, v{t[2]}, 5, v{vst}\nv_lshrrev_b32 v{t[2]}, 5, v{lane}\nv_lshl_add_u32 v{vst}, v{t[2]}, 4, v{vst}')
    a(f's_lshl_b32 s{sOb}, s{sMT}, 1\ns_and_b32 s{sT}, s{sWave}, 1\ns_add_u32 s{sOb}, s{sOb}, s{sT}\ns_lshl_b32 s{sOb}, s{sOb}, 18')
    a(f's_lshl_b32 s{sT}, s{sBR}, 11\ns_add_u32 s{sOb}, s{sOb}, s{sT}\ns_lshl_b32 s{sT}, s{sNT}, 8\ns_add_u32 s{sOb}, s{sOb}, s{sT}\ns_lshr_b32 s{sT}, s{sWave}, 1\ns_lshl_b32 s{sT}, s{sT}, 7\ns_add_u32 s{sOb}, s{sOb}, s{sT}')
    a('s_waitcnt lgkmcnt(0)')
    a(f's_mov_b32 s{sOut}, s34\ns_mov_b32 s{sOut+1}, s35')
    def reads(s,j,b):
        sl=s%NS
        def wr(f):
            off=sl*16384+j*8192
            return [f'ds_read_b64_tr_b16 {vr(WF[b][f],2)}, v{vwa[f]} offset:{off}', f'ds_read_b64_tr_b16 {vr(WF[b][f]+2,2)}, v{vwa[f]} offset:{off+2048}']
        def xr(m): return [f'ds_read_b128 {vr(OF[b][m],4)}, v{voa} offset:{sl*16384+(m>>1)*4096+j*2048+(m&1)*1024}']
        return xr(0)+wr(0)+wr(1)+wr(2)+wr(3)+xr(1)+xr(2)+xr(3)
    def mfmas(b,first):
        M=[]
        for m in range(4):
            for f in (range(4) if m%2==0 else range(3,-1,-1)):
                d=vr(acc[m][f],4)
                M.append(f'v_mfma_f32_16x16x32_bf16 {d}, {vr(WF[b][f],4)}, {vr(OF[b][m],4)}, {"0" if first else d}')
        return M
    a('s_barrier')
    if stamps: stamp_mid(a,0)
    for x in reads(0,0,0): a(x)
    for s in range(16):
        for j in range(2):
            a('s_waitcnt lgkmcnt(0)')
            if j==1 and s<15: a('s_barrier')
            R=reads(s,1,1) if j==0 else (reads(s+1,0,0) if s<15 else [])
            M=mfmas(j,s==0 and j==0)
            for x in interleave(M,[[r] for r in R]): a(x)
    if stamps: stamp_mid(a,1)
    a('s_nop 7')
    ost=opt.get('k3st','')
    for m in range(4):
        for p in range(2):
            c0=acc[m][2*p]; c1=acc[m][2*p+1]
            assert c1==c0+4
            for i in range(4): a(f'v_cvt_pk_bf16_f32 v{c0+i}, v{c0+2*i}, v{c0+2*i+1}')
            a(f's_add_u32 s{sT}, s{sOb}, {m*16*4096}\ns_nop 0')
            a(f'v_permlane16_swap_b32 v{c0}, v{c0+2}\nv_permlane16_swap_b32 v{c0+1}, v{c0+3}')
            a(f'buffer_store_dwordx4 {vr(c0,4)}, v{vst}, {sr(sOut,4)}, s{sT} offen offset:{p*64}{ost}')
    if stamps: stamp_end(a,2,36,OF[0][0])
    a(f'{P}END2:')
    a(f'{P}END:\ns_endpgm')
    return kernel_header(name)+a.text(), V.n, NS*32768, 512
```

```python
import sys, json
import build
opt=json.loads(sys.argv[2]) if len(sys.argv)>2 else {}
ref=open('concat_heads__sliding_block__softmax_full_mha__prompt.s.ref').read().split('\n')
hdr='\n'.join(l for l in ref[:10])+'\n'
s=build.build(False,opt,('k1','k2','k3'))
open(sys.argv[1],'w').write(hdr+s)
```

```python
from asm import *
from k1 import WS_STAMP
def gen_amp(name, k_from, c_from, op_from, k_to, c_to, op_to, mult):
    a=Asm()
    a('s_cmp_ge_u32 s2, 1\ns_cbranch_scc1 AMP_END')
    a('s_load_dwordx2 s[4:5], s[0:1], 64\nv_lshlrev_b32 v1, 5, v0\ns_waitcnt lgkmcnt(0)')
    for idx,(k,c) in enumerate(((k_from,c_from),(k_to,c_to))):
        for j in range(4):
            a(f'v_add_u32 v2, {WS_STAMP+k*65536+j*2048+c*4}, v1\nglobal_load_dword v{4+idx*4+j}, v2, s[4:5] sc0 sc1')
    a('s_waitcnt vmcnt(0)')
    for idx,op in enumerate((op_from,op_to)):
        b=4+idx*4
        for j in range(1,4): a(f'v_{op}_u32 v{b}, v{b}, v{b+j}')
        a('s_nop 1')
        a(f'v_readlane_b32 s{10+idx}, v{b}, 0')
        for l in range(1,64): a(f'v_readlane_b32 s12, v{b}, {l}\ns_nop 0\ns_{op}_u32 s{10+idx}, s{10+idx}, s12')
    a(f's_sub_u32 s10, s11, s10\ns_min_u32 s10, s10, 20000\ns_mul_i32 s10, s10, {mult}')
    a('s_memrealtime s[14:15]\ns_waitcnt lgkmcnt(0)')
    a('AMP_L:\ns_memrealtime s[16:17]\ns_waitcnt lgkmcnt(0)\ns_sub_u32 s16, s16, s14\ns_cmp_lt_u32 s16, s10\ns_cbranch_scc1 AMP_L')
    a('AMP_END:\ns_endpgm')
    return kernel_header(name)+a.text(), 16
def add_amp(src, *args):
    t,nv=gen_amp('amp_kernel',*args)
    i=src.index('.amdgcn_target'); j=src.index('.section .rodata')
    return src[:i]+'; @launch kernel=amp_kernel grid=(1,1,1) block=(64,1,1) lds=0\n'+src[i:j]+t+src[j:]+'.p2align 6\n'+kernel_desc('amp_kernel',nv)
if __name__=='__main__':
    import build, sys, json
    opt=json.loads(sys.argv[1]) if len(sys.argv)>1 else {}
    base=build.build(True,opt,('k1','k2','k3'))
    cfg={'a0':(0,0,'min',0,0,'min',0),
         'a1':(0,0,'min',2,1,'max',10),
         'a2':(0,0,'min',0,1,'max',10),
         'a3':(0,0,'min',1,0,'min',10),
         'a4':(0,0,'min',1,1,'max',10),
         'a5':(0,0,'min',2,0,'min',10)}
    for n,c in cfg.items(): open(f'exp/{n}.s','w').write(add_amp(base,*c))
```

```python
from asm import *
WS_QF=0; WS_KV=8<<20; WS_OF=24<<20; WS_STAMP=128<<20
QSCALE=0x3e82947d
import struct, math
QSCALE=struct.unpack('<I',struct.pack('<f',(32**-0.5)*math.log2(math.e)))[0]

def stamp_begin(a):
    a('s_memrealtime s[84:85]\ns_memtime s[86:87]')
def stamp_mid(a, idx):
    a(f's_memtime s[88:89]\ns_waitcnt lgkmcnt(0)\ns_sub_u32 s{92+idx}, s88, s86')
def stamp_end(a, kidx, ws_lo, vtmp):
    a('s_waitcnt vmcnt(0)\ns_memrealtime s[88:89]\ns_memtime s[90:91]\ns_waitcnt lgkmcnt(0)')
    a('s_sub_u32 s90, s90, s86')
    for i,s in enumerate((84,88,90,92,93,94,95,96)): a(f'v_mov_b32 v{vtmp+i}, s{s}')
    a(f's_lshl_b32 s88, s2, 5\ns_add_u32 s88, s88, {WS_STAMP+kidx*65536}\nv_mov_b32 v{vtmp+8}, s88')
    a(f'global_store_dwordx4 v{vtmp+8}, {vr(vtmp,4)}, s[{ws_lo}:{ws_lo+1}]')
    a(f'global_store_dwordx4 v{vtmp+8}, {vr(vtmp+4,4)}, s[{ws_lo}:{ws_lo+1}] offset:16')

def gen_k1(name='qkv_kernel', stamps=False, opt={}):
    a=Asm()
    V=Alloc(1)
    acc=[[[None]*2 for s in range(3)] for m in range(4)]
    for m in range(4):
        for s in range(2):
            for fb in range(2): acc[m][s][fb]=V(f'acc{m}{s}{fb}',4,4)
    for tl in range(2):
        for fb in range(2):
            for mm in range(2): acc[2*tl+mm][2][fb]=V(f'accv{tl}{fb}{mm}',4,4)
    XF=[[V(f'xf{b}{m}',4,4) for m in range(4)] for b in range(2)]
    WF=[[[V(f'wf{b}{s}{fb}',4,4) for fb in range(2)] for s in range(3)] for b in range(2)]
    vxa=[V(f'vxa{j}') for j in range(2)]
    vwa=[V(f'vwa{j}') for j in range(2)]
    vgx=[V(f'vgx{j}') for j in range(4)]
    vgw=V('vgw')
    t=[V(f't{i}') for i in range(6)]
    vst=V('vst')
    sX=8; sW=12; sWS=16
    sWave=20; sMT=21; sHP=22; sBR=23; sM0X=24; sM0W=25; sKX=26; sKW=27; sT=28; sT2=29
    a('s_cmp_ge_u32 s2, 256\ns_cbranch_scc1 K1_END')
    if stamps: stamp_begin(a)
    a('s_and_b32 s3, s2, 7')
    mp=opt.get('map',0)
    if mp==0: a(f's_lshr_b32 s{sBR}, s3, 2')
    else: a(f's_bfe_u32 s{sBR}, s2, 0x10003')
    a(f's_mul_i32 s{sT}, s{sBR}, 24')
    a(f's_add_u32 s4, s0, s{sT}\ns_addc_u32 s5, s1, 0')
    a(f's_load_dwordx4 s[32:35], s[4:5], 0')
    a(f's_load_dwordx2 s[36:37], s[0:1], 64')
    a(f'v_lshrrev_b32 v{t[0]}, 6, v0')
    a(f's_lshr_b32 s{sT}, s2, 3')
    a(f'v_readfirstlane_b32 s{sWave}, v{t[0]}')
    if mp==0:
        a(f's_and_b32 s{sMT}, s{sT}, 3\ns_and_b32 s{sT2}, s3, 1\ns_lshl_b32 s{sT2}, s{sT2}, 2\ns_add_u32 s{sMT}, s{sMT}, s{sT2}')
        a(f's_lshr_b32 s{sHP}, s{sT}, 2\ns_and_b32 s{sT2}, s3, 2\ns_lshl_b32 s{sT2}, s{sT2}, 2\ns_add_u32 s{sHP}, s{sHP}, s{sT2}')
    elif mp==1:
        a(f's_bfe_u32 s{sMT}, s2, 0x20004\ns_and_b32 s{sT2}, s3, 1\ns_lshl_b32 s{sT2}, s{sT2}, 2\ns_add_u32 s{sMT}, s{sMT}, s{sT2}')
        a(f's_lshr_b32 s{sHP}, s2, 6\ns_and_b32 s{sT2}, s3, 6\ns_lshl_b32 s{sT2}, s{sT2}, 1\ns_add_u32 s{sHP}, s{sHP}, s{sT2}')
    elif mp==2:
        a(f's_bfe_u32 s{sMT}, s2, 0x30004')
        a(f's_lshr_b32 s{sHP}, s2, 7\ns_lshl_b32 s{sT2}, s3, 1\ns_add_u32 s{sHP}, s{sHP}, s{sT2}')
    lane=t[1]
    a(f'v_and_b32 v{lane}, 63, v0')
    a(f'v_lshrrev_b32 v{t[2]}, 3, v{lane}')
    a(f'v_and_b32 v{t[3]}, 7, v{lane}')
    a(f'v_lshrrev_b32 v{t[4]}, 4, v{lane}')
    a(f's_lshl_b32 s{sT}, s{sMT}, 8\ns_lshl_b32 s{sT2}, s{sWave}, 5\ns_add_u32 s{sT}, s{sT}, s{sT2}')
    a(f'v_add_u32 v{t[5]}, s{sT}, v{t[2]}')
    a(f'v_lshlrev_b32 v{t[5]}, 11, v{t[5]}')
    a(f'v_xor_b32 v{vgx[0]}, v{t[3]}, v{t[4]}')
    a(f'v_lshl_add_u32 v{vgx[0]}, v{vgx[0]}, 4, v{t[5]}')
    a(f'v_xor_b32 v{vgx[1]}, 64, v{vgx[0]}')
    a(f'v_add_u32 v{vgx[1]}, {8*2048}, v{vgx[1]}')
    a(f'v_add_u32 v{vgx[2]}, {16*2048}, v{vgx[0]}')
    a(f'v_add_u32 v{vgx[3]}, {16*2048}, v{vgx[1]}')
    a(f's_lshl_b32 s{sT}, s{sWave}, 3')
    a(f'v_add_u32 v{t[5]}, s{sT}, v{t[2]}')
    a(f'v_mul_u32_u24 v{t[5]}, 6144, v{t[5]}')
    a(f's_and_b32 s{sT}, s{sWave}, 1\ns_lshl_b32 s{sT}, s{sT}, 2')
    a(f'v_and_b32 v{t[4]}, 1, v{t[4]}\nv_lshl_add_u32 v{t[4]}, v{t[4]}, 1, s{sT}\nv_xor_b32 v{t[4]}, v{t[4]}, v{t[3]}')
    a(f'v_lshl_add_u32 v{vgw}, v{t[4]}, 4, v{t[5]}')
    a(f's_lshl_b32 s{sT}, s{sHP}, 7')
    a(f'v_add_u32 v{vgw}, s{sT}, v{vgw}')
    a(f's_lshr_b32 s{sT}, s{sWave}, 1\ns_mul_i32 s{sM0X}, s{sT}, 24576\ns_and_b32 s{sT}, s{sWave}, 1\ns_lshl_b32 s{sT}, s{sT}, 12\ns_add_u32 s{sM0X}, s{sM0X}, s{sT}')
    a(f's_lshl_b32 s{sM0W}, s{sWave}, 10\ns_add_u32 s{sM0W}, s{sM0W}, {96*1024}')
    a(f's_mov_b32 s{sX+2}, 0x400000\ns_mov_b32 s{sX+3}, 0x20000\ns_mov_b32 s{sW+2}, 0x600000\ns_mov_b32 s{sW+3}, 0x20000')
    a('s_waitcnt lgkmcnt(0)')
    a(f's_mov_b32 s{sX}, s32\ns_mov_b32 s{sX+1}, s33\ns_mov_b32 s{sW}, s34\ns_mov_b32 s{sW+1}, s35')
    aux=opt.get('k1aux','')
    def dmaX(s,j):
        return [f's_add_u32 m0, s{sM0X}, {(s%3)*8192+j*1024}', f's_movk_i32 s{sKX}, {s*128}', f'buffer_load_dwordx4 v{vgx[j]}, {sr(sX,4)}, s{sKX} offen{aux} lds']
    def dmaW(n):
        s,seg=divmod(n,3)
        return [f's_add_u32 m0, s{sM0W}, {(n%8)*8192}', f's_mov_b32 s{sKW}, {s*64*6144+seg*2048}', f'buffer_load_dwordx4 v{vgw}, {sr(sW,4)}, s{sKW} offen{aux} lds']
    for d in [dmaX(0,0),dmaW(0),dmaX(0,1),dmaW(1),dmaX(0,2),dmaW(2),dmaX(0,3)]:
        for x in d: a(x)
    a(f's_and_b32 s{sT}, s{sWave}, 3\ns_mul_i32 s{sT}, s{sT}, 24576')
    a(f'v_and_b32 v{t[2]}, 15, v{lane}')
    a(f'v_lshrrev_b32 v{t[3]}, 4, v{lane}')
    a(f'v_bfe_u32 v{t[4]}, v{lane}, 1, 3')
    a(f'v_xor_b32 v{t[4]}, v{t[4]}, v{t[3]}')
    a(f'v_lshlrev_b32 v{t[4]}, 4, v{t[4]}')
    a(f'v_lshl_add_u32 v{t[4]}, v{t[2]}, 7, v{t[4]}')
    a(f'v_add_u32 v{vxa[0]}, s{sT}, v{t[4]}')
    a(f'v_xor_b32 v{vxa[1]}, 64, v{vxa[0]}')
    a(f'v_lshlrev_b32 v{vst}, 4, v{t[2]}\nv_lshl_add_u32 v{vst}, v{t[3]}, 9, v{vst}')
    a(f'v_bfe_u32 v{t[2]}, v{lane}, 2, 2')
    a(f'v_lshl_add_u32 v{t[4]}, v{t[3]}, 3, v{t[2]}')
    a(f'v_lshlrev_b32 v{t[4]}, 7, v{t[4]}')
    a(f'v_and_b32 v{t[5]}, 3, v{lane}')
    a(f'v_lshl_add_u32 v{t[4]}, v{t[5]}, 3, v{t[4]}')
    a(f'v_lshrrev_b32 v{t[2]}, 1, v{t[2]}')
    a(f'v_lshl_add_u32 v{t[4]}, v{t[2]}, 5, v{t[4]}')
    a(f's_lshr_b32 s{sT}, s{sWave}, 2')
    a(f'v_and_b32 v{t[3]}, 1, v{t[3]}\nv_xor_b32 v{t[3]}, s{sT}, v{t[3]}')
    a(f'v_lshl_add_u32 v{t[4]}, v{t[3]}, 6, v{t[4]}')
    a(f'v_add_u32 v{vwa[0]}, {96*1024}, v{t[4]}')
    a(f'v_xor_b32 v{vwa[1]}, 32, v{vwa[0]}')
    a('s_barrier')
    for d in [dmaX(1,0),dmaW(3),dmaX(1,1),dmaW(4),dmaX(1,2),dmaW(5),dmaX(1,3)]:
        for x in d: a(x)
    cols=[(s,fb) for s in range(3) for fb in range(2)]
    def reads(s,j,b):
        def wr(seg,fb):
            off=((3*s+seg)%8)*8192+j*4096
            return [f'ds_read_b64_tr_b16 {vr(WF[b][seg][fb],2)}, v{vwa[fb]} offset:{off}', f'ds_read_b64_tr_b16 {vr(WF[b][seg][fb]+2,2)}, v{vwa[fb]} offset:{off+512}']
        def xr(m): return [f'ds_read_b128 {vr(XF[b][m],4)}, v{vxa[j]} offset:{(s%3)*8192+m*2048}']
        R=xr(0)
        for c in cols: R+=wr(*c)
        return R+xr(1)+xr(2)+xr(3)
    def mfmas(b, first):
        M=[]
        for m in range(4):
            for seg,fb in (cols if m%2==0 else cols[::-1]):
                A_,B_=(WF[b][seg][fb],XF[b][m]) if seg<2 else (XF[b][m],WF[b][seg][fb])
                d=vr(acc[m][seg][fb],4)
                M.append(f'v_mfma_f32_16x16x32_bf16 {d}, {vr(A_,4)}, {vr(B_,4)}, {"0" if first else d}')
        return M
    a('s_waitcnt vmcnt(7)\ns_barrier')
    if stamps: stamp_mid(a,0)
    for x in reads(0,0,0): a(x)
    pend=[dmaW(6),dmaW(7)]+[dmaX(2,jj) for jj in range(4)]
    rslots=opt.get('k1_rslots',list(range(16)))
    dslots=opt.get('k1_dslots',[[1,5,9],[1,5,9,13]])
    for s in range(16):
        for j in range(2):
            b=j
            if j==1 and s<15:
                assert not pend
                a(f's_waitcnt vmcnt({6 if s<14 else 0}) lgkmcnt(0)\ns_barrier')
                sn=s+1
                if 3*sn+5<48: pend.append(dmaW(3*sn+5))
                if sn+2<16: pend+= [dmaW(3*sn+6),dmaW(3*sn+7)]+[dmaX(sn+2,jj) for jj in range(4)]
            else:
                a('s_waitcnt lgkmcnt(0)')
            if j==0: R=reads(s,1,1)
            elif s<15: R=reads(s+1,0,0)
            else: R=[]
            M=mfmas(b, s==0 and j==0)
            fill=[[] for _ in M]
            for r_,sl in zip(R,rslots): fill[sl].append(r_)
            ds=dslots[j]
            if s==0 and j==0: ds=[2,5,8,11,14,17]
            for sl in ds:
                if pend: fill[sl]+=pend.pop(0)
            for x in interleave(M,fill): a(x)
    assert not pend
    if stamps: stamp_mid(a,1)
    a(f's_add_u32 s{sWS}, s36, {opt.get("wsbase",0)<<20}\ns_addc_u32 s{sWS+1}, s37, 0\ns_mov_b32 s{sWS+2}, 0x2000000\ns_mov_b32 s{sWS+3}, 0x20000')
    a(f's_lshr_b32 s{sT}, s{sWave}, 2\ns_lshl_b32 s{sT2}, s{sHP}, 1\ns_add_u32 s{sT}, s{sT}, s{sT2}\ns_lshl_b32 s{sT2}, s{sBR}, 5\ns_add_u32 s{sT}, s{sT}, s{sT2}')
    a(f's_lshl_b32 s{sT}, s{sT}, 6')
    a(f's_lshl_b32 s{sT2}, s{sMT}, 3\ns_add_u32 s{sT}, s{sT}, s{sT2}\ns_and_b32 s{sT2}, s{sWave}, 3\ns_lshl_b32 s{sT2}, s{sT2}, 1\ns_add_u32 s{sT}, s{sT}, s{sT2}')
    a(f's_lshl_b32 s{sKX}, s{sT}, 11')
    a(f's_lshl_b32 s{sKW}, s{sT}, 12\ns_add_u32 s{sKW}, s{sKW}, {WS_KV}')
    a(f's_add_u32 s{sT2}, s{sKW}, 4096')
    a(f's_mov_b32 s{sT}, {QSCALE}')
    if opt.get('k1skip')=='xcd': a(f's_cmp_eq_u32 s{sBR}, 0\ns_cbranch_scc1 K1_SKIP')
    if opt.get('k1skip')=='half': a(f's_bitcmp1_b32 s2, 3\ns_cbranch_scc1 K1_SKIP')
    staux=opt.get('k1st','')
    def st(c,so,off): a(f'buffer_store_dwordx4 {vr(c,4)}, v{vst}, {sr(sWS,4)}, s{so} offen offset:{off}{staux}')
    def pack(c):
        for i in range(4): a(f'v_cvt_pk_bf16_f32 v{c+i}, v{c+2*i}, v{c+2*i+1}')
    for tl in range(2):
        so=sKW if tl==0 else sT2
        for mm in range(2):
            c=acc[2*tl+mm][1][0]; pack(c); st(c,so,mm*256)
        for fb in range(2):
            c=acc[2*tl][2][fb]; pack(c); st(c,so,2048+fb*256)
        for mm in range(2):
            c=acc[2*tl+mm][0][0]
            for i in range(8): a(f'v_mul_f32 v{c+i}, s{sT}, v{c+i}')
            pack(c); st(c,sKX,tl*2048+mm*256)
    a('K1_SKIP:')
    if stamps: stamp_end(a,0,36,XF[0][0])
    a('K1_END:\ns_endpgm')
    return kernel_header(name)+a.text(), V.n
```

```python
from asm import *
from k1 import WS_QF, WS_KV, WS_OF, stamp_begin, stamp_mid, stamp_end
import struct
def f2u(x): return struct.unpack('<I',struct.pack('<f',x))[0]
OFFS=88.0
def gen_k2(name='attn_kernel', stamps=False, opt={}):
    a=Asm()
    V=Alloc(1)
    Q=[V(f'q{i}',8,4) for i in range(2)]
    NM=[V(f'nm{i}',16,4) for i in range(2)]
    O=[V(f'o{i}',16,4) for i in range(2)]
    L=[V(f'l{i}',4,4) for i in range(2)]
    S=[V(f's{i}',16,4) for i in range(2)]
    KF=[V(f'k{i}',8,4) for i in range(2)]
    VF=[V(f'v{i}',8,4) for i in range(2)]
    SEL=V('sel',4,4)
    QA=V('qa',8,4)
    XM=V('xm',16,4)
    vidx=V('idx'); vka=V('vka'); vva=V('vva'); vl16=V('vl16'); vst=V('vst'); vxw=V('vxw'); vxr=V('vxr'); vfl=V('vfl')
    t=[V(f't{i}') for i in range(8)]
    sWS=8
    sWave=20; sHead=21; sQC=22; sT=23; sT2=24; sM0=25; sKV=26; sExact=27; sKVA=28; sM0A=29; sO=30; sJQ=31; sCnt=32; sKVx=33; sOffs=34; sQoff=35
    P='K2_'
    a(f's_cmp_ge_u32 s2, 256\ns_cbranch_scc1 {P}END')
    if stamps: stamp_begin(a)
    a('s_load_dwordx2 s[36:37], s[0:1], 64')
    a(f'v_lshrrev_b32 v{t[0]}, 6, v0')
    a(f's_and_b32 s{sHead}, s2, 7\ns_lshl_b32 s{sHead}, s{sHead}, 2')
    a(f'v_readfirstlane_b32 s{sWave}, v{t[0]}')
    a(f's_lshr_b32 s{sT}, s2, 3\ns_and_b32 s{sT}, s{sT}, 3\ns_add_u32 s{sHead}, s{sHead}, s{sT}\ns_lshr_b32 s{sQC}, s2, 5')
    lane=t[1]
    a(f'v_and_b32 v{lane}, 63, v0\nv_lshlrev_b32 v{vl16}, 4, v{lane}')
    a(f's_lshr_b32 s{sT}, s{sWave}, 2\ns_and_b32 s{sT2}, s{sWave}, 3')
    a(f's_mul_i32 s{sM0}, s{sT}, 49152\ns_lshl_b32 s{sKV}, s{sT2}, 12\ns_add_u32 s{sM0}, s{sM0}, s{sKV}')
    a(f's_lshl_b32 s{sKVx}, s{sT}, 17\ns_lshl_b32 s{sT}, s{sHead}, 18\ns_add_u32 s{sKVx}, s{sKVx}, s{sT}\ns_add_u32 s{sKVx}, s{sKVx}, {WS_KV+(32<<18)}')
    a(f's_add_u32 s{sKV}, s{sKV}, s{sKVx}')
    a(f's_lshl_b32 s{sQoff}, s{sHead}, 6\ns_lshl_b32 s{sT}, s{sQC}, 3\ns_add_u32 s{sQoff}, s{sQoff}, s{sT}')
    a(f's_lshl_b32 s{sT}, s{sT2}, 1\ns_add_u32 s{sT}, s{sT}, s{sQoff}\ns_lshl_b32 s{sT}, s{sT}, 11\ns_add_u32 s{sT}, s{sT}, {WS_QF+(32<<17)}')
    a(f's_mov_b32 s{sWS+2}, 0x2000000\ns_mov_b32 s{sWS+3}, 0x20000\ns_mov_b32 s{sExact}, 0')
    a('s_waitcnt lgkmcnt(0)')
    a(f's_add_u32 s{sWS}, s36, {opt.get("wsbase",0)<<20}\ns_addc_u32 s{sWS+1}, s37, 0')
    if stamps and opt.get('k2pro'): stamp_mid(a,1)
    for qb in range(2):
        for c in range(2):
            a(f'buffer_load_dwordx4 {vr(Q[qb]+4*c,4)}, v{vl16}, {sr(sWS,4)}, s{sT} offen offset:{qb*2048+c*1024}')
    def dmaB(s):
        return [[f's_add_u32 m0, s{sM0}, {(s%3)*16384}', f's_add_u32 s{sT}, s{sKV}, {s*16384}', f'buffer_load_dwordx4 v{vl16}, {sr(sWS,4)}, s{sT} offen lds']]+[[f'buffer_load_dwordx4 v{vl16}, {sr(sWS,4)}, s{sT} offen offset:{c*1024} lds'] for c in range(1,4)]
    def dmaA(i):
        return [[f's_add_u32 m0, s{sM0A}, {i*32768}', f's_add_u32 s{sT}, s{sKVA}, {i*32768}', f'buffer_load_dwordx4 v{vl16}, {sr(sWS,4)}, s{sT} offen lds']]+[[f'buffer_load_dwordx4 v{vl16}, {sr(sWS,4)}, s{sT} offen offset:{c*1024} lds'] for c in range(1,4)]
    a(f'{P}BSTART:')
    for s in (0,1):
        for d in dmaB(s):
            for x in d: a(x)
    a(f'v_mov_b32 v{vidx}, 0xdddddddd')
    a(f'v_bfe_u32 v{t[2]}, v{lane}, 2, 1\nv_mul_u32_u24 v{t[2]}, 0x3f80, v{t[2]}\nv_lshl_or_b32 v{SEL+2}, v{t[2]}, 16, v{t[2]}')
    a(f'v_mov_b32 v{SEL+3}, v{SEL+2}\nv_xor_b32 v{SEL}, 0x3f803f80, v{SEL+2}\nv_xor_b32 v{SEL+1}, 0x3f803f80, v{SEL+2}')
    a(f'v_bfe_u32 v{t[2]}, v{lane}, 3, 2\nv_and_b32 v{t[3]}, 35, v{lane}\nv_lshl_add_u32 v{t[3]}, v{t[2]}, 2, v{t[3]}\nv_bfe_u32 v{t[2]}, v{lane}, 2, 1\nv_lshl_add_u32 v{t[3]}, v{t[2]}, 4, v{t[3]}')
    a(f's_lshr_b32 s{sT}, s{sWave}, 2\ns_mul_i32 s{sT}, s{sT}, 49152')
    a(f'v_lshl_add_u32 v{vka}, v{t[3]}, 4, s{sT}\nv_add_u32 v{vva}, s{sT}, v{vl16}')
    for qb in range(2):
        for i in range(16): a(f'v_mov_b32 v{O[qb]+i}, 0')
        for i in range(4): a(f'v_mov_b32 v{L[qb]+i}, 0')
    a(f's_add_u32 s{sT}, s{sQoff}, s{sWave}\ns_lshl_b32 s{sKVA}, s{sT}, 12\ns_add_u32 s{sKVA}, s{sKVA}, {WS_KV-8*4096}')
    a(f's_lshl_b32 s{sM0A}, s{sWave}, 12\ns_add_u32 s{sM0A}, s{sM0A}, {96*1024}')
    if stamps and opt.get('k2pro'):
        stamp_mid(a,2); a('s_waitcnt vmcnt(8)'); stamp_mid(a,3)
    a('s_waitcnt vmcnt(4)\ns_barrier')
    if stamps: stamp_mid(a,0)
    def rdK(buf,T,addr=None):
        off=((T//4)%3)*16384+(T%4)*4096
        return [f'ds_read_b128 {vr(KF[buf]+4*c,4)}, v{vka} offset:{off+c*1024}' for c in range(2)]
    def rdV(buf,T):
        off=((T//4)%3)*16384+(T%4)*4096+2048
        return [f'ds_read_b128 {vr(VF[buf]+4*c,4)}, v{vva} offset:{off+c*1024}' for c in range(2)]
    def QK(sb,kb,q,c):
        return [f'v_mfma_f32_32x32x16_bf16 {vr(sb,16)}, {vr(kb,4)}, {vr(q,4)}, {c}', f'v_mfma_f32_32x32x16_bf16 {vr(sb,16)}, {vr(kb+4,4)}, {vr(q+4,4)}, {vr(sb,16)}']
    def maxtree(dst, sb, first):
        o=[]
        if first:
            o.append(f'v_max3_f32 v{dst}, v{sb}, v{sb+1}, v{sb+2}')
            for i in range(3,15,2): o.append(f'v_max3_f32 v{dst}, v{dst}, v{sb+i}, v{sb+i+1}')
            o.append(f'v_max_f32 v{dst}, v{dst}, v{sb+15}')
        else:
            for i in range(0,16,2): o.append(f'v_max3_f32 v{dst}, v{dst}, v{sb+i}, v{sb+i+1}')
        return o
    def finish_max(mx, tmp, nm, soffs):
        a(f'v_mov_b32 v{tmp}, v{mx}\ns_nop 1\nv_permlane32_swap_b32 v{tmp}, v{mx}\ns_nop 1\nv_max_f32 v{mx}, v{mx}, v{tmp}')
        a(f'v_sub_f32 v{nm}, s{soffs}, v{mx}')
        for i in range(1,16): a(f'v_mov_b32 v{nm+i}, v{nm}')
    for x in rdK(0,0)+rdK(1,1)+rdV(0,0): a(x)
    for d in dmaB(2):
        for x in d: a(x)
    a(f's_cmp_lg_u32 s{sExact}, 0\ns_cbranch_scc1 {P}BMAIN')
    a(f's_mov_b32 s{sOffs}, {f2u(-OFFS)}')
    a('s_waitcnt lgkmcnt(4)')
    for x in QK(S[0],KF[0],Q[0],'0')+QK(S[1],KF[0],Q[1],'0'): a(x)
    a('s_waitcnt lgkmcnt(2)')
    for x in QK(NM[0],KF[1],Q[0],'0')+QK(NM[1],KF[1],Q[1],'0'): a(x)
    a('s_nop 7')
    for x in maxtree(t[4],S[0],True)+maxtree(t[5],S[1],True)+maxtree(t[4],NM[0],False)+maxtree(t[5],NM[1],False): a(x)
    finish_max(t[4],t[2],NM[0],sOffs); finish_max(t[5],t[2],NM[1],sOffs)
    a(f'{P}BMAIN:')
    a('s_waitcnt lgkmcnt(0)\ns_nop 0')
    for x in QK(S[0],KF[0],Q[0],vr(NM[0],16)): a(x)
    a('s_nop 11')
    def PV(o,vb,sb,c): return f'v_smfmac_f32_32x32x32_bf16 {vr(o,16)}, {vr(vb+4*c,4)}, {vr(sb+8*c,8)}, v{vidx}'
    def SM(l,sb,c): return f'v_smfmac_f32_16x16x64_bf16 {vr(l,4)}, {vr(SEL,4)}, {vr(sb+8*c,8)}, v{vidx}'
    def slot(sc, prev, nxt, cur, F):
        E=[f'v_exp_f32 v{sc+i}, v{sc+i}' for i in range(16)]
        g=lambda k: F.get(k,[])
        seq=E[0:2]
        if prev: seq+=[prev[0]]+g('S1')+E[2:3]+[prev[1]]+g('P1')
        else: seq+=g('S1')+E[2:3]+g('P1')
        seq+=E[3:6]
        if nxt: seq+=[nxt[0]]+g('Q0')+E[6:9]+[nxt[1]]+g('Q1')
        else: seq+=g('Q0')+E[6:9]+g('Q1')
        seq+=E[9:12]+[cur[0]]+g('S0')+E[12:13]+[cur[1]]+g('P0')+E[13:16]
        for x in seq: a(x)
    NT=32
    pend=[]
    for T in range(NT):
        kb=T&1
        for qb in range(2):
            F={}
            if qb==0:
                prev=(SM(L[1],S[1],1),PV(O[1],VF[kb^1],S[1],1)) if T>0 else None
                nxt=QK(S[1],KF[kb],Q[1],vr(NM[1],16))
                R=rdK(kb^1,T+1) if (T+1<NT and T>0) else []
                if T%4==3 and T+1<NT:
                    s=T//4+1
                    F['S1']=['s_waitcnt vmcnt(4) lgkmcnt(0)','s_barrier']
                    if s+2<8: pend=dmaB(s+2)
                    else: pend=dmaA(s-6)
            else:
                prev=(SM(L[0],S[0],1),PV(O[0],VF[kb],S[0],1))
                nxt=QK(S[0],KF[kb^1],Q[0],vr(NM[0],16)) if T+1<NT else None
                R=rdV(kb^1,T+1) if T+1<NT else []
            F.setdefault('S1',['s_waitcnt lgkmcnt(0)'])
            F['P1']=R[0:1]; F['Q0']=R[1:2]
            F['Q1']=['s_nop 0']; F['S0']=['s_nop 0']; F['P0']=['s_nop 0']
            if pend:
                d=pend.pop(0)
                if len(d)==3: F['Q1']=d[0:1]; F['S0']=d[1:2]
                F['P0']=d[-1:]
            slot(S[qb],prev,nxt,(SM(L[qb],S[qb],0),PV(O[qb],VF[kb],S[qb],0)),F)
    assert not pend
    a('s_nop 1')
    a(SM(L[1],S[1],1)); a(PV(O[1],VF[1],S[1],1))
    if stamps and not opt.get('k2pro'): stamp_mid(a,1)
    a(f's_add_u32 s{sT}, s{sQoff}, s{sWave}\ns_lshl_b32 s{sT}, s{sT}, 11')
    for c in range(2): a(f'buffer_load_dwordx4 {vr(QA+4*c,4)}, v{vl16}, {sr(sWS,4)}, s{sT} offen offset:{WS_QF+c*1024}')
    a(f'v_add_u32 v{vxw}, s{sM0}, v{vl16}')
    a(f's_lshr_b32 s{sT}, s{sWave}, 2\ns_xor_b32 s{sT}, s{sT}, 1\ns_mul_i32 s{sT}, s{sT}, 49152\ns_and_b32 s{sT2}, s{sWave}, 3\ns_lshl_b32 s{sT2}, s{sT2}, 12\ns_add_u32 s{sT}, s{sT}, s{sT2}')
    a(f'v_add_u32 v{vxr}, s{sT}, v{vl16}')
    a(f'v_bfe_u32 v{t[2]}, v{lane}, 2, 1\nv_mul_u32_u24 v{t[2]}, 49152, v{t[2]}\nv_and_b32 v{t[3]}, 3, v{lane}\nv_lshl_add_u32 v{vfl}, v{t[3]}, 12, v{t[2]}')
    a(f'v_bfe_u32 v{t[2]}, v{lane}, 4, 1\nv_lshrrev_b32 v{t[3]}, 5, v{lane}\nv_and_b32 v{vst}, 15, v{lane}\nv_lshlrev_b32 v{vst}, 4, v{vst}\nv_lshl_add_u32 v{vst}, v{t[2]}, 10, v{vst}\nv_lshl_add_u32 v{vst}, v{t[3]}, 8, v{vst}')
    def check(o,l,tmp,first):
        a(f'v_add_f32 v{tmp}, abs(v{o}), abs(v{o+1})')
        for i in range(2,16): a(f'v_add_f32 v{tmp}, abs(v{o+i}), v{tmp}')
        a(f'v_cmp_lt_f32 s[42:43], s44, v{tmp}\nv_cmp_gt_f32 s[46:47], s45, v{tmp}\nv_cmp_gt_f32 vcc, s48, v{l}')
        a('s_and_b64 s[42:43], s[42:43], s[46:47]\ns_and_b64 s[42:43], s[42:43], vcc')
        a('s_mov_b64 s[40:41], s[42:43]' if first else 's_and_b64 s[40:41], s[40:41], s[42:43]')
    a(f's_mov_b32 s44, {f2u(2.0**-104)}\ns_mov_b32 s45, 0x7f800000\ns_mov_b32 s48, {f2u(2.0**120)}')
    check(O[0],L[0],t[2],True); check(O[1],L[1],t[2],False)
    a(f's_cmp_eq_u64 s[40:41], -1\ns_cselect_b32 s{sT}, 0, 1\nv_mov_b32 v{t[7]}, s{sT}')
    for qb in range(2):
        a(f'v_rcp_f32 v{t[2]}, v{L[qb]}\nv_log_f32 v{L[qb]+1}, v{L[qb]}')
        for i in range(16): a(f'v_mul_f32 v{O[qb]+i}, v{t[2]}, v{O[qb]+i}')
        a(f'v_sub_f32 v{L[qb]}, v{L[qb]+1}, v{NM[qb]}')
    a(f's_cmp_ge_u32 s{sWave}, 4\ns_cbranch_scc1 {P}X1')
    for i in range(4): a(f'ds_write_b128 v{vxw}, {vr(O[1]+4*i,4)} offset:{i*1024}')
    a(f'v_mov_b32 v{t[6]}, v{L[1]}')
    a(f's_branch {P}X2\n{P}X1:')
    for i in range(4): a(f'ds_write_b128 v{vxw}, {vr(O[0]+4*i,4)} offset:{i*1024}')
    a(f'v_mov_b32 v{t[6]}, v{L[0]}\nv_mov_b32 v{L[0]}, v{L[1]}')
    a('s_waitcnt lgkmcnt(0)')
    for i in range(16): a(f'v_mov_b32 v{O[0]+i}, v{O[1]+i}')
    a(f'{P}X2:')
    assert t[6]%2==0 and t[7]==t[6]+1
    a(f'ds_write_b64 v{vxw}, {vr(t[6],2)} offset:32768')
    a('s_waitcnt vmcnt(2) lgkmcnt(0)\ns_barrier')
    a(f'ds_read_b32 v{t[2]}, v{vxr} offset:32768\nds_read_b32 v{t[3]}, v{vfl} offset:32772')
    for i in range(4): a(f'ds_read_b128 {vr(O[1]+4*i,4)}, v{vxr} offset:{i*1024}')
    a(f's_lshl_b32 s{sO}, s{sQC}, 3\ns_and_b32 s{sT}, s{sWave}, 3\ns_lshl_b32 s{sT}, s{sT}, 1\ns_add_u32 s{sO}, s{sO}, s{sT}\ns_lshr_b32 s{sT}, s{sWave}, 2\ns_add_u32 s{sO}, s{sO}, s{sT}')
    a(f's_lshl_b32 s{sO}, s{sO}, 5\ns_add_u32 s{sO}, s{sO}, s{sHead}\ns_lshl_b32 s{sO}, s{sO}, 11\ns_add_u32 s{sO}, s{sO}, {WS_OF+(64<<16)}')
    a('s_waitcnt lgkmcnt(4)')
    a(f'v_cmp_ne_u32 vcc, 0, v{t[3]}')
    a(f'v_max_f32 v{t[4]}, v{t[2]}, v{L[0]}\nv_sub_f32 v{t[2]}, v{t[2]}, v{t[4]}\nv_sub_f32 v{t[4]}, v{L[0]}, v{t[4]}')
    a(f's_cmp_lg_u64 vcc, 0\ns_cselect_b32 s{sT}, 1, 0\ns_cmp_gt_u32 s{sT}, s{sExact}\ns_cbranch_scc1 {P}BFALL')
    a(f'v_exp_f32 v{t[2]}, v{t[2]}\nv_exp_f32 v{t[4]}, v{t[4]}\ns_nop 0\nv_add_f32 v{t[5]}, v{t[2]}, v{t[4]}\nv_rcp_f32 v{t[5]}, v{t[5]}\ns_nop 0\nv_mul_f32 v{t[2]}, v{t[2]}, v{t[5]}\nv_mul_f32 v{t[4]}, v{t[4]}, v{t[5]}')
    for i in range(16): a(f'v_mul_f32 v{O[0]+i}, v{t[4]}, v{O[0]+i}')
    a('s_waitcnt lgkmcnt(0)')
    for i in range(16): a(f'v_fmac_f32 v{O[0]+i}, v{t[2]}, v{O[1]+i}')
    ost=opt.get('k2st','')
    def storeO(o,dst):
        for i in range(8): a(f'v_cvt_pk_bf16_f32 v{dst+i}, v{o+2*i}, v{o+2*i+1}')
        for c in range(2): a(f'buffer_store_dwordx4 {vr(dst+4*c,4)}, v{vst}, {sr(sWS,4)}, s{sO} offen offset:{c*512}{ost}')
    storeO(O[0],Q[0])
    if stamps and not opt.get('k2pro'): stamp_mid(a,2)
    a(f's_lshl_b32 s{sJQ}, s{sQC}, 3\ns_add_u32 s{sJQ}, s{sJQ}, s{sWave}')
    a(f's_lshr_b32 s{sT}, s{sWave}, 2\ns_mul_i32 s{sT}, s{sT}, 49152\ns_sub_u32 s{sT}, s{sM0A}, s{sT}')
    a(f'v_add_u32 v{vka}, s{sT}, v{vka}\nv_add_u32 v{vva}, s{sT}, v{vva}')
    def rdKA(buf,tt): return [f'ds_read_b128 {vr(KF[buf]+4*c,4)}, v{vka} offset:{(8-tt)*4096+c*1024}' for c in range(2)]
    def rdVA(buf,tt): return [f'ds_read_b128 {vr(VF[buf]+4*c,4)}, v{vva} offset:{(8-tt)*4096+2048+c*1024}' for c in range(2)]
    a(f'v_and_b32 v{t[2]}, 31, v{lane}\nv_lshrrev_b32 v{t[3]}, 5, v{lane}\nv_lshlrev_b32 v{t[3]}, 4, v{t[3]}\nv_sub_u32 v{t[2]}, v{t[2]}, v{t[3]}\nv_cvt_f32_i32 v{t[2]}, v{t[2]}')
    a(f'v_mul_f32 v{t[2]}, {f2u(2.0**100)}, v{t[2]}')
    for r in range(16): a(f'v_add_f32 v{XM+r}, {f2u((0.5-r)*2.0**100)}, v{t[2]}')
    a(f's_lshl_b32 s{sO}, s{sJQ}, 5\ns_add_u32 s{sO}, s{sO}, s{sHead}\ns_lshl_b32 s{sO}, s{sO}, 11\ns_add_u32 s{sO}, s{sO}, {WS_OF}')
    a(f's_mov_b32 s{sExact}, 0\ns_mov_b32 s{sOffs}, {f2u(-OFFS)}\ns_min_u32 s{sCnt}, s{sJQ}, 1')
    CD=NM[1]; NA=NM[0]; OA=O[1]; LA=L[1]
    a(f'{P}AMAX:')
    for x in rdKA(0,0): a(x)
    for r in range(16): a(f'v_min_f32 v{CD+r}, 0, v{XM+r}')
    a(f'v_mov_b32 v{t[5]}, v{vka}')
    a('s_waitcnt vmcnt(2) lgkmcnt(0)')
    for x in QK(S[0],KF[0],QA,vr(CD,16)): a(x)
    a('s_nop 11')
    for x in maxtree(t[4],S[0],True): a(x)
    a(f's_mov_b32 s{sT2}, 0')
    a(f'{P}AMAXL:')
    a(f's_cmp_ge_u32 s{sT2}, s{sCnt}\ns_cbranch_scc1 {P}AMAXD')
    for c in range(2): a(f'ds_read_b128 {vr(KF[1]+4*c,4)}, v{t[5]} offset:{7*4096+c*1024}')
    a(f's_add_u32 s{sT2}, s{sT2}, 1\nv_subrev_u32 v{t[5]}, 4096, v{t[5]}')
    a('s_waitcnt lgkmcnt(0)')
    for x in QK(S[1],KF[1],QA,'0'): a(x)
    a('s_nop 11')
    a(f's_cmp_lg_u32 s{sT2}, 8\ns_cbranch_scc1 {P}AMAXN')
    for r in range(16): a(f'v_min_f32 v{S[1]+r}, v{S[1]+r}, -v{XM+r}')
    a(f'{P}AMAXN:')
    for x in maxtree(t[4],S[1],False): a(x)
    a(f's_branch {P}AMAXL')
    a(f'{P}AMAXD:')
    for x in rdKA(1,1)+rdVA(0,0): a(x)
    finish_max(t[4],t[2],NA,sOffs)
    for r in range(16): a(f'v_min_f32 v{CD+r}, v{NA}, v{XM+r}')
    for i in range(16): a(f'v_mov_b32 v{OA+i}, 0')
    for i in range(4): a(f'v_mov_b32 v{LA+i}, 0')
    for x in QK(S[0],KF[0],QA,vr(CD,16)): a(x)
    a('s_nop 11')
    stubs=[]
    for tt in range(9):
        b=tt&1
        F={}
        prev=(SM(LA,S[b^1],1),PV(OA,VF[b^1],S[b^1],1)) if tt>0 else None
        nxt=None
        if tt<8:
            F['S1']=[f's_cmp_eq_u32 s{sJQ}, {tt}', f's_cbranch_scc1 {P}APOI{tt}', f'{P}ARET{tt}:']
            stubs.append(tt)
            F['P1']=['s_waitcnt lgkmcnt(0)']
            if tt==7:
                F['P1']+=[f'v_min_f32 v{CD+r}, v{NA}, -v{XM+r}' for r in range(16)]
            nxt=QK(S[b^1],KF[b^1],QA,vr(CD if tt==7 else NA,16))
            RV=rdVA(b^1,tt+1); RK=rdKA(b,tt+2) if tt+2<=8 else ['s_nop 0','s_nop 0']
            F['Q0']=RV[0:1]; F['Q1']=RV[1:2]; F['S0']=RK[0:1]; F['P0']=RK[1:2]
        else:
            F['P1']=['s_waitcnt lgkmcnt(0)']
        slot(S[b],prev,nxt,(SM(LA,S[b],0),PV(OA,VF[b],S[b],0)),F)
    a('s_nop 1')
    a(SM(LA,S[0],1)); a(PV(OA,VF[0],S[0],1))
    a('s_nop 11')
    check(OA,LA,t[2],True)
    a(f'v_rcp_f32 v{t[2]}, v{LA}')
    a(f's_cmp_eq_u64 s[40:41], -1\ns_cselect_b32 s{sT}, 0, 1\ns_cmp_gt_u32 s{sT}, s{sExact}\ns_cbranch_scc1 {P}AFALL')
    for i in range(16): a(f'v_mul_f32 v{OA+i}, v{t[2]}, v{OA+i}')
    storeO(OA,Q[1])
    if stamps: stamp_end(a,1,36,S[0])
    a(f'{P}END:\ns_endpgm')
    for tt in stubs:
        a(f'{P}APOI{tt}:\ns_nop 7')
        for r in range(16): a(f'v_mov_b32 v{NA+r}, {f2u(-2.0**120)}')
        a(f's_branch {P}ARET{tt}')
    a(f'{P}AFALL:')
    a(f's_mov_b32 s{sExact}, 1\ns_mov_b32 s{sOffs}, 0\ns_min_u32 s{sCnt}, s{sJQ}, 8\ns_branch {P}AMAX')
    a(f'{P}BFALL:')
    a('s_waitcnt vmcnt(0) lgkmcnt(0)\ns_barrier')
    a(f's_mov_b32 s{sExact}, 1\ns_mov_b32 s{sOffs}, 0\ns_mov_b32 s{sCnt}, 0')
    a(f'v_mov_b32 v{t[4]}, 0xff800000\nv_mov_b32 v{t[5]}, 0xff800000')
    a(f'{P}BFL:')
    a(f's_lshl_b32 s{sT}, s{sCnt}, 12\ns_add_u32 s{sT}, s{sT}, s{sKVx}')
    for c in range(2): a(f'buffer_load_dwordx4 {vr(KF[0]+4*c,4)}, v{vl16}, {sr(sWS,4)}, s{sT} offen offset:{c*1024}')
    a('s_waitcnt vmcnt(0)')
    for x in QK(S[0],KF[0],Q[0],'0')+QK(S[1],KF[0],Q[1],'0'): a(x)
    a('s_nop 11')
    for x in maxtree(t[4],S[0],False)+maxtree(t[5],S[1],False): a(x)
    a(f's_add_u32 s{sCnt}, s{sCnt}, 1\ns_cmp_lt_u32 s{sCnt}, 32\ns_cbranch_scc1 {P}BFL')
    finish_max(t[4],t[2],NM[0],sOffs); finish_max(t[5],t[2],NM[1],sOffs)
    a(f's_branch {P}BSTART')
    return kernel_header(name)+a.text(), V.n, 163840
```

```python
from asm import *
from k1 import WS_STAMP
def gen_amp(name, k_from, c_from, op_from, k_to, c_to, op_to, mult):
    a=Asm()
    a('s_cmp_ge_u32 s2, 1\ns_cbranch_scc1 AMP_END')
    a('s_load_dwordx2 s[4:5], s[0:1], 64\nv_lshlrev_b32 v1, 5, v0\ns_waitcnt lgkmcnt(0)')
    for idx,(k,c) in enumerate(((k_from,c_from),(k_to,c_to))):
        for j in range(4):
            a(f'v_add_u32 v2, {WS_STAMP+k*65536+j*2048+c*4}, v1\nglobal_load_dword v{4+idx*4+j}, v2, s[4:5] sc0 sc1')
    a('s_waitcnt vmcnt(0)')
    for idx,op in enumerate((op_from,op_to)):
        b=4+idx*4
        for j in range(1,4): a(f'v_{op}_u32 v{b}, v{b}, v{b+j}')
        a('s_nop 1')
        a(f'v_readlane_b32 s{10+idx}, v{b}, 0')
        for l in range(1,64): a(f'v_readlane_b32 s12, v{b}, {l}\ns_nop 0\ns_{op}_u32 s{10+idx}, s{10+idx}, s12')
    if op_to=='add':
        a('s_lshr_b32 s10, s11, 9\ns_min_u32 s10, s10, 100000')
    else:
        a(f's_sub_u32 s10, s11, s10\ns_min_u32 s10, s10, 20000\ns_mul_i32 s10, s10, {mult}')
    a('s_memrealtime s[14:15]\ns_waitcnt lgkmcnt(0)')
    a('AMP_L:\ns_memrealtime s[16:17]\ns_waitcnt lgkmcnt(0)\ns_sub_u32 s16, s16, s14\ns_cmp_lt_u32 s16, s10\ns_cbranch_scc1 AMP_L')
    a('AMP_END:\ns_endpgm')
    return kernel_header(name)+a.text(), 16
def add_amp(src, *args):
    t,nv=gen_amp('amp_kernel',*args)
    i=src.index('.amdgcn_target'); j=src.index('.section .rodata')
    return src[:i]+'; @launch kernel=amp_kernel grid=(1,1,1) block=(64,1,1) lds=0\n'+src[i:j]+t+src[j:]+'.p2align 6\n'+kernel_desc('amp_kernel',nv)
if __name__=='__main__':
    import build, sys, json
    opt=json.loads(sys.argv[1]) if len(sys.argv)>1 else {}
    base=build.build(True,opt,('k1','k2','k3'))
    cfg={'a0':(0,0,'min',0,0,'min',0),
         'a1':(0,0,'min',2,1,'max',10),
         'a2':(0,0,'min',0,1,'max',10),
         'a3':(0,0,'min',1,0,'min',10),
         'a4':(0,0,'min',1,1,'max',10),
         'a5':(0,0,'min',2,0,'min',10),
         'b0':(0,0,'min',0,3,'add',0),'b1':(0,0,'min',0,4,'add',0),'b2':(0,0,'min',0,2,'add',0),
         'b3':(0,0,'min',1,3,'add',0),'b4':(0,0,'min',1,2,'add',0),
         'b5':(0,0,'min',2,3,'add',0),'b6':(0,0,'min',2,4,'add',0),'b7':(0,0,'min',2,2,'add',0),
         'b8':(0,0,'min',0,0,'max',10)}
    for n,c in cfg.items(): open(f'exp/{n}.s','w').write(add_amp(base,*c))
```

```python
from asm import *
from fz import *
def attention_and_out(a,tail,opt,TR,stamps,U):
    lab,emit,if_young_skip,if_old_skip=U['lab'],U['emit'],U['if_young_skip'],U['if_old_skip']
    flag_load,flag_check,flag_post,held,sF1=U['flag_load'],U['flag_check'],U['flag_post'],U['held'],U['sF1']
    V=Alloc(8)
    vka=[V(f'vka{i}') for i in range(3)]; vva=[V(f'vva{i}') for i in range(3)]
    vpoll=V('vpoll',2,2); vkp=V('vkp'); vidx=V('idx'); vos=V('vos'); vkA=vka[0]; vvA=vva[0]
    vgw=[V('vgw0'),V('vgw1')]; vwt=V('vwt')
    t=[V(f't{i}',1,2 if i==0 else 1) for i in range(5)]
    assert V.n<=vdum
    Q=[V(f'q{i}',8,4) for i in range(2)]
    NM=[V(f'nm{i}',16,4) for i in range(2)]
    O=[V(f'o{i}',16,4) for i in range(2)]
    L=[V(f'l{i}',4,4) for i in range(2)]
    S=[V(f's{i}',16,4) for i in range(2)]
    KF=[V(f'k{i}',8,4) for i in range(2)]
    VF=[V(f'v{i}',8,4) for i in range(2)]
    SEL=V('sel',4,4); QA=V('qa',8,4); XM=V('xm',16,4)
    assert V.n<=H, V.n
    sKVB=sA; sKVA=sA+1; sM8=sA+2; sFB=sA+3; sFA=sA+4; sMsk=sA+5; sJQ=sA+6; sQB=sA+7
    sO=sA+14; sF2=sA+15; sPi=sA+16; sOffs=sA+17; sCnt=sA+18; sAll=sA+19; sMskA=sA+20
    sOb=sA+21; sFO=sA+22; sME=sA+23; sML=sA+24; sWb=sA+25; sM4=sA+26; sC0=sA+27; sC1=sA+28; sC2=sA+29; sN=sA+30; sMa=sA+31; sMb=sA+32; sSp=sA+33
    OSL=[65536,98304,131072,0,32768]
    def common_init():
        a(f'v_mov_b32 v{vidx}, 0xdddddddd')
        a(f'v_bfe_u32 v{t[2]}, v{lane}, 2, 1\nv_mul_u32_u24 v{t[3]}, 0x3f80, v{t[2]}\nv_lshl_or_b32 v{SEL+2}, v{t[3]}, 16, v{t[3]}')
        a(f'v_mov_b32 v{SEL+3}, v{SEL+2}\nv_xor_b32 v{SEL}, 0x3f803f80, v{SEL+2}\nv_xor_b32 v{SEL+1}, 0x3f803f80, v{SEL+2}')
        a(f'v_bfe_u32 v{t[3]}, v{lane}, 3, 2\nv_and_b32 v{t[4]}, 35, v{lane}\nv_lshl_add_u32 v{t[4]}, v{t[3]}, 2, v{t[4]}\nv_lshl_add_u32 v{t[4]}, v{t[2]}, 4, v{t[4]}\nv_lshlrev_b32 v{vkp}, 4, v{t[4]}')
        a(f's_lshl_b32 s{sM8}, s{sW3}, 13\ns_lshl_b32 s{sT}, s{sHD}, 18\ns_add_u32 s{sKVA}, s{sT}, {WS_KV}\ns_add_u32 s{sKVB}, s{sT}, {WS_KV+(32<<18)}')
        a(f's_lshl_b32 s{sT}, s{sHD}, 12\ns_add_u32 s{sFA}, s{sT}, {WS_FL}\ns_add_u32 s{sFB}, s{sT}, {WS_FL+32*4096}')
        a(f's_lshr_b32 s{sT}, s{sMT}, 2\ns_lshl_b32 s{sT}, s{sT}, 4\ns_lshl_b32 s{sMsk}, 0xffff, s{sT}\ns_not_b32 s{sAll}, s{sMsk}')
        a(f's_and_b32 s{sT}, s{sHD}, 1\ns_lshl_b32 s{sT}, s{sT}, 4\ns_add_u32 s{sPi}, s{sT}, s{sHP}')
        a(f's_lshl_b32 s{sME}, 0xffff, s{sT}\ns_not_b32 s{sML}, s{sME}')
        a(f's_mov_b32 s{sC0}, {f2u(2.0**-102)}\ns_mov_b32 s{sC1}, 0x7f800000\ns_mov_b32 s{sC2}, {f2u(2.0**120)}\ns_mov_b32 s{sOffs}, {f2u(-OFFS)}')
    def late_init():
        a(f'v_bfe_u32 v{t[2]}, v{lane}, 4, 1\nv_lshrrev_b32 v{t[3]}, 5, v{lane}\nv_and_b32 v{vos}, 15, v{lane}\nv_lshlrev_b32 v{vos}, 4, v{vos}\nv_lshl_add_u32 v{vos}, v{t[2]}, 10, v{vos}\nv_lshl_add_u32 v{vos}, v{t[3]}, 8, v{vos}')
        a(f's_mov_b32 s{sX}, s{pWo}\ns_mov_b32 s{sX+1}, s{pWo+1}\ns_mov_b32 s{sX+2}, 0x200000')
        a(f's_mov_b32 s{sW}, s{pOut}\ns_mov_b32 s{sW+1}, s{pOut+1}\ns_mov_b32 s{sW+2}, 0x800000')
        a(f's_lshl_b32 s{sT}, s{sBR}, 6\ns_lshl_b32 s{sT2}, s{sHP}, 2\ns_add_u32 s{sT}, s{sT}, s{sT2}\ns_add_u32 s{sT}, s{sT}, s{sW3}')
        a(f's_lshl_b32 s{sOb}, s{sT}, 16\ns_add_u32 s{sOb}, s{sOb}, {WS_OF}\ns_lshl_b32 s{sFO}, s{sT}, 12\ns_add_u32 s{sFO}, s{sFO}, {WS_F2}')
        a(f's_and_b32 s{sT}, s{sHD}, 1\ns_lshl_b32 s{sWb}, s{sT}, 16\ns_lshl_b32 s{sSp}, s{sT}, 15\ns_lshl_b32 s{sM4}, s{sW3}, 12')
        a(f'v_lshrrev_b32 v{t[2]}, 4, v{lane}\nv_and_b32 v{t[3]}, 15, v{lane}\nv_lshlrev_b32 v{t[4]}, 1, v{t[2]}\nv_xor_b32 v{t[3]}, v{t[3]}, v{t[4]}')
        a(f's_lshr_b32 s{sT}, s{sW3}, 1\ns_lshl_b32 s{sT}, s{sT}, 6\ns_and_b32 s{sT2}, s{sW3}, 1\ns_lshl_b32 s{sT2}, s{sT2}, 4\ns_add_u32 s{sT}, s{sT}, s{sT2}')
        a(f'v_add_u32 v{t[2]}, s{sT}, v{t[2]}\nv_lshlrev_b32 v{t[2]}, 11, v{t[2]}\nv_lshl_add_u32 v{vgw[0]}, v{t[3]}, 4, v{t[2]}')
        a(f's_lshl_b32 s{sT}, s{sMT}, 8\nv_add_u32 v{vgw[0]}, s{sT}, v{vgw[0]}')
        a(f'v_xor_b32 v{vgw[1]}, 128, v{vgw[0]}\nv_add_u32 v{vgw[1]}, {4*2048-1024}, v{vgw[1]}')
        a(f's_and_b32 s{sT2}, s{sHP}, 3\ns_lshl_b32 s{sT2}, s{sT2}, 2\ns_add_u32 s{sT2}, s{sT2}, s{sW3}\ns_lshl_b32 s{sT2}, s{sT2}, 17\ns_add_u32 s{sT}, s{sT}, s{sT2}')
        a(f'v_lshrrev_b32 v{t[2]}, 2, v{lane}\nv_and_b32 v{t[3]}, 3, v{lane}\nv_lshlrev_b32 v{t[3]}, 6, v{t[3]}\nv_lshl_add_u32 v{t[2]}, v{t[2]}, 11, v{t[3]}\nv_add_u32 v{vwt}, s{sT}, v{t[2]}')
    def wo_touch(i): return [f's_mov_b32 s{sK}, {i*16*2048}', f'buffer_load_dword v{vdum}, v{vwt}, {sr(sX,4)}, s{sK} offen']
    def dma32(ldsbase, soff_setup):
        o=list(soff_setup)+[f's_add_u32 s{sK}, s{sK}, s{sM8}']
        for i in range(2):
            o+=[f's_add_u32 m0, s{sM8}, {ldsbase+i*4096}']
            o+=[f's_add_u32 s{sK}, s{sK}, 4096' if i else 's_nop 0']
            o+=[f'buffer_load_dwordx4 v{vl16}, {sr(sWS,4)}, s{sK} offen offset:{c*1024} sc1 lds' for c in range(4)]
        return o
    def dmaB(s,slots,X):
        if X and 1<=s<=3: su=[f's_and_b32 s{sK}, s{sMT}, 3', f's_cmp_ge_u32 s{sK}, {s}', f's_cselect_b32 s{sK}, {s-1}, {s}', f's_and_b32 s{sT3}, s{sMT}, 4', f's_or_b32 s{sK}, s{sK}, s{sT3}']
        else: su=[f's_and_b32 s{sK}, s{sMT}, 4', f's_xor_b32 s{sK}, s{sK}, {s}']
        return dma32(slots[s%3],su+[f's_lshl_b32 s{sK}, s{sK}, 15', f's_add_u32 s{sK}, s{sK}, s{sKVB}'])
    def dmaA(i,area):
        if i==0: su=[f's_max_u32 s{sK}, s{sMT}, 1', f's_sub_u32 s{sK}, s{sK}, 1', f's_lshl_b32 s{sK}, s{sK}, 15']
        else: su=[f's_lshl_b32 s{sK}, s{sMT}, 15']
        return dma32(area+i*32768,su+[f's_add_u32 s{sK}, s{sK}, s{sKVA}'])
    def out_issue(s):
        b=OSL[s%5]; sp=s&7; par=s>>3
        o=[f's_add_u32 m0, s{sM4}, {b+16384}', f's_xor_b32 s{sK}, s{sWb}, {(par<<16)+sp*128*2048}']
        o+=[f'buffer_load_dwordx4 v{vgw[0]}, {sr(sX,4)}, s{sK} offen lds', f'buffer_load_dwordx4 v{vgw[1]}, {sr(sX,4)}, s{sK} offen offset:1024 lds']
        o+=[f's_add_u32 s{sK}, s{sK}, {8*2048-2048}']
        o+=[f'buffer_load_dwordx4 v{vgw[0]}, {sr(sX,4)}, s{sK} offen offset:2048 lds', f'buffer_load_dwordx4 v{vgw[1]}, {sr(sX,4)}, s{sK} offen offset:3072 lds']
        o+=[f's_add_u32 m0, s{sM4}, {b}', f's_xor_b32 s{sK}, s{sSp}, {s*4096}', f's_add_u32 s{sK}, s{sK}, s{sOb}']
        o+=[f'buffer_load_dwordx4 v{vl16}, {sr(sWS,4)}, s{sK} offen offset:{c*1024} sc1 lds' for c in range(4)]
        return o
    def QK(sb,kb,q,c):
        return [f'v_mfma_f32_32x32x16_bf16 {vr(sb,16)}, {vr(kb,4)}, {vr(q,4)}, {c}', f'v_mfma_f32_32x32x16_bf16 {vr(sb,16)}, {vr(kb+4,4)}, {vr(q+4,4)}, {vr(sb,16)}']
    def PV(o,vb,sb,c): return f'v_smfmac_f32_32x32x32_bf16 {vr(o,16)}, {vr(vb+4*c,4)}, {vr(sb+8*c,8)}, v{vidx}'
    def SM(l,sb,c): return f'v_smfmac_f32_16x16x64_bf16 {vr(l,4)}, {vr(SEL,4)}, {vr(sb+8*c,8)}, v{vidx}'
    def maxtree(dst, sb, first):
        o=[]
        if first:
            o.append(f'v_max3_f32 v{dst}, v{sb}, v{sb+1}, v{sb+2}')
            for i in range(3,15,2): o.append(f'v_max3_f32 v{dst}, v{dst}, v{sb+i}, v{sb+i+1}')
            o.append(f'v_max_f32 v{dst}, v{dst}, v{sb+15}')
        else:
            for i in range(0,16,2): o.append(f'v_max3_f32 v{dst}, v{dst}, v{sb+i}, v{sb+i+1}')
        return o
    def finish_max(A,mx,tmp,nm,offs,fill=True):
        A(f'v_mov_b32 v{tmp}, v{mx}\ns_nop 1\nv_permlane32_swap_b32 v{tmp}, v{mx}\ns_nop 1\nv_max_f32 v{mx}, v{mx}, v{tmp}')
        A(f'v_sub_f32 v{nm}, {offs}, v{mx}')
        if fill:
            A(f'v_mov_b32 v{nm+1}, v{nm}')
            for i in range(2,16,2): A(f'v_mov_b64 {vr(nm+i,2)}, {vr(nm,2)}')
    def zero(A,r,n):
        for i in range(0,n,2): A(f'v_mov_b64 {vr(r+i,2)}, 0')
    def make_xm(A):
        A(f'v_and_b32 v{t[2]}, 31, v{lane}\nv_lshrrev_b32 v{t[3]}, 5, v{lane}\nv_lshlrev_b32 v{t[3]}, 4, v{t[3]}\nv_sub_u32 v{t[2]}, v{t[2]}, v{t[3]}\nv_cvt_f32_i32 v{t[2]}, v{t[2]}')
        A(f'v_mul_f32 v{t[2]}, {f2u(2.0**100)}, v{t[2]}')
        for r in range(16): A(f'v_add_f32 v{XM+r}, {f2u((0.5-r)*2.0**100)}, v{t[2]}')
    def slot(sc, prev, nxt, cur, F):
        E=[f'v_exp_f32 v{sc+i}, v{sc+i}' for i in range(16)]
        def g(k):
            x=F.get(k,[])
            if callable(x): return [x]
            return x
        seq=E[0:2]
        if prev: seq+=[prev[0]]+g('S1')+E[2:3]+[prev[1]]+g('P1')
        else: seq+=g('S1')+E[2:3]+g('P1')
        seq+=E[3:6]
        if nxt: seq+=[nxt[0]]+g('Q0')+E[6:9]+[nxt[1]]+g('Q1')
        else: seq+=g('Q0')+E[6:9]+g('Q1')
        seq+=E[9:12]+[cur[0]]+g('S0')+E[12:13]+[cur[1]]+g('P0')+E[13:16]
        for x in seq:
            if callable(x): x()
            else: a(x)
    def finalize(o,l,q,dst,isA):
        FB=lab('FB'); RT=lab('RT')
        a(f'v_rcp_f32 v{t[0]}, v{l}\nv_cmp_gt_f32 s[4:5], s{sC2}, v{l}')
        for i in range(0,16,2): a(f'v_pk_mul_f32 {vr(o+i,2)}, {vr(o+i,2)}, {vr(t[0],2)} op_sel_hi:[1,0]')
        a(f'v_pk_mul_f32 {vr(t[0],2)}, {vr(o,2)}, {vr(o,2)}')
        for i in range(2,16,2): a(f'v_pk_fma_f32 {vr(t[0],2)}, {vr(o+i,2)}, {vr(o+i,2)}, {vr(t[0],2)}')
        a(f'v_add_f32 v{t[0]}, v{t[0]}, v{t[1]}\nv_sqrt_f32 v{t[1]}, v{t[0]}\nv_cmp_gt_f32 s[6:7], s{sC1}, v{t[0]}\nv_mul_f32 v{t[1]}, v{t[1]}, v{l}\nv_cmp_lt_f32 vcc, s{sC0}, v{t[1]}')
        a(f's_and_b64 s[4:5], s[4:5], s[6:7]\ns_and_b64 s[4:5], s[4:5], vcc\ns_cmp_eq_u64 s[4:5], -1\ns_cbranch_scc0 {FB}\n{RT}:')
        for i in range(8): a(f'v_cvt_pk_bf16_f32 v{dst+i}, v{o+2*i}, v{o+2*i+1}')
        for c in range(2): a(f'buffer_store_dwordx4 {vr(dst+4*c,4)}, v{vos}, {sr(sWS,4)}, s{sO} offen offset:{c*512} sc1')
        T=tail; C=NM[0]; nm=NM[1]
        T(f'{FB}:')
        make_xm(T)
        if isA: T(f's_min_u32 s{sN}, s{sJQ}, 8\ns_add_u32 s{sN}, s{sN}, 1')
        else: T(f's_mov_b32 s{sN}, 64')
        T(f'v_mov_b32 v{t[4]}, 0xff800000\nv_mov_b32 v{nm}, 0')
        for ps in range(2):
            LP=lab('FL')
            if ps==1:
                finish_max(T,t[4],t[2],nm,'0',fill=False); zero(T,o,16); zero(T,l,4)
            T(f's_mov_b32 s{sCnt}, 0\n{LP}:')
            if isA:
                T(f's_sub_u32 s{sT}, s{sJQ}, s{sCnt}\ns_lshl_b32 s{sT}, s{sT}, 12\ns_add_u32 s{sT}, s{sT}, s{sKVA}')
                T(f's_mov_b32 s{sMa}, 0\ns_mov_b32 s{sMb}, {f2u(2.0**100)}\ns_cmp_eq_u32 s{sCnt}, 0\ns_cselect_b32 s{sMa}, 1.0, s{sMa}\ns_cselect_b32 s{sMb}, 0, s{sMb}')
                T(f's_cmp_eq_u32 s{sCnt}, 8\ns_cselect_b32 s{sMa}, -1.0, s{sMa}\ns_cselect_b32 s{sMb}, 0, s{sMb}')
            else:
                T(f's_lshl_b32 s{sT}, s{sCnt}, 12\ns_add_u32 s{sT}, s{sT}, s{sKVB}\ns_mov_b32 s{sMa}, 0\ns_mov_b32 s{sMb}, {f2u(2.0**100)}')
            for c in range(2): T(f'buffer_load_dwordx4 {vr(KF[0]+4*c,4)}, v{vkp}, {sr(sWS,4)}, s{sT} offen offset:{c*1024} sc1')
            if ps==1:
                for c in range(2): T(f'buffer_load_dwordx4 {vr(VF[0]+4*c,4)}, v{vl16}, {sr(sWS,4)}, s{sT} offen offset:{2048+c*1024} sc1')
            T(f'v_mov_b32 v{t[3]}, s{sMb}')
            for r in range(16): T(f'v_fma_f32 v{C+r}, v{XM+r}, s{sMa}, v{t[3]}\nv_min_f32 v{C+r}, v{C+r}, v{nm}')
            T('s_waitcnt vmcnt(0)\ns_nop 0')
            for x in QK(S[0],KF[0],q,vr(C,16)): T(x)
            T('s_nop 11')
            if ps==0:
                for x in maxtree(t[4],S[0],False): T(x)
            else:
                for i in range(16): T(f'v_exp_f32 v{S[0]+i}, v{S[0]+i}')
                T('s_nop 1')
                for c in range(2): T(SM(l,S[0],c)); T(PV(o,VF[0],S[0],c))
            T(f's_add_u32 s{sCnt}, s{sCnt}, 1\ns_cmp_lt_u32 s{sCnt}, s{sN}\ns_cbranch_scc1 {LP}')
        T(f's_nop 11\nv_rcp_f32 v{t[0]}, v{l}\ns_nop 0')
        for i in range(0,16,2): T(f'v_pk_mul_f32 {vr(o+i,2)}, {vr(o+i,2)}, {vr(t[0],2)} op_sel_hi:[1,0]')
        T(f's_branch {RT}')
    def o_addr(br_o, sblk):
        a(f's_lshl_b32 s{sT}, s{sMT}, 3\ns_add_u32 s{sT}, s{sT}, s{sblk}\ns_lshl_b32 s{sT}, s{sT}, 5\ns_add_u32 s{sT}, s{sT}, s{sPi}')
        a(f's_lshl_b32 s{sO}, s{sT}, 11\ns_add_u32 s{sO}, s{sO}, {WS_OF+(br_o<<22)}\ns_lshl_b32 s{sF2}, s{sT}, 7\ns_add_u32 s{sF2}, s{sF2}, {WS_F2+(br_o<<18)}')
    def old_block(fn):
        def f():
            Lb=lab('OB'); if_young_skip(Lb); fn(); a(f'{Lb}:')
        return f
    def young_block(fn):
        def f():
            Lb=lab('YB'); if_old_skip(Lb); fn(); a(f'{Lb}:')
        return f
    def phaseB(X):
        slots=[98304,131072,65536] if X else [0,32768,131072]
        area=0 if X else 65536
        a(f's_lshl_b32 s{sT}, s{sKH}, 14')
        for i in range(3):
            a(f's_add_u32 s{sT2}, s{sT}, {slots[i]}\nv_add_u32 v{vka[i]}, s{sT2}, v{vkp}\nv_add_u32 v{vva[i]}, s{sT2}, v{vl16}')
        def rdK(buf,T): return [f'ds_read_b128 {vr(KF[buf]+4*c,4)}, v{vka[(T//4)%3]} offset:{(T%4)*4096+c*1024}' for c in range(2)]
        def rdV(buf,T): return [f'ds_read_b128 {vr(VF[buf]+4*c,4)}, v{vva[(T//4)%3]} offset:{(T%4)*4096+2048+c*1024}' for c in range(2)]
        a(f'v_xor_b32 v{t[4]}, 0x4000, v{vka[0]}')
        if X:
            a(f's_lshl_b32 s{sT}, s{sW3}, 1\ns_add_u32 s{sT}, s{sT}, s{sKH}\ns_lshl_b32 s{sT}, s{sT}, 11\ns_add_u32 s{sT}, s{sT}, 8192\nv_add_u32 v{t[2]}, s{sT}, v{vl16}\nv_xor_b32 v{t[3]}, 0x800, v{t[2]}')
            a('s_waitcnt lgkmcnt(0)')
            zero(a,O[0],40)
            if opt.get('t1early',0):
                Ly=lab('T1y'); Le=lab('T1e')
                if_young_skip(Ly); a(f's_barrier\ns_branch {Le}\n{Ly}:\ns_setprio 1\n{Le}:')
            else:
                young_block(lambda: a('s_setprio 1'))(); a('s_barrier')
            TR.now('T1')
            for i in range(2):
                for c in range(2): a(f'ds_read_b128 {vr(Q[i]+4*c,4)}, v{t[2+i]} offset:{c*1024}')
        else:
            zero(a,O[0],40)
            a('s_waitcnt vmcnt(2)\ns_barrier')
            TR.now('YB0')
        emit(rdK(0,0))
        for c in range(2): a(f'ds_read_b128 {vr(KF[1]+4*c,4)}, v{t[4]} offset:{c*1024}')
        emit(rdV(0,0))
        assert O[1]==O[0]+16 and L[0]==O[1]+16 and L[1]==L[0]+4
        if not X:
            old_block(lambda: emit(dmaB(1,slots,X)))()
        hq=list(held); xh=opt.get('xh',[3,3,3,3,0,0,0,0,0,0])
        def hx(i):
            if X and xh[i]:
                hs=[hq.pop(0) for _ in range(xh[i])]
                young_block(lambda: emit(hs))()
        if X: old_block(lambda: (a('s_waitcnt vmcnt(0)'),a(flag_post(sF1))))()
        hx(0)
        a('s_waitcnt lgkmcnt(4)')
        emit(QK(S[0],KF[0],Q[0],'0')+QK(S[1],KF[0],Q[1],'0'))
        a('s_waitcnt lgkmcnt(2)')
        emit(QK(NM[0],KF[1],Q[0],'0')+QK(NM[1],KF[1],Q[1],'0'))
        hx(1)
        if X: late_init()
        else: a('s_nop 7')
        hx(2)
        emit(maxtree(t[0],S[0],True)+maxtree(t[1],S[1],True)+maxtree(t[0],NM[0],False)+maxtree(t[1],NM[1],False))
        finish_max(a,t[0],t[2],NM[0],f's{sOffs}')
        a('s_nop 1')
        emit(QK(S[0],KF[0],Q[0],vr(NM[0],16)))
        finish_max(a,t[1],t[2],NM[1],f's{sOffs}')
        hx(3)
        TR.now('standin')
        NT=32
        def barrier_block(s):
            def f():
                if X and s==1:
                    def pre():
                        assert not hq
                        TR.now('xp0'); a(flag_load(vpoll,sFB,sMsk)); a('s_waitcnt vmcnt(0)'); TR.now('xpl1')
                        if opt.get('xyf',3)==6: a(flag_post(sF1))
                        flag_check(vpoll,sFB,sMsk); TR.now('xpok')
                        emit(dmaB(1,slots,X)); a('s_setprio 0\ns_waitcnt vmcnt(0)')
                    young_block(pre)()
                    a('s_waitcnt lgkmcnt(0)')
                elif s==1: a('s_waitcnt vmcnt(0) lgkmcnt(0)'); a(flag_post(sF2))
                else:
                    def pre():
                        a(f's_waitcnt vmcnt({8 if s==7 else 0})')
                        if s==3: flag_check(vpoll,sFB,sAll)
                        if s==6: flag_check(vpoll,sFA,sMskA) if X else flag_check(vpoll,sFO,sME)
                    if s in (3,6): old_block(pre)(); a('s_waitcnt lgkmcnt(0)')
                    elif (not X) and s==2: old_block(pre)(); a('s_waitcnt lgkmcnt(0)')
                    else: a(f's_waitcnt vmcnt({8 if s==7 else 0}) lgkmcnt(0)')
                a('s_barrier')
                TR.mark(f'B{s}')
                def post():
                    if s+1<8: emit(dmaB(s+1,slots,X))
                    if s==2: a(flag_load(vpoll,sFB,sAll))
                    if s==5: a(flag_load(vpoll,sFA,sMskA) if X else flag_load(vpoll,sFO,sME))
                    if 2<=s<=5 and opt.get('wot',1): emit(wo_touch(s-2))
                    if s>=6: emit(dmaA(s-6,area) if X else out_issue(s-6))
                old_block(post)()
            return f
        if X: a(f's_lshl_b32 s{sT}, s{sMT}, 2\ns_lshl_b32 s{sMskA}, 15, s{sT}\ns_lshr_b32 s{sT}, s{sMskA}, 4\ns_or_b32 s{sMskA}, s{sMskA}, s{sT}')
        for T in range(NT):
            kb=T&1
            for qb in range(2):
                F={}
                if qb==0:
                    prev=(SM(L[1],S[1],1),PV(O[1],VF[kb^1],S[1],1)) if T>0 else None
                    nxt=QK(S[1],KF[kb],Q[1],vr(NM[1],16))
                    R=rdK(kb^1,T+1) if T+1<NT else []
                    if T%4==3 and T+1<NT: F['S1']=barrier_block(T//4+1)
                else:
                    prev=(SM(L[0],S[0],1),PV(O[0],VF[kb],S[0],1))
                    nxt=QK(S[0],KF[kb^1],Q[0],vr(NM[0],16)) if T+1<NT else None
                    R=rdV(kb^1,T+1) if T+1<NT else []
                F.setdefault('S1',['s_waitcnt lgkmcnt(0)',TR.commit])
                F['P1']=R[0:1]; F['Q0']=R[1:2]
                F['Q1']=['s_nop 0']; F['S0']=['s_nop 0']; F['P0']=['s_nop 0']
                n=2*T+qb
                if X and n<6 and xh[4+n]: F['P0']=(lambda n=n: hx(4+n))
                if X and n<6 and n==opt.get('xyf',3):
                    assert sum(xh[4+n:])==0
                    F['P0']=young_block(lambda: (a('s_waitcnt vmcnt(0)'),a(flag_post(sF1))))
                if not X:
                    yh=opt.get('yh',[2,9,12]); kk=12//len(yh)
                    if n in yh:
                        hs=held[yh.index(n)*kk:(yh.index(n)+1)*kk]
                        F['P0']=young_block(lambda hs=hs: emit(hs))
                    if n==yh[-1]+opt.get('yhd',5): F['P0']=young_block(lambda: (a('s_waitcnt vmcnt(0)'),a(flag_post(sF1))))
                if opt.get('prio',1) and n>=6 and n%2==0:
                    F['Q1']=[f's_setprio {3-((n-6)%8)//2}' if n<54 else f's_setprio {max(0,3-(n-54)//3)}']
                if X and T==29 and qb==0:
                    F['Q1']=[f's_lshl_b32 s{sT}, s{sHD}, 6',f's_lshl_b32 s{sT2}, s{sMT}, 3',f's_add_u32 s{sT}, s{sT}, s{sT2}',f's_add_u32 s{sT}, s{sT}, s{sWave}',f's_lshl_b32 s{sT}, s{sT}, 11']
                    F['S0']=[f'buffer_load_dwordx4 {vr(QA,4)}, v{vl16}, {sr(sWS,4)}, s{sT} offen sc1']
                    F['P0']=[f'buffer_load_dwordx4 {vr(QA+4,4)}, v{vl16}, {sr(sWS,4)}, s{sT} offen offset:1024 sc1']
                slot(S[qb],prev,nxt,(SM(L[qb],S[qb],0),PV(O[qb],VF[kb],S[qb],0)),F)
        a('s_nop 1')
        a(SM(L[1],S[1],1)); a(PV(O[1],VF[1],S[1],1))
        a('s_setprio 0')
        TR.now('Bmain')
        a(f's_lshl_b32 s{sT}, s{sWave}, 12\ns_add_u32 s{sT}, s{sT}, {slots[0]}\nv_add_u32 v{t[2]}, s{sT}, v{vl16}\nv_xor_b32 v{t[3]}, 0x4000, v{t[2]}')
        a(f's_lshl_b32 s{sT}, s{sWave}, 8\ns_add_u32 s{sT}, s{sT}, {slots[2]}\nv_lshl_add_u32 v{t[4]}, v{lane}, 2, s{sT}\nv_xor_b32 v{t[0]}, 0x400, v{t[4]}')
        a(f's_lshl_b32 s{sQB}, s{sW3}, 1\ns_add_u32 s{sQB}, s{sQB}, s{sKH}')
        o_addr(1,sQB)
        a(f'ds_write_b32 v{t[4]}, v{L[1]}')
        for i in range(4): a(f'ds_write_b128 v{t[2]}, {vr(O[1]+4*i,4)} offset:{i*1024}')
        a('s_waitcnt vmcnt(0) lgkmcnt(0)\ns_barrier')
        a(f'ds_read_b32 v{L[1]}, v{t[0]}')
        for i in range(4): a(f'ds_read_b128 {vr(O[1]+4*i,4)}, v{t[3]} offset:{i*1024}')
        if X: make_xm(a)
        a('s_waitcnt lgkmcnt(0)')
        if X: a('s_barrier')
        a(f'v_add_f32 v{L[0]}, v{L[0]}, v{L[1]}')
        for i in range(0,16,2): a(f'v_pk_add_f32 {vr(O[0]+i,2)}, {vr(O[0]+i,2)}, {vr(O[1]+i,2)}')
        finalize(O[0],L[0],Q[0],Q[1],False)
        if X: young_block(lambda: (a('s_waitcnt vmcnt(0)'),a(flag_post(sF2))))()
        TR.now('Bend')
    def phaseA(X):
        area=0 if X else 65536
        slotsY=[0,32768,131072]
        if X: a(f's_mov_b32 s{sQB}, s{sWave}')
        else: a(f's_sub_u32 s{sT}, 11, s{sWave}\ns_cmp_lt_u32 s{sWave}, 4\ns_cselect_b32 s{sQB}, s{sWave}, s{sT}')
        a(f's_lshl_b32 s{sJQ}, s{sMT}, 3\ns_add_u32 s{sJQ}, s{sJQ}, s{sQB}')
        a(f's_lshl_b32 s{sT}, s{sQB}, 12\ns_add_u32 s{sT}, s{sT}, {area}\nv_add_u32 v{vkA}, s{sT}, v{vkp}\nv_add_u32 v{vvA}, s{sT}, v{vl16}')
        def rdKA(buf,tt): return [f'ds_read_b128 {vr(KF[buf]+4*c,4)}, v{vkA} offset:{(8-tt)*4096+c*1024}' for c in range(2)]
        def rdVA(buf,tt): return [f'ds_read_b128 {vr(VF[buf]+4*c,4)}, v{vvA} offset:{(8-tt)*4096+2048+c*1024}' for c in range(2)]
        CD=NM[1]; NA=NM[0]; OA=O[1]; LA=L[0]
        if not X:
            a(f's_lshl_b32 s{sT}, s{sQB}, 11\ns_add_u32 s{sT}, s{sT}, 8192\nv_add_u32 v{t[0]}, s{sT}, v{vl16}')
            make_xm(a)
            a('s_waitcnt lgkmcnt(0)')
            for r in range(16): a(f'v_min_f32 v{CD+r}, 0, v{XM+r}')
            zero(a,OA,20)
            if opt.get('ypost',0)==0: old_block(lambda: (a('s_waitcnt vmcnt(0)'),a(flag_post(sF1))))()
            if opt.get('t1early',0): old_block(lambda: a('s_barrier'))()
            else: a('s_barrier')
            TR.now('T1')
            for c in range(2): a(f'ds_read_b128 {vr(QA+4*c,4)}, v{t[0]} offset:{c*1024}')
        emit(rdKA(0,0)+rdVA(0,0))
        if X:
            emit(rdKA(1,1))
            for r in range(16): a(f'v_min_f32 v{CD+r}, 0, v{XM+r}')
            zero(a,OA,20)
        a('s_waitcnt lgkmcnt(0)')
        emit(QK(S[0],KF[0],QA,vr(CD,16)))
        lf=opt.get('lf',1)
        def sync(p):
            def f():
                Lk=lab('YK')
                if lf: a(f's_cmp_lg_u32 s{sQB}, {p-1}\ns_cbranch_scc1 {Lk}')
                def pre():
                    Ls=lab('YS')
                    a(f's_cmp_eq_u32 s{sMT}, 0\ns_cbranch_scc1 {Ls}')
                    a(flag_load(vpoll,sFA,sMskA)); a('s_waitcnt vmcnt(0)'); flag_check(vpoll,sFA,sMskA)
                    emit(dmaA(0,area)); a('s_waitcnt vmcnt(0)')
                    a(f'{Ls}:')
                if not lf: old_block(pre)()
                elif p<=4: pre()
                a('s_barrier')
                if lf and p>4: a('s_setprio 1')
                n_=TR.n; TR.now('YAsync'); TR.n=n_
                a(f'{Lk}:')
            return f
        if X:
            emit(QK(S[1],KF[1],QA,'0'))
            a('s_nop 9')
            emit(maxtree(t[4],S[0],True))
        else:
            if opt.get('ypost',0)==1: old_block(lambda: (a('s_waitcnt vmcnt(0)'),a(flag_post(sF1))))()
            a(f's_lshl_b32 s{sT}, s{sMT}, 2\ns_add_u32 s{sT}, s{sT}, s{sW3}\ns_sub_u32 s{sT}, s{sT}, 4\ns_lshl_b32 s{sMskA}, 1, s{sT}')
            sync(1)()
            emit(rdKA(1,1))
            late_init()
            a('s_waitcnt lgkmcnt(0)')
            emit(QK(S[1],KF[1],QA,'0'))
            emit(maxtree(t[4],S[0],True))
            a('s_nop 1')
        Lm=lab('AM')
        a(f's_cmp_eq_u32 s{sJQ}, 0\ns_cbranch_scc1 {Lm}')
        emit(maxtree(t[4],S[1],False))
        a(f'{Lm}:')
        finish_max(a,t[4],t[2],NA,f's{sOffs}')
        for r in range(16): a(f'v_min_f32 v{CD+r}, v{NA}, v{XM+r}')
        a('s_nop 1')
        emit(QK(S[0],KF[0],QA,vr(CD,16)))
        if X: a(f's_mov_b32 s{sMsk}, s{sF2}')
        o_addr(0,sQB)
        a('s_nop 3')
        if X: TR.now('Aprep')
        for tt in range(9):
            b=tt&1
            F={}
            prev=(SM(LA,S[b^1],1),PV(OA,VF[b^1],S[b^1],1)) if tt>0 else None
            nxt=None
            if tt<8:
                Lp=lab('AP'); Lr=lab('AR')
                F['S1']=[f's_cmp_eq_u32 s{sJQ}, {tt}', f's_cbranch_scc1 {Lp}', f'{Lr}:']
                tail(f'{Lp}:\ns_nop 7\nv_mov_b32 v{NA}, {f2u(-2.0**120)}\nv_mov_b32 v{NA+1}, v{NA}')
                for r in range(2,16,2): tail(f'v_mov_b64 {vr(NA+r,2)}, {vr(NA,2)}')
                tail(f's_branch {Lr}')
                F['P1']=['s_waitcnt lgkmcnt(0)']
                if tt==7: F['P1']+=[f'v_min_f32 v{CD+r}, v{NA}, -v{XM+r}' for r in range(16)]
                nxt=QK(S[b^1],KF[b^1],QA,vr(CD if tt==7 else NA,16))
                RV=rdVA(b^1,tt+1); RK=rdKA(b,tt+2) if tt+2<=8 else ['s_nop 0','s_nop 0']
                F['Q0']=RV[0:1]; F['Q1']=RV[1:2]; F['S0']=RK[0:1]; F['P0']=RK[1:2]
            else:
                F['P1']=['s_waitcnt lgkmcnt(0)']
            if (not X) and lf and tt<=6: F['S0']=[sync(tt+2)]+F['S0']
            if X and tt==opt.get('xbflag',2): F['P0']=F.get('P0',[])+[old_block(lambda: (a('s_waitcnt vmcnt(0)'),a(flag_post(sMsk))))]
            if not X:
                p=opt.get('ypoll',6)
                if tt==p: F['P0']=F.get('P0',[])+[flag_load(vpoll,sFB,sMsk)]
                if tt==p+1:
                    def blk():
                        a('s_waitcnt vmcnt(0)')
                        flag_check(vpoll,sFB,sMsk)
                        a(f's_lshl_b32 s{sT}, s{sHD}, 5\ns_lshl_b32 s{sT2}, s{sMT}, 2\ns_add_u32 s{sT}, s{sT}, s{sT2}\ns_add_u32 s{sT}, s{sT}, s{sW3}\ns_lshl_b32 s{sT}, s{sT}, 1\ns_add_u32 s{sT}, s{sT}, s{sKH}')
                        a(f's_lshl_b32 s{sT}, s{sT}, 11\ns_add_u32 s{sT}, s{sT}, {WS_QF+(32<<17)}\ns_xor_b32 s{sT2}, s{sT}, 0x800')
                        for i in range(2):
                            for c in range(2): a(f'buffer_load_dwordx4 {vr(Q[i]+4*c,4)}, v{vl16}, {sr(sWS,4)}, s{(sT,sT2)[i]} offen offset:{c*1024} sc1')
                        young_block(lambda: emit(dmaB(0,slotsY,False)))()
                    F['P0']=F.get('P0',[])+[blk]
            slot(S[b],prev,nxt,(SM(LA,S[b],0),PV(OA,VF[b],S[b],0)),F)
        a('s_nop 1')
        a(SM(LA,S[0],1)); a(PV(OA,VF[0],S[0],1))
        a('s_nop 11')
        finalize(OA,LA,QA,S[1],True)
        if not X: a('s_setprio 0'); TR.n+=1
        TR.now('Aend')
    n0=TR.n
    a('XOLD:'); U['old_epi'](True); a('XPATH:'); common_init()
    TR.path='X'
    phaseB(True); phaseA(True)
    def xpre():
        a(flag_load(vpoll,sFO,sME)); a('s_waitcnt vmcnt(0)'); a(flag_post(sF2)); flag_check(vpoll,sFO,sME)
        emit(out_issue(0)); emit(out_issue(1))
        a('s_waitcnt vmcnt(8)\ns_barrier'); emit(out_issue(2)); a('s_branch OUTL')
    old_block(xpre)()
    a('s_branch OUTC')
    nX=TR.n; TR.n=n0
    a('YOLD:'); U['old_epi'](False); a('YPATH:'); common_init()
    TR.path='Y'
    phaseA(False); phaseB(False)
    TR.n=max(TR.n,nX); TR.path='XY'
    if_young_skip('OUTC')
    a('s_barrier'); emit(out_issue(2)); a('s_waitcnt vmcnt(8)'); a(flag_post(sF2))
    a('OUTL:')
    def loader_tail(A_emit, s0, issued):
        for s in range(s0,16):
            A_emit([f's_waitcnt vmcnt({8*(issued-s)})','s_barrier'])
            if issued<15:
                issued+=1; A_emit(out_issue(issued))
        A_emit(['s_branch LEND'])
    for s in range(1,7):
        a('s_waitcnt vmcnt(8)\ns_barrier')
        if s==5: a(flag_load(vpoll,sFO,sML))
        if s<6: emit(out_issue(s+2))
    Lv=lab('LV')
    a(U['flag_test'](vpoll,sML)); a(f's_cbranch_scc0 {Lv}')
    emit(out_issue(8)); loader_tail(emit,7,8)
    a(f'{Lv}:')
    a(flag_load(vpoll,sFO,sML)); a('s_waitcnt vmcnt(0)\ns_barrier')
    flag_check(vpoll,sFO,sML)
    emit(out_issue(8)); emit(out_issue(9)); loader_tail(emit,8,9)
    a('LEND:')
    if stamps: TR.dump(0,pWS,vdum)
    a('s_endpgm')
    a('OUTC:')
    V=Alloc(8)
    voa=[V(f'voa{i}') for i in range(3)]; vwa=[[V(f'vwa{i}{f}') for f in range(4)] for i in range(3)]
    vo=V('vo'); u=[V(f'u{i}') for i in range(3)]
    V.n=max(V.n,28)
    acc=[[V(f'acc{m}{f}',4,4) for f in range(4)] for m in range(4)]
    V.n=max(V.n,KF[0])
    OFr=[[V(f'of{b}{m}',4,4) for m in range(4)] for b in range(2)]
    WF=[[V(f'wf{b}{f}',4,4) for f in range(4)] for b in range(2)]
    assert V.n<=256
    bases=[65536,131072,0]; sel=[(0,0),(0,32768),(1,0),(2,0),(2,32768)]
    a(f's_and_b32 s{sT}, s{sW3}, 1\ns_lshl_b32 s{sT}, s{sT}, 13\nv_add_u32 v{voa[2]}, s{sT}, v{vl16}')
    a(f'v_bfe_u32 v{u[0]}, v{lane}, 2, 3\nv_lshrrev_b32 v{u[1]}, 5, v{lane}\nv_lshl_add_u32 v{u[1]}, v{u[1]}, 4, v{u[0]}\nv_lshlrev_b32 v{u[1]}, 8, v{u[1]}')
    a(f'v_and_b32 v{u[2]}, 3, v{lane}\nv_lshl_add_u32 v{u[1]}, v{u[2]}, 3, v{u[1]}')
    a(f's_lshr_b32 s{sT}, s{sW3}, 1\ns_lshl_b32 s{sT}, s{sT}, 2\nv_xor_b32 v{u[0]}, s{sT}, v{u[0]}\nv_lshl_add_u32 v{u[1]}, v{u[0]}, 5, v{u[1]}')
    a(f'v_add_u32 v{voa[0]}, {bases[0]}, v{voa[2]}')
    for f in range(4): a(f'v_xor_b32 v{vwa[0][f]}, {bases[0]+16384+32*f}, v{u[1]}')
    def reads(s,j,b):
        bi,o0=sel[s%5]
        def wr(f):
            off=o0+j*8192
            return [f'ds_read_b64_tr_b16 {vr(WF[b][f],2)}, v{vwa[bi][f]} offset:{off}', f'ds_read_b64_tr_b16 {vr(WF[b][f]+2,2)}, v{vwa[bi][f]} offset:{off+2048}']
        def xr(m): return [f'ds_read_b128 {vr(OFr[b][m],4)}, v{voa[bi]} offset:{o0+(m>>1)*4096+j*2048+(m&1)*1024}']
        return xr(0)+wr(0)+wr(1)+wr(2)+wr(3)+xr(1)+xr(2)+xr(3)
    def mfmas(b,first):
        M=[]
        for m in range(4):
            for f in (range(4) if m%2==0 else range(3,-1,-1)):
                d=vr(acc[m][f],4)
                M.append(f'v_mfma_f32_16x16x32_bf16 {d}, {vr(WF[b][f],4)}, {vr(OFr[b][m],4)}, {"0" if first else d}')
        return M
    a('s_barrier')
    TR.mark('OB0')
    emit(reads(0,0,0))
    a(f'v_add_u32 v{voa[1]}, {bases[1]}, v{voa[2]}')
    for i in (1,2):
        for f in range(4): a(f'v_xor_b32 v{vwa[i][f]}, {bases[i]+16384+32*f}, v{u[1]}')
    a(f'v_and_b32 v{u[0]}, 15, v{lane}\nv_lshlrev_b32 v{vo}, 12, v{u[0]}\nv_bfe_u32 v{u[0]}, v{lane}, 4, 1\nv_lshl_add_u32 v{vo}, v{u[0]}, 5, v{vo}\nv_lshrrev_b32 v{u[0]}, 5, v{lane}\nv_lshl_add_u32 v{vo}, v{u[0]}, 4, v{vo}')
    a(f's_lshl_b32 s{sOb}, s{sHP}, 1\ns_and_b32 s{sT}, s{sW3}, 1\ns_add_u32 s{sOb}, s{sOb}, s{sT}\ns_lshl_b32 s{sOb}, s{sOb}, 18')
    a(f's_lshl_b32 s{sT}, s{sBR}, 11\ns_add_u32 s{sOb}, s{sOb}, s{sT}\ns_lshl_b32 s{sT}, s{sMT}, 8\ns_add_u32 s{sOb}, s{sOb}, s{sT}\ns_lshr_b32 s{sT}, s{sW3}, 1\ns_lshl_b32 s{sT}, s{sT}, 7\ns_add_u32 s{sOb}, s{sOb}, s{sT}')
    for s in range(16):
        for j in range(2):
            a('s_waitcnt lgkmcnt(0)')
            TR.commit()
            if j==1 and s<15:
                a('s_barrier')
                if s%2==1: TR.mark(f'OB{s+1}')
            R=reads(s,1,1) if j==0 else (reads(s+1,0,0) if s<15 else [])
            M=mfmas(j,s==0 and j==0)
            fill=[[r] for r in R]+[[] for _ in range(16-len(R))]
            if 2*s+j==opt.get('oflag',3): fill[13]+=['s_waitcnt vmcnt(0)',flag_post(sF2)]
            emit(interleave(M,fill))
    TR.now('omain')
    a('s_nop 7')
    ost=opt.get('k3st','')
    for m in range(4):
        for p in range(2):
            c0=acc[m][2*p]
            for i in range(4): a(f'v_cvt_pk_bf16_f32 v{c0+i}, v{c0+2*i}, v{c0+2*i+1}')
            a(f's_add_u32 s{sT}, s{sOb}, {m*16*4096}\ns_nop 0')
            a(f'v_permlane16_swap_b32 v{c0}, v{c0+2}\nv_permlane16_swap_b32 v{c0+1}, v{c0+3}')
            a(f'buffer_store_dwordx4 {vr(c0,4)}, v{vo}, {sr(sW,4)}, s{sT} offen offset:{p*64}{ost}')
    if stamps:
        a('s_waitcnt vmcnt(0)'); TR.now('end'); TR.dump(0,pWS,vdum); stamp_end(a,0,pWS,OFr[0][0])
```

```python
from asm import *
WS_QF=0; WS_KV=8<<20; WS_OF=24<<20; WS_STAMP=128<<20; WS_TRACE=132<<20
QSCALE=0x3e82947d
import struct, math
QSCALE=struct.unpack('<I',struct.pack('<f',(32**-0.5)*math.log2(math.e)))[0]

def stamp_begin(a):
    a('s_memrealtime s[84:85]\ns_memtime s[86:87]')
def stamp_mid(a, idx):
    a(f's_memtime s[88:89]\ns_waitcnt lgkmcnt(0)\ns_sub_u32 s{92+idx}, s88, s86')
def stamp_end(a, kidx, ws_lo, vtmp):
    a('s_waitcnt vmcnt(0)\ns_memrealtime s[88:89]\ns_memtime s[90:91]\ns_waitcnt lgkmcnt(0)')
    a('s_sub_u32 s90, s90, s86')
    for i,s in enumerate((84,88,90,92,93,94,95,96)): a(f'v_mov_b32 v{vtmp+i}, s{s}')
    a(f's_lshl_b32 s88, s2, 5\ns_add_u32 s88, s88, {WS_STAMP+kidx*65536}\nv_mov_b32 v{vtmp+8}, s88')
    a(f'global_store_dwordx4 v{vtmp+8}, {vr(vtmp,4)}, s[{ws_lo}:{ws_lo+1}]')
    a(f'global_store_dwordx4 v{vtmp+8}, {vr(vtmp+4,4)}, s[{ws_lo}:{ws_lo+1}] offset:16')

class Trace:
    def __init__(self,a,on,vreg,stmp=98):
        self.a=a; self.on=on; self.v=vreg; self.s=stmp; self.n=0; self.pending=False; self.names=[]; self.path='XY'; self.map={'X':{},'Y':{}}
    def mark(self,name=''):
        if not self.on: return
        assert not self.pending
        self.a(f's_memtime s[{self.s}:{self.s+1}]'); self.pending=True; self.names.append(name)
        for p in self.path: self.map[p][self.n]=name
    def commit(self):
        if not self.on or not self.pending: return
        self.a(f'v_writelane_b32 v{self.v}, s{self.s}, {self.n}'); self.n+=1; self.pending=False
    def now(self,name=''):
        if not self.on: return
        self.mark(name); self.a('s_waitcnt lgkmcnt(0)'); self.commit()
    def dump(self,kidx,ws_lo,vtmp):
        if not self.on: return
        self.a(f's_lshl_b32 s{self.s}, s2, 11\ns_add_u32 s{self.s}, s{self.s}, {WS_TRACE+kidx*(1<<20)}\nv_lshl_add_u32 v{vtmp}, v0, 2, s{self.s}')
        self.a(f'global_store_dword v{vtmp}, v{self.v}, s[{ws_lo}:{ws_lo+1}]')
def gen_k1(name='qkv_kernel', stamps=False, opt={}):
    a=Asm()
    V=Alloc(1)
    acc=[[[None]*2 for s in range(3)] for m in range(4)]
    for m in range(4):
        for s in range(2):
            for fb in range(2): acc[m][s][fb]=V(f'acc{m}{s}{fb}',4,4)
    for tl in range(2):
        for fb in range(2):
            for mm in range(2): acc[2*tl+mm][2][fb]=V(f'accv{tl}{fb}{mm}',4,4)
    XF=[[V(f'xf{b}{m}',4,4) for m in range(4)] for b in range(2)]
    WF=[[[V(f'wf{b}{s}{fb}',4,4) for fb in range(2)] for s in range(3)] for b in range(2)]
    vxa=[V(f'vxa{j}') for j in range(2)]
    vwa=[V(f'vwa{j}') for j in range(2)]
    vgx=[V(f'vgx{j}') for j in range(4)]
    vgw=V('vgw')
    t=[V(f't{i}') for i in range(6)]
    vst=V('vst'); vpf=V('vpf'); vdum=V('vdum'); vtr=V('vtr')
    TR=Trace(a,stamps and opt.get('trace'),vtr)
    sX=8; sW=12; sWS=16
    sWave=20; sMT=21; sHP=22; sBR=23; sM0X=24; sM0W=25; sKX=26; sKW=27; sT=28; sT2=29
    a('s_cmp_ge_u32 s2, 256\ns_cbranch_scc1 K1_END')
    if stamps: stamp_begin(a)
    TR.now('start')
    a('s_and_b32 s3, s2, 7')
    mp=opt.get('map',0)
    if mp==0: a(f's_lshr_b32 s{sBR}, s3, 2')
    else: a(f's_bfe_u32 s{sBR}, s2, 0x10003')
    a(f's_mul_i32 s{sT}, s{sBR}, 24')
    a(f's_add_u32 s4, s0, s{sT}\ns_addc_u32 s5, s1, 0')
    a(f's_load_dwordx4 s[32:35], s[4:5], 0')
    a(f's_load_dwordx2 s[36:37], s[0:1], 64')
    a(f'v_lshrrev_b32 v{t[0]}, 6, v0')
    a(f's_lshr_b32 s{sT}, s2, 3')
    a(f'v_readfirstlane_b32 s{sWave}, v{t[0]}')
    if mp==0:
        a(f's_and_b32 s{sMT}, s{sT}, 3\ns_and_b32 s{sT2}, s3, 1\ns_lshl_b32 s{sT2}, s{sT2}, 2\ns_add_u32 s{sMT}, s{sMT}, s{sT2}')
        a(f's_lshr_b32 s{sHP}, s{sT}, 2\ns_and_b32 s{sT2}, s3, 2\ns_lshl_b32 s{sT2}, s{sT2}, 2\ns_add_u32 s{sHP}, s{sHP}, s{sT2}')
    elif mp==1:
        a(f's_bfe_u32 s{sMT}, s2, 0x20004\ns_and_b32 s{sT2}, s3, 1\ns_lshl_b32 s{sT2}, s{sT2}, 2\ns_add_u32 s{sMT}, s{sMT}, s{sT2}')
        a(f's_lshr_b32 s{sHP}, s2, 6\ns_and_b32 s{sT2}, s3, 6\ns_lshl_b32 s{sT2}, s{sT2}, 1\ns_add_u32 s{sHP}, s{sHP}, s{sT2}')
    elif mp==2:
        a(f's_bfe_u32 s{sMT}, s2, 0x30004')
        a(f's_lshr_b32 s{sHP}, s2, 7\ns_lshl_b32 s{sT2}, s3, 1\ns_add_u32 s{sHP}, s{sHP}, s{sT2}')
    lane=t[1]
    sWX=54; sWW=55
    rot=opt.get('rot',0)
    if rot==0: a(f's_mov_b32 s{sWX}, s{sWave}\ns_mov_b32 s{sWW}, s{sWave}')
    else:
        m,sh=((1,2),(3,1),(7,0))[rot-1]
        a(f's_and_b32 s{sT}, s{sHP}, {m}\ns_lshl_b32 s{sT}, s{sT}, {sh}\ns_xor_b32 s{sWX}, s{sWave}, s{sT}')
        m,sh=((1,2),(3,1),(3,1))[rot-1]
        a(f's_and_b32 s{sT}, s{sMT}, {m}\ns_lshl_b32 s{sT}, s{sT}, {sh}\ns_xor_b32 s{sWW}, s{sWave}, s{sT}')
    a(f'v_and_b32 v{lane}, 63, v0')
    a(f'v_lshrrev_b32 v{t[2]}, 3, v{lane}')
    a(f'v_and_b32 v{t[3]}, 7, v{lane}')
    a(f'v_lshrrev_b32 v{t[4]}, 4, v{lane}')
    a(f's_lshl_b32 s{sT}, s{sMT}, 8\ns_lshl_b32 s{sT2}, s{sWX}, 5\ns_add_u32 s{sT}, s{sT}, s{sT2}')
    a(f'v_add_u32 v{t[5]}, s{sT}, v{t[2]}')
    a(f'v_lshlrev_b32 v{t[5]}, 11, v{t[5]}')
    a(f'v_xor_b32 v{vgx[0]}, v{t[3]}, v{t[4]}')
    a(f'v_lshl_add_u32 v{vgx[0]}, v{vgx[0]}, 4, v{t[5]}')
    a(f'v_xor_b32 v{vgx[1]}, 64, v{vgx[0]}')
    a(f'v_add_u32 v{vgx[1]}, {8*2048}, v{vgx[1]}')
    a(f'v_add_u32 v{vgx[2]}, {16*2048}, v{vgx[0]}')
    a(f'v_add_u32 v{vgx[3]}, {16*2048}, v{vgx[1]}')
    a(f's_lshl_b32 s{sT}, s{sWW}, 3')
    a(f'v_add_u32 v{t[5]}, s{sT}, v{t[2]}')
    a(f'v_mul_u32_u24 v{t[5]}, 6144, v{t[5]}')
    a(f's_and_b32 s{sT}, s{sWW}, 1\ns_lshl_b32 s{sT}, s{sT}, 2')
    a(f'v_and_b32 v{t[4]}, 1, v{t[4]}\nv_lshl_add_u32 v{t[4]}, v{t[4]}, 1, s{sT}\nv_xor_b32 v{t[4]}, v{t[4]}, v{t[3]}')
    a(f'v_lshl_add_u32 v{vgw}, v{t[4]}, 4, v{t[5]}')
    a(f's_lshl_b32 s{sT}, s{sHP}, 7')
    a(f'v_add_u32 v{vgw}, s{sT}, v{vgw}')
    a(f's_lshr_b32 s{sT}, s{sWX}, 1\ns_mul_i32 s{sM0X}, s{sT}, 24576\ns_and_b32 s{sT}, s{sWX}, 1\ns_lshl_b32 s{sT}, s{sT}, 12\ns_add_u32 s{sM0X}, s{sM0X}, s{sT}')
    a(f's_lshl_b32 s{sM0W}, s{sWW}, 10\ns_add_u32 s{sM0W}, s{sM0W}, {96*1024}')
    a(f's_mov_b32 s{sX+2}, 0x400000\ns_mov_b32 s{sX+3}, 0x20000\ns_mov_b32 s{sW+2}, 0x600000\ns_mov_b32 s{sW+3}, 0x20000')
    a('s_waitcnt lgkmcnt(0)')
    a(f's_mov_b32 s{sX}, s32\ns_mov_b32 s{sX+1}, s33\ns_mov_b32 s{sW}, s34\ns_mov_b32 s{sW+1}, s35')
    pf=opt.get('pf',0)
    pfw=opt.get('pfw',1)
    pfd=opt.get('pfd',5)
    sPX=40; sPW=42; sPD=44
    if pf:
        nx,nw=(2,1) if pf==1 else (8,2)
        if pf==1:
            a(f's_lshl_b32 s{sT}, s{sMT}, 8\ns_lshl_b32 s{sT2}, s{sHP}, 4\ns_add_u32 s{sT}, s{sT}, s{sT2}\ns_lshl_b32 s{sT2}, s{sWave}, 1\ns_add_u32 s{sT}, s{sT}, s{sT2}')
        else:
            a(f's_lshl_b32 s{sT}, s{sMT}, 8\ns_and_b32 s{sT2}, s{sHP}, 3\ns_lshl_b32 s{sT2}, s{sT2}, 6\ns_add_u32 s{sT}, s{sT}, s{sT2}\ns_lshl_b32 s{sT2}, s{sWave}, 3\ns_add_u32 s{sT}, s{sT}, s{sT2}')
        a(f's_lshl_b32 s{sT}, s{sT}, 11\ns_add_u32 s{sPX}, s32, s{sT}\ns_addc_u32 s{sPX+1}, s33, 0')
        if pf==1:
            a(f's_lshl_b32 s{sT}, s{sMT}, 3\ns_add_u32 s{sT}, s{sT}, s{sWave}')
        else:
            a(f's_and_b32 s{sT}, s{sMT}, 3\ns_lshl_b32 s{sT}, s{sT}, 4\ns_lshl_b32 s{sT2}, s{sWave}, 1\ns_add_u32 s{sT}, s{sT}, s{sT2}')
        a(f's_mul_i32 s{sT}, s{sT}, 6144\ns_lshl_b32 s{sT2}, s{sHP}, 7\ns_add_u32 s{sT}, s{sT}, s{sT2}\ns_add_u32 s{sPW}, s34, s{sT}\ns_addc_u32 s{sPW+1}, s35, 0')
    def pref(s):
        if not pf or s>15: return []
        op,dst,o=('s_load_dword',f's{sPD}',0) if pfw==1 else ('s_load_dwordx2',f's[{sPD}:{sPD+1}]',60)
        R=[[f'{op} {dst}, s[{sPX}:{sPX+1}], {r*2048+s*128+o}'] for r in range(nx)]
        W_=[[f'{op} {dst}, s[{sPW}:{sPW+1}], s{sPD+2} offset:{r*6144+seg*2048+o}'] for r in range(nw) for seg in range(3)]
        W_[0]=[f's_mov_b32 s{sPD+2}, {s*64*6144}']+W_[0]
        return W_+R
    vp=opt.get('vp')
    sP=48; sPS=52; sPO=53
    if vp:
        a(f's_cmp_eq_u32 s{sWave}, 3')
        a(f's_cselect_b32 s{sP}, s32, s34\ns_cselect_b32 s{sP+1}, s33, s35\ns_cselect_b32 s{sP+2}, s{sX+2}, s{sW+2}\ns_mov_b32 s{sP+3}, 0x20000')
        a(f's_movk_i32 s{sT}, 6144\ns_cselect_b32 s{sPS}, 2048, s{sT}\ns_cselect_b32 s{sPO}, 4, 3\ns_cselect_b32 s{sKX}, 15, 7')
        a(f's_lshl_b32 s{sT}, s{sMT}, 4\ns_add_u32 s{sT}, s{sT}, s{sHP}\ns_lshl_b32 s{sT}, s{sT}, s{sPO}')
        a(f'v_lshrrev_b32 v{t[4]}, 2, v{lane}\nv_and_b32 v{t[4]}, s{sKX}, v{t[4]}\nv_add_u32 v{t[4]}, s{sT}, v{t[4]}\nv_mul_u32_u24 v{t[4]}, s{sPS}, v{t[4]}')
        a(f'v_and_b32 v{t[5]}, 1, v{lane}\nv_lshl_add_u32 v{t[4]}, v{t[5]}, 6, v{t[4]}\nv_bfe_u32 v{t[5]}, v{lane}, 1, 1\nv_lshl_add_u32 v{vpf}, v{t[5]}, 10, v{t[4]}')
        a(f's_lshl_b32 s{sPO}, s{sWave}, 11\ns_cmp_eq_u32 s{sWave}, 3\ns_cselect_b32 s{sPO}, 0, s{sPO}\ns_add_u32 s{sPO}, s{sPO}, 384')
        a(f's_cmp_ge_u32 s{sWave}, {opt.get("vpn",4)}\ns_cselect_b32 s{sT}, 0x10000000, 0\nv_add_u32 v{vpf}, s{sT}, v{vpf}')
    def vtouch(pos):
        if not vp: return []
        o=[]
        for g,p_ in enumerate(vp):
            if p_==pos: o+=['s_nop 0', f'buffer_load_dword v{vdum}, v{vpf}, {sr(sP,4)}, s{sPO} offen']
        return o
    if opt.get('ptrace'): TR.now('karg')
    for x in vtouch('a'): a(x)
    aux=opt.get('k1aux','')
    krot=opt.get('krot',0)
    sKT=60
    if krot:
        if krot==1: a(f's_lshl_b32 s{sT}, s3, 8')
        elif krot==2: a(f's_lshr_b32 s{sT}, s3, 1\ns_lshl_b32 s{sT}, s{sT}, 9')
        elif krot==3: a(f's_lshl_b32 s{sT}, s3, 8\ns_lshl_b32 s{sT2}, s{sBR}, 7\ns_add_u32 s{sT}, s{sT}, s{sT2}')
        elif krot==4: a(f's_lshl_b32 s{sT}, s{sBR}, 10')
        for i_ in range(16): a(f's_add_u32 s{sKT+i_}, s{sT}, {i_*128}\ns_and_b32 s{sKT+i_}, s{sKT+i_}, 2047')
    def dmaX(s,j):
        if krot: return [f's_add_u32 m0, s{sM0X}, {(s%3)*8192+j*1024}', 's_nop 0', f'buffer_load_dwordx4 v{vgx[j]}, {sr(sX,4)}, s{sKT+s} offen{aux} lds']
        return [f's_add_u32 m0, s{sM0X}, {(s%3)*8192+j*1024}', f's_movk_i32 s{sKX}, {s*128}', f'buffer_load_dwordx4 v{vgx[j]}, {sr(sX,4)}, s{sKX} offen{aux} lds']
    def dmaW(n):
        s,seg=divmod(n,3)
        if krot: return [f's_add_u32 m0, s{sM0W}, {(n%8)*8192}', f's_mul_i32 s{sKW}, s{sKT+s}, 3072', f's_add_u32 s{sKW}, s{sKW}, {seg*2048}', f'buffer_load_dwordx4 v{vgw}, {sr(sW,4)}, s{sKW} offen{aux} lds']
        return [f's_add_u32 m0, s{sM0W}, {(n%8)*8192}', f's_mov_b32 s{sKW}, {s*64*6144+seg*2048}', f'buffer_load_dwordx4 v{vgw}, {sr(sW,4)}, s{sKW} offen{aux} lds']
    lead=opt.get('lead',0)
    if lead:
        a(f's_cmp_lt_u32 s{sWave}, {lead}\ns_cbranch_scc1 K1_LD0\ns_barrier\nK1_LD0:')
    for d in [dmaX(0,0),dmaW(0),dmaX(0,1),dmaW(1),dmaX(0,2),dmaW(2),dmaX(0,3)]:
        for x in d: a(x)
    if lead:
        a(f's_cmp_lt_u32 s{sWave}, {lead}\ns_cbranch_scc0 K1_LD1')
        for d in [dmaX(1,0),dmaW(3),dmaX(1,1),dmaW(4),dmaX(1,2),dmaW(5),dmaX(1,3)]:
            for x in d: a(x)
        a('s_barrier\nK1_LD1:')
    if opt.get('ptrace'):
        TR.now('issued')
        for n_ in (6,5,4,3,2,1,0):
            a(f's_waitcnt vmcnt({n_})'); TR.now(f'vm{n_}')
    for s_ in range(opt.get('pf0',3),pfd):
        for d in pref(s_):
            for x in d: a(x)
    a(f's_and_b32 s{sT}, s{sWave}, 3\ns_mul_i32 s{sT}, s{sT}, 24576')
    a(f'v_and_b32 v{t[2]}, 15, v{lane}')
    a(f'v_lshrrev_b32 v{t[3]}, 4, v{lane}')
    a(f'v_bfe_u32 v{t[4]}, v{lane}, 1, 3')
    a(f'v_xor_b32 v{t[4]}, v{t[4]}, v{t[3]}')
    a(f'v_lshlrev_b32 v{t[4]}, 4, v{t[4]}')
    a(f'v_lshl_add_u32 v{t[4]}, v{t[2]}, 7, v{t[4]}')
    a(f'v_add_u32 v{vxa[0]}, s{sT}, v{t[4]}')
    a(f'v_xor_b32 v{vxa[1]}, 64, v{vxa[0]}')
    a(f'v_lshlrev_b32 v{vst}, 4, v{t[2]}\nv_lshl_add_u32 v{vst}, v{t[3]}, 9, v{vst}')
    a(f'v_bfe_u32 v{t[2]}, v{lane}, 2, 2')
    a(f'v_lshl_add_u32 v{t[4]}, v{t[3]}, 3, v{t[2]}')
    a(f'v_lshlrev_b32 v{t[4]}, 7, v{t[4]}')
    a(f'v_and_b32 v{t[5]}, 3, v{lane}')
    a(f'v_lshl_add_u32 v{t[4]}, v{t[5]}, 3, v{t[4]}')
    a(f'v_lshrrev_b32 v{t[2]}, 1, v{t[2]}')
    a(f'v_lshl_add_u32 v{t[4]}, v{t[2]}, 5, v{t[4]}')
    a(f's_lshr_b32 s{sT}, s{sWave}, 2')
    a(f'v_and_b32 v{t[3]}, 1, v{t[3]}\nv_xor_b32 v{t[3]}, s{sT}, v{t[3]}')
    a(f'v_lshl_add_u32 v{t[4]}, v{t[3]}, 6, v{t[4]}')
    a(f'v_add_u32 v{vwa[0]}, {96*1024}, v{t[4]}')
    a(f'v_xor_b32 v{vwa[1]}, 32, v{vwa[0]}')
    a('s_barrier')
    if lead: a(f's_cmp_lt_u32 s{sWave}, {lead}\ns_cbranch_scc1 K1_LD2')
    for d in [dmaX(1,0),dmaW(3),dmaX(1,1),dmaW(4),dmaX(1,2),dmaW(5),dmaX(1,3)]:
        for x in d: a(x)
    if lead: a('K1_LD2:')
    nb=len(vtouch('b'))//2
    for x in vtouch('b'): a(x)
    cols=[(s,fb) for s in range(3) for fb in range(2)]
    def reads(s,j,b):
        def wr(seg,fb):
            off=((3*s+seg)%8)*8192+j*4096
            return [f'ds_read_b64_tr_b16 {vr(WF[b][seg][fb],2)}, v{vwa[fb]} offset:{off}', f'ds_read_b64_tr_b16 {vr(WF[b][seg][fb]+2,2)}, v{vwa[fb]} offset:{off+512}']
        def xr(m): return [f'ds_read_b128 {vr(XF[b][m],4)}, v{vxa[j]} offset:{(s%3)*8192+m*2048}']
        R=xr(0)
        for c in cols: R+=wr(*c)
        return R+xr(1)+xr(2)+xr(3)
    def mfmas(b, first):
        M=[]
        for m in range(4):
            for seg,fb in (cols if m%2==0 else cols[::-1]):
                A_,B_=(WF[b][seg][fb],XF[b][m]) if seg<2 else (XF[b][m],WF[b][seg][fb])
                d=vr(acc[m][seg][fb],4)
                M.append(f'v_mfma_f32_16x16x32_bf16 {d}, {vr(A_,4)}, {vr(B_,4)}, {"0" if first else d}')
        return M
    a(f's_waitcnt vmcnt({7+nb})\ns_barrier')
    if stamps: stamp_mid(a,0)
    TR.mark('B0')
    for x in reads(0,0,0): a(x)
    pend=[dmaW(6),dmaW(7)]+[dmaX(2,jj) for jj in range(4)]
    rslots=opt.get('k1_rslots',list(range(16)))
    dslots=opt.get('k1_dslots',[[1,5,9],[1,5,9,13]])
    for s in range(16):
        for j in range(2):
            b=j
            if j==1 and s<15:
                assert not pend
                a(f's_waitcnt vmcnt({(6 if s<14 else 0)+len(vtouch(s-1))//2}) lgkmcnt(0)\ns_barrier')
                TR.mark(f'B{s+1}')
                sn=s+1
                if 3*sn+5<48: pend.append(dmaW(3*sn+5))
                if sn+2<16: pend+= [dmaW(3*sn+6),dmaW(3*sn+7)]+[dmaX(sn+2,jj) for jj in range(4)]
            else:
                a('s_waitcnt lgkmcnt(0)')
                TR.commit()
            if j==0: R=reads(s,1,1)
            elif s<15: R=reads(s+1,0,0)
            else: R=[]
            M=mfmas(b, s==0 and j==0)
            fill=[[] for _ in M]
            PF=pref(s+pfd)
            if pf==1: PF=PF if j==opt.get('pfj',0) else []
            else: PF=PF[7*j:7*j+7]
            for q,d in enumerate(PF): fill[q]+=d
            for r_,sl in zip(R,rslots): fill[sl].append(r_)
            ds=dslots[j]
            if s==0 and j==0: ds=[2,5,8,11,14,17]
            for sl in ds:
                if pend: fill[sl]+=pend.pop(0)
            if j==1: fill[opt.get('vpslot',3)]+=vtouch(s)
            for x in interleave(M,fill): a(x)
    assert not pend
    if stamps: stamp_mid(a,1)
    TR.now('mainend')
    a(f's_add_u32 s{sWS}, s36, {opt.get("wsbase",0)<<20}\ns_addc_u32 s{sWS+1}, s37, 0\ns_mov_b32 s{sWS+2}, 0x2000000\ns_mov_b32 s{sWS+3}, 0x20000')
    a(f's_lshr_b32 s{sT}, s{sWave}, 2\ns_lshl_b32 s{sT2}, s{sHP}, 1\ns_add_u32 s{sT}, s{sT}, s{sT2}\ns_lshl_b32 s{sT2}, s{sBR}, 5\ns_add_u32 s{sT}, s{sT}, s{sT2}')
    a(f's_lshl_b32 s{sT}, s{sT}, 6')
    a(f's_lshl_b32 s{sT2}, s{sMT}, 3\ns_add_u32 s{sT}, s{sT}, s{sT2}\ns_and_b32 s{sT2}, s{sWave}, 3\ns_lshl_b32 s{sT2}, s{sT2}, 1\ns_add_u32 s{sT}, s{sT}, s{sT2}')
    a(f's_lshl_b32 s{sKX}, s{sT}, 11')
    a(f's_lshl_b32 s{sKW}, s{sT}, 12\ns_add_u32 s{sKW}, s{sKW}, {WS_KV}')
    a(f's_add_u32 s{sT2}, s{sKW}, 4096')
    a(f's_mov_b32 s{sT}, {QSCALE}')
    if opt.get('k1skip')=='xcd': a(f's_cmp_eq_u32 s{sBR}, 0\ns_cbranch_scc1 K1_SKIP')
    if opt.get('k1skip')=='half': a(f's_bitcmp1_b32 s2, 3\ns_cbranch_scc1 K1_SKIP')
    staux=opt.get('k1st','')
    def st(c,so,off): a(f'buffer_store_dwordx4 {vr(c,4)}, v{vst}, {sr(sWS,4)}, s{so} offen offset:{off}{staux}')
    def pack(c):
        for i in range(4): a(f'v_cvt_pk_bf16_f32 v{c+i}, v{c+2*i}, v{c+2*i+1}')
    for tl in range(2):
        so=sKW if tl==0 else sT2
        for mm in range(2):
            c=acc[2*tl+mm][1][0]; pack(c); st(c,so,mm*256)
        for fb in range(2):
            c=acc[2*tl][2][fb]; pack(c); st(c,so,2048+fb*256)
        for mm in range(2):
            c=acc[2*tl+mm][0][0]
            for i in range(8): a(f'v_mul_f32 v{c+i}, s{sT}, v{c+i}')
            pack(c); st(c,sKX,tl*2048+mm*256)
    a('K1_SKIP:')
    TR.dump(0,36,vdum)
    if stamps: stamp_end(a,0,36,XF[0][0])
    a('K1_END:\ns_endpgm')
    return kernel_header(name)+a.text(), V.n
```

```python
import sys, json, struct, math
from asm import *
from k1 import WS_STAMP, WS_TRACE, Trace, stamp_begin, stamp_end
NAME='concat_heads__sliding_block__softmax_full_mha__prompt_kernel'
WS_QF=0; WS_KV=8<<20; WS_OF=24<<20; WS_FL=32<<20; WS_F2=WS_FL+(256<<10); WS_EP=WS_F2+(512<<10); WS_SIZE=WS_EP+128
def f2u(x): return struct.unpack('<I',struct.pack('<f',x))[0]
QSCALE=f2u((32**-0.5)*math.log2(math.e))
OFFS=88.0
SPIN=1<<20
sX=8; sW=12; sWS=16
sWave=20; sMT=21; sHP=22; sBR=23; sHD=24; sT=25; sT2=26; sT3=27; sW3=28; sKH=29; sSpin=30; sK=31
pX=32; pW=34; pWo=36; pOut=40; pDbg=42; pWS=44
sA=46
vtr=1; lane=2; vl16=3; vst=4; vfl=5; vtag=6; vdum=27
H=208

def build(stamps=False,opt={}):
    a=Asm()
    TR=Trace(a,(stamps and opt.get('trace') is not None) or opt.get('amp'),vtr)
    tail=Asm()
    uid=[0]
    def lab(p):
        uid[0]+=1; return f'{p}{uid[0]}'
    def emit(lst):
        for x in lst: a(x)
    def if_young_skip(name):
        a(f's_cmp_ge_u32 s{sWave}, 4\ns_cbranch_scc1 {name}')
    def if_old_skip(name):
        a(f's_cmp_lt_u32 s{sWave}, 4\ns_cbranch_scc1 {name}')
    def flag_load(dst,soff,smask):
        return f's_mov_b32 exec_lo, s{smask}\ns_mov_b32 exec_hi, 0\nbuffer_load_dwordx2 {vr(dst,2)}, v{vfl}, {sr(sWS,4)}, s{soff} offen sc1\ns_mov_b64 exec, -1'
    def flag_test(dst,smask):
        return f'v_cmp_eq_u64 vcc, {vr(vtag,2)}, {vr(dst,2)}\ns_and_b32 s{sT3}, vcc_lo, s{smask}\ns_cmp_eq_u32 s{sT3}, s{smask}'
    def flag_check(dst,soff,smask):
        L=lab('FC'); D=lab('FD')
        a(flag_test(dst,smask)); a(f's_cbranch_scc0 {L}\n{D}:')
        tail(f'{L}:\ns_mov_b32 s{sSpin}, 0\n{L}x:')
        if opt.get('slp',0): tail(f's_sleep {opt.get("slp",0)}')
        tail(f's_andn2_b32 s{sT3}, s{smask}, s{sT3}')
        tail(flag_load(dst,soff,sT3)); tail('s_waitcnt vmcnt(0)')
        tail(flag_test(dst,smask)); tail(f's_cbranch_scc1 {D}')
        tail(f's_add_u32 s{sSpin}, s{sSpin}, 1\ns_cmp_lt_u32 s{sSpin}, {SPIN}\ns_cbranch_scc1 {L}x\ns_branch {D}')
    def flag_post(soff):
        return f's_mov_b64 exec, 0xff\nbuffer_store_dwordx4 {vr(vtag,4)}, v{vl16}, {sr(sWS,4)}, s{soff} offen sc1\ns_mov_b64 exec, -1'
    a('s_cmp_ge_u32 s2, 256\ns_cbranch_scc1 END')
    if stamps: stamp_begin(a)
    TR.now('start')
    a(f's_bfe_u32 s{sBR}, s2, 0x10003\ns_mul_i32 s{sT}, s{sBR}, 24\ns_add_u32 s4, s0, s{sT}\ns_addc_u32 s5, s1, 0')
    a(f's_load_dwordx4 s[{pX}:{pX+3}], s[4:5], 0\ns_load_dwordx2 s[{pWo}:{pWo+1}], s[4:5], 16\ns_load_dwordx4 s[{pOut}:{pOut+3}], s[0:1], 48\ns_load_dwordx2 s[{pWS}:{pWS+1}], s[0:1], 64')
    a(f'v_lshrrev_b32 v{vdum}, 6, v0\nv_and_b32 v{lane}, 63, v0')
    a(f'v_readfirstlane_b32 s{sWave}, v{vdum}')
    a(f's_bfe_u32 s{sMT}, s2, 0x20004\ns_and_b32 s{sT}, s2, 1\ns_lshl_b32 s{sT}, s{sT}, 2\ns_add_u32 s{sMT}, s{sMT}, s{sT}')
    a(f's_lshr_b32 s{sHP}, s2, 6\ns_and_b32 s{sT}, s2, 6\ns_lshl_b32 s{sT}, s{sT}, 1\ns_add_u32 s{sHP}, s{sHP}, s{sT}')
    a(f's_and_b32 s{sW3}, s{sWave}, 3\ns_lshr_b32 s{sKH}, s{sWave}, 2')
    a(f's_mov_b32 s{sX+2}, 0x400000\ns_mov_b32 s{sX+3}, 0x20000\ns_mov_b32 s{sW+2}, 0x600000\ns_mov_b32 s{sW+3}, 0x20000')
    V=Alloc(8)
    vxa=[V(f'vxa{j}') for j in range(2)]; vwa=[V(f'vwa{j}') for j in range(2)]
    vgx=[V(f'vgx{j}') for j in range(8)]; vgw=[V(f'vgw{j}') for j in range(2)]
    t=[V(f't{i}') for i in range(6)]
    acc=[[[None]*2 for s in range(3)] for m in range(4)]
    for m in range(4):
        for s in range(2):
            for fb in range(2): acc[m][s][fb]=V(f'acc{m}{s}{fb}',4,4)
    for tl in range(2):
        for fb in range(2):
            for mm in range(2): acc[2*tl+mm][2][fb]=V(f'accv{tl}{fb}{mm}',4,4)
    XF=[[V(f'xf{b}{m}',4,4) for m in range(4)] for b in range(2)]
    WF=[[[V(f'wf{b}{s}{fb}',4,4) for fb in range(2)] for s in range(3)] for b in range(2)]
    assert V.n<=H and t[5]==vdum
    sXm=sA; sWm=sA+4; sKX=sA+6; sKW=sA+7
    def g1_dsaddr():
        a(f's_mul_i32 s{sT}, s{sW3}, 24576')
        a(f'v_and_b32 v{t[2]}, 15, v{lane}\nv_lshrrev_b32 v{t[3]}, 4, v{lane}\nv_bfe_u32 v{t[4]}, v{lane}, 1, 3')
        a(f'v_xor_b32 v{t[4]}, v{t[4]}, v{t[3]}\nv_lshlrev_b32 v{t[4]}, 4, v{t[4]}\nv_lshl_add_u32 v{t[4]}, v{t[2]}, 7, v{t[4]}')
        a(f'v_add_u32 v{vxa[0]}, s{sT}, v{t[4]}\nv_xor_b32 v{vxa[1]}, 64, v{vxa[0]}')
        a(f'v_lshlrev_b32 v{vst}, 4, v{t[2]}\nv_lshl_add_u32 v{vst}, v{t[3]}, 9, v{vst}')
        a(f'v_bfe_u32 v{t[2]}, v{lane}, 2, 2\nv_lshl_add_u32 v{t[4]}, v{t[3]}, 3, v{t[2]}\nv_lshlrev_b32 v{t[4]}, 7, v{t[4]}')
        a(f'v_and_b32 v{t[5]}, 3, v{lane}\nv_lshl_add_u32 v{t[4]}, v{t[5]}, 3, v{t[4]}')
        a(f'v_lshrrev_b32 v{t[2]}, 1, v{t[2]}\nv_lshl_add_u32 v{t[4]}, v{t[2]}, 5, v{t[4]}')
        a(f's_xor_b32 s{sT}, s{sKH}, s{sBR}\ns_xor_b32 s{sT}, s{sT}, 1')
        a(f'v_and_b32 v{t[3]}, 1, v{t[3]}\nv_xor_b32 v{t[3]}, s{sT}, v{t[3]}\nv_lshl_add_u32 v{t[4]}, v{t[3]}, 6, v{t[4]}')
        a(f'v_add_u32 v{vwa[0]}, {96*1024}, v{t[4]}\nv_xor_b32 v{vwa[1]}, 32, v{vwa[0]}')
        a(f'v_lshlrev_b32 v{vl16}, 4, v{lane}\nv_and_b32 v{vfl}, 31, v{lane}\nv_lshlrev_b32 v{vfl}, 7, v{vfl}')
        a(f's_lshl_b32 s{sHD}, s{sHP}, 1\ns_add_u32 s{sHD}, s{sHD}, 1\ns_sub_u32 s{sHD}, s{sHD}, s{sBR}')
        a(f's_mov_b32 s{sWS}, s{pWS}\ns_mov_b32 s{sWS+1}, s{pWS+1}\ns_mov_b32 s{sWS+2}, {WS_SIZE}\ns_mov_b32 s{sWS+3}, 0x20000')
    def dmaX(s,jj,first):
        o=[[f's_add_u32 m0, s{sXm+jj}, {(s%3)*8192}']+([f's_movk_i32 s{sKX}, {s*128}'] if first else [])]
        o+=[[f'buffer_load_dwordx4 v{vgx[2*jj]}, {sr(sX,4)}, s{sKX} offen lds'],[f'buffer_load_dwordx4 v{vgx[2*jj+1]}, {sr(sX,4)}, s{sKX} offen offset:1024 lds']]
        return o
    def dmaW(n,i,setk=True):
        s,seg=divmod(n,3)
        return [[f's_add_u32 m0, s{sWm+i}, {(n%8)*8192}']+([f's_mov_b32 s{sKW}, {s*64*6144+seg*2048}'] if setk else []),[f'buffer_load_dwordx4 v{vgw[i]}, {sr(sW,4)}, s{sKW} offen lds']]
    def flat(groups):
        o=[]
        for g in groups:
            o+=g
            if len(g)==1 and 'm0' in g[0]: o.append('s_nop 0')
        return o
    cols=[(s,fb) for s in range(3) for fb in range(2)]
    def reads(s,j,b):
        def wr(seg,fb):
            off=((3*s+seg)%8)*8192+j*4096
            return [f'ds_read_b64_tr_b16 {vr(WF[b][seg][fb],2)}, v{vwa[fb]} offset:{off}', f'ds_read_b64_tr_b16 {vr(WF[b][seg][fb]+2,2)}, v{vwa[fb]} offset:{off+512}']
        def xr(m): return [f'ds_read_b128 {vr(XF[b][m],4)}, v{vxa[j]} offset:{(s%3)*8192+m*2048}']
        R=xr(0)
        for c in cols: R+=wr(*c)
        return R+xr(1)+xr(2)+xr(3)
    def mfmas(b, first):
        M=[]
        for m in range(4):
            for seg,fb in (cols if m%2==0 else cols[::-1]):
                A_,B_=(WF[b][seg][fb],XF[b][m]) if seg<2 else (XF[b][m],WF[b][seg][fb])
                d=vr(acc[m][seg][fb],4)
                M.append(f'v_mfma_f32_16x16x32_bf16 {d}, {vr(A_,4)}, {vr(B_,4)}, {"0" if first else d}')
        return M
    def stage_full(s):
        return dmaX(s,0,True)+dmaW(3*s,0)+dmaW(3*s+1,0)+dmaW(3*s+2,0)+dmaX(s,1,False)+dmaW(3*s,1)+dmaW(3*s+1,1)+dmaW(3*s+2,1)+dmaX(s,2,False)+dmaX(s,3,False)
    def g1_loop(old, extra={}):
        n0=TR.n
        TR.mark('B0')
        emit(reads(0,0,0))
        pend=[]
        if old: pend=dmaW(6,0)+dmaW(6,1,False)+dmaX(2,0,True)+dmaW(7,0)+dmaW(7,1,False)+dmaX(2,1,False)+dmaX(2,2,False)+dmaX(2,3,False)
        for s in range(16):
            for j in range(2):
                if j==1 and s<15:
                    assert not pend
                    a(f's_waitcnt vmcnt({12 if s<14 else 0}) lgkmcnt(0)' if old else ('s_waitcnt vmcnt(0) lgkmcnt(0)' if s==12 else 's_waitcnt lgkmcnt(0)'))
                    if s==12:
                        L=lab('DC'); D=lab('DD')
                        a(f'v_cmp_eq_u32 vcc, 1, v{vtag+1}\ns_cmp_eq_u64 vcc, -1\ns_cbranch_scc0 {L}\n{D}:\nv_not_b32 v{vtag+1}, v{vtag}')
                        tail(f'{L}:\ns_mov_b32 s{sSpin}, 0\n{L}x:\ns_sleep 4\nglobal_load_dwordx2 {vr(vtag,2)}, v{t[4]}, s[{pDbg}:{pDbg+1}] sc1\ns_waitcnt vmcnt(0)')
                        tail(f'v_cmp_eq_u32 vcc, 1, v{vtag+1}\ns_cmp_eq_u64 vcc, -1\ns_cbranch_scc1 {D}')
                        tail(f's_add_u32 s{sSpin}, s{sSpin}, 1\ns_cmp_lt_u32 s{sSpin}, {SPIN}\ns_cbranch_scc1 {L}x\ns_branch {D}')
                    a('s_barrier')
                    if s%2==1: TR.mark(f'B{s+1}')
                    sn=s+1
                    if old:
                        if 3*sn+5<48: pend+=dmaW(3*sn+5,0)+dmaW(3*sn+5,1,False)
                        if sn+2<16: pend+=dmaX(sn+2,0,True)+dmaW(3*sn+6,0)+dmaW(3*sn+7,0)+dmaX(sn+2,1,False)+dmaW(3*sn+6,1)+dmaW(3*sn+7,1)+dmaX(sn+2,2,False)+dmaX(sn+2,3,False)
                else:
                    a('s_waitcnt lgkmcnt(0)'); TR.commit()
                R=reads(s,1,1) if j==0 else (reads(s+1,0,0) if s<15 else [])
                M=mfmas(j, s==0 and j==0)
                fill=[[] for _ in M]
                for q,r_ in enumerate(R): fill[q].append(r_)
                step=1 if (s==0 and j==0) else opt.get('g1_dstep',2)
                for sl in range(0,24,step):
                    if pend: fill[sl]+=pend.pop(0)
                if (s,j) in extra: fill[18]+=extra[(s,j)]
                if (s,j)==(10,0): fill[19]+=[f'v_mov_b32 v{t[4]}, 0']; fill[21]+=[f'global_load_dwordx2 {vr(vtag,2)}, v{t[4]}, s[{pDbg}:{pDbg+1}] sc1']
                emit(interleave(M,fill))
        assert not pend
        TR.now('mainend')
    sQo=sA+8; sKV0=sA+9; sKV1=sA+10; sF1=sA+11
    def g1_store_addr():
        a(f's_xor_b32 s{sT}, s{sHD}, s{sKH}\ns_lshl_b32 s{sT2}, s{sBR}, 5\ns_add_u32 s{sT}, s{sT}, s{sT2}')
        a(f's_lshl_b32 s{sT2}, s{sMT}, 2\ns_add_u32 s{sT2}, s{sT2}, s{sW3}')
        a(f's_lshl_b32 s{sF1}, s{sT}, 5\ns_add_u32 s{sF1}, s{sF1}, s{sT2}')
        a(f's_lshl_b32 s{sQo}, s{sF1}, 12\ns_lshl_b32 s{sKV0}, s{sF1}, 13\ns_add_u32 s{sKV0}, s{sKV0}, {WS_KV}\ns_add_u32 s{sKV1}, s{sKV0}, 4096')
        a(f's_lshl_b32 s{sF1}, s{sF1}, 7\ns_add_u32 s{sF1}, s{sF1}, {WS_FL}')
    def pack(dst,c):
        for i in range(4): a(f'v_cvt_pk_bf16_f32 v{dst+i}, v{c+2*i}, v{c+2*i+1}')
    def qscale(c):
        for i in range(0,8,2): a(f'v_pk_mul_f32 {vr(c+i,2)}, {vr(c+i,2)}, s[{sA+12}:{sA+13}]')
    pieces=[]
    for tl in range(2):
        for mm in range(2): pieces.append((acc[2*tl+mm][1][0],'k',tl,mm))
        for fb in range(2): pieces.append((acc[2*tl][2][fb],'v',tl,fb))
    for tl in range(2):
        for mm in range(2): pieces.append((acc[2*tl+mm][0][0],'q',tl,mm))
    def gstore(reg,kind,tl,sub):
        if kind=='q': so,off=sQo,tl*2048+sub*256
        else: so,off=(sKV0,sKV1)[tl],(2048 if kind=='v' else 0)+sub*256
        return f'buffer_store_dwordx4 {vr(reg,4)}, v{vst}, {sr(sWS,4)}, s{so} offen offset:{off} sc1'
    held=[gstore(H+4*i,*p[1:]) for i,p in enumerate(pieces)]
    if_young_skip('G1Y')
    a(f'v_lshrrev_b32 v{t[2]}, 3, v{lane}\nv_and_b32 v{t[3]}, 7, v{lane}\nv_lshrrev_b32 v{t[4]}, 4, v{lane}')
    a(f's_lshl_b32 s{sT}, s{sMT}, 8\ns_lshl_b32 s{sT2}, s{sWave}, 6\ns_add_u32 s{sT}, s{sT}, s{sT2}')
    a(f'v_add_u32 v{t[5]}, s{sT}, v{t[2]}\nv_lshlrev_b32 v{t[5]}, 11, v{t[5]}')
    a(f'v_xor_b32 v{t[0]}, v{t[3]}, v{t[4]}\nv_lshl_add_u32 v{t[0]}, v{t[0]}, 4, v{t[5]}')
    a(f'v_xor_b32 v{t[1]}, 64, v{t[0]}\nv_add_u32 v{t[1]}, {8*2048-1024}, v{t[1]}')
    a(f's_and_b32 s{sT2}, s{sHP}, 3\ns_mul_i32 s{sT3}, s{sWave}, 24576')
    for jj in range(4):
        a(f's_xor_b32 s{sT}, s{sT2}, {jj}\ns_lshl_b32 s{sXm+jj}, s{sT}, 11\ns_add_u32 s{sXm+jj}, s{sXm+jj}, s{sT3}\ns_lshl_b32 s{sT}, s{sT}, 15')
        a(f'v_add_u32 v{vgx[2*jj]}, s{sT}, v{t[0]}\nv_add_u32 v{vgx[2*jj+1]}, s{sT}, v{t[1]}')
    a(f's_and_b32 s{sT2}, s{sMT}, 1\ns_lshl_b32 s{sT}, s{sWave}, 1\ns_add_u32 s{sT}, s{sT}, s{sT2}')
    a(f's_lshl_b32 s{sWm}, s{sT}, 10\ns_add_u32 s{sWm}, s{sWm}, {96*1024}\ns_xor_b32 s{sWm+1}, s{sWm}, 1024')
    a(f's_lshl_b32 s{sT}, s{sT}, 3\nv_add_u32 v{t[5]}, s{sT}, v{t[2]}\nv_xor_b32 v{t[0]}, 8, v{t[5]}')
    a(f'v_mul_u32_u24 v{t[5]}, 6144, v{t[5]}\nv_mul_u32_u24 v{t[0]}, 6144, v{t[0]}')
    a(f's_lshl_b32 s{sT2}, s{sT2}, 2\nv_and_b32 v{t[4]}, 1, v{t[4]}\nv_lshl_add_u32 v{t[4]}, v{t[4]}, 1, s{sT2}\nv_xor_b32 v{t[4]}, v{t[4]}, v{t[3]}')
    a(f's_lshl_b32 s{sT}, s{sHP}, 7\nv_lshl_add_u32 v{t[4]}, v{t[4]}, 4, s{sT}')
    a(f'v_add_u32 v{vgw[0]}, v{t[4]}, v{t[5]}\nv_xor_b32 v{t[4]}, 64, v{t[4]}\nv_add_u32 v{vgw[1]}, v{t[4]}, v{t[0]}')
    a('s_waitcnt lgkmcnt(0)')
    a(f's_mov_b32 s{sX}, s{pX}\ns_mov_b32 s{sX+1}, s{pX+1}\ns_mov_b32 s{sW}, s{pW}\ns_mov_b32 s{sW+1}, s{pW+1}')
    emit(flat(stage_full(0)))
    g1_dsaddr()
    emit(flat(stage_full(1)))
    a('s_waitcnt vmcnt(14)\ns_barrier')
    ntr0=TR.n
    g1_loop(True)
    g1_store_addr()
    a(f's_mov_b32 s{sA+12}, {QSCALE}\ns_mov_b32 s{sA+13}, {QSCALE}')
    a(f's_lshl_b32 s{sT}, s{sWave}, 13\ns_add_u32 s{sT}, s{sT}, {96*1024}\nv_add_u32 v{t[0]}, s{sT}, v{vst}')
    a(f's_lshl_b32 s{sT}, s{sWave}, 12\ns_add_u32 s{sT}, s{sT}, 8192\nv_add_u32 v{t[1]}, s{sT}, v{vst}')
    def old_epi(X):
        for c,kind,tl,sub in pieces:
            if kind=='q': qscale(c)
            pack(c,c)
            if kind!='q':
                if not X: a(gstore(c,kind,tl,sub))
                a(f'ds_write_b128 v{t[0]}, {vr(c,4)} offset:{tl*4096+(2048 if kind=="v" else 0)+sub*256}')
            else:
                a(f'ds_write_b128 v{t[1]}, {vr(c,4)} offset:{tl*2048+sub*256}')
        if X:
            for c,kind,tl,sub in pieces[:8]: a(gstore(c,kind,tl,sub))
    a(f's_cmp_eq_u32 s{sBR}, 0\ns_cbranch_scc1 YOLD\ns_branch XOLD')
    a('G1Y:')
    ntr1=TR.n; TR.n=ntr0
    a('s_waitcnt lgkmcnt(0)')
    a(f's_mov_b32 s{sX}, s{pX}\ns_mov_b32 s{sX+1}, s{pX+1}\ns_mov_b32 s{sW}, s{pW}\ns_mov_b32 s{sW+1}, s{pW+1}')
    g1_dsaddr()
    a(f's_lshl_b32 s{sT}, s2, 3\ns_add_u32 s{sT}, s{sT}, s{sWave}\ns_cmp_eq_u32 s{sT}, 7\ns_cbranch_scc0 G1Y1')
    a(f's_mov_b32 s{sT}, {WS_EP}\ns_mov_b64 exec, 1')
    a(f'buffer_load_dword v{vgx[0]}, off, {sr(sWS,4)}, s{sT} sc1\nv_mov_b32 v{vgx[1]}, 1\nv_mov_b32 v{vgx[2]}, 0\ns_waitcnt vmcnt(0)')
    a(f'v_add_u32 v{vgx[0]}, 1, v{vgx[0]}')
    a(f'buffer_store_dword v{vgx[0]}, off, {sr(sWS,4)}, s{sT} sc1\nglobal_store_dwordx2 v{vgx[2]}, {vr(vgx[0],2)}, s[{pDbg}:{pDbg+1}] sc1')
    a('s_mov_b64 exec, -1\nG1Y1:')
    vpf=vgx[4]
    a(f's_lshl_b32 s{sT}, s{sMT}, 4\ns_add_u32 s{sT}, s{sT}, s{sHP}\ns_and_b32 s{sT2}, s{sT}, 1\ns_lshr_b32 s{sT}, s{sT}, 1\ns_lshl_b32 s{sT3}, s{sW3}, 6\ns_add_u32 s{sT}, s{sT}, s{sT3}')
    a(f's_mul_i32 s{sT}, s{sT}, 6144\ns_lshl_b32 s{sT2}, s{sT2}, 10\ns_add_u32 s{sT}, s{sT}, s{sT2}\ns_add_u32 s{sT}, s{sT}, 384')
    a(f'v_min_u32 v{t[2]}, 5, v{lane}\nv_lshrrev_b32 v{t[3]}, 1, v{t[2]}\nv_and_b32 v{t[2]}, 1, v{t[2]}\nv_lshlrev_b32 v{t[2]}, 6, v{t[2]}\nv_lshl_add_u32 v{t[2]}, v{t[3]}, 11, v{t[2]}\nv_add_u32 v{vpf}, s{sT}, v{t[2]}')
    ex={}
    for g,pos in enumerate(opt.get('vp',[0,4,8])):
        ex[(pos,0)]=[f's_mov_b32 s{sK}, {(g+1)*4*64*6144}', f'buffer_load_dword v{vdum}, v{vpf}, {sr(sW,4)}, s{sK} offen']
    if opt.get('ctouch',1):
        a(f's_getpc_b64 s[4:5]\ns_lshr_b32 s{sT}, s2, 3\ns_lshl_b32 s{sT}, s{sT}, 11\nv_and_b32 v{vgx[5]}, 31, v{lane}\nv_lshlrev_b32 v{vgx[5]}, 6, v{vgx[5]}\nv_add_u32 v{vgx[5]}, s{sT}, v{vgx[5]}')
        a(f'v_min_u32 v{vgx[5]}, CODE_END-G1Y1-256, v{vgx[5]}')
        Lc=lab('CT')
        ex[(opt.get('ctpos',13),0)]=[f's_cmp_lg_u32 s{sWave}, 4', f's_cbranch_scc1 {Lc}', f'global_load_dword v{vdum}, v{vgx[5]}, s[4:5]', f'{Lc}:']
    a('s_barrier')
    g1_loop(False,ex)
    assert TR.n==ntr1
    def young_epi():
        g1_store_addr()
        a(f's_mov_b32 s{sA+12}, {QSCALE}\ns_mov_b32 s{sA+13}, {QSCALE}')
        for i,(c,kind,tl,sub) in enumerate(pieces):
            if kind=='q': qscale(c)
            pack(H+4*i,c)
    t1early=opt.get('t1early',0)
    if t1early: a('s_barrier')
    young_epi()
    a(f's_cmp_eq_u32 s{sBR}, 0\ns_cbranch_scc1 YPATH\ns_branch XPATH')
    import fz2
    fz2.attention_and_out(a,tail,opt,TR,stamps,dict(lab=lab,emit=emit,if_young_skip=if_young_skip,if_old_skip=if_old_skip,flag_load=flag_load,flag_check=flag_check,flag_test=flag_test,flag_post=flag_post,held=held,sF1=sF1,old_epi=old_epi))
    a('END:\ns_endpgm')
    build.trmap=TR.map
    return '; @launch grid=(256,1,1) block=(512,1,1) lds=163840\n.amdgcn_target "amdgcn-amd-amdhsa--gfx950"\n'+kernel_header(NAME)+a.text()+tail.text()+'CODE_END:\n    s_endpgm\n'+'.section .rodata,"a"\n.p2align 6\n'+kernel_desc(NAME,256)
if __name__=='__main__':
    opt=json.loads(sys.argv[2]) if len(sys.argv)>2 else {}
    ref=open('concat_heads__sliding_block__softmax_full_mha__prompt.s.ref').read().split('\n')
    open(sys.argv[1],'w').write('\n'.join(ref[:10])+'\n'+build(False,opt))
```

```python
from asm import *
from fz import *
def attention_and_out(a,tail,opt,TR,stamps,U):
    lab,emit,if_young_skip,if_old_skip=U['lab'],U['emit'],U['if_young_skip'],U['if_old_skip']
    flag_load,flag_check,flag_post,held,sF1=U['flag_load'],U['flag_check'],U['flag_post'],U['held'],U['sF1']
    V=Alloc(8)
    vka=[V(f'vka{i}') for i in range(3)]; vva=[V(f'vva{i}') for i in range(3)]
    vpoll=V('vpoll',2,2); vkp=V('vkp'); vidx=V('idx'); vos=V('vos'); vkA=vka[0]; vvA=vva[0]
    vgw=[V('vgw0'),V('vgw1')]; vwt=V('vwt')
    t=[V(f't{i}',1,2 if i==0 else 1) for i in range(5)]
    assert V.n<=vdum
    Q=[V(f'q{i}',8,4) for i in range(2)]
    NM=[V(f'nm{i}',16,4) for i in range(2)]
    O=[V(f'o{i}',16,4) for i in range(2)]
    L=[V(f'l{i}',4,4) for i in range(2)]
    S=[V(f's{i}',16,4) for i in range(2)]
    KF=[V(f'k{i}',8,4) for i in range(2)]
    VF=[V(f'v{i}',8,4) for i in range(2)]
    SEL=V('sel',4,4); QA=V('qa',8,4); XM=V('xm',16,4)
    assert V.n<=H, V.n
    sKVB=sA; sKVA=sA+1; sM8=sA+2; sFB=sA+3; sFA=sA+4; sMsk=sA+5; sJQ=sA+6; sQB=sA+7
    sO=sA+14; sF2=sA+15; sPi=sA+16; sOffs=sA+17; sCnt=sA+18; sAll=sA+19; sMskA=sA+20
    sOb=sA+21; sFO=sA+22; sME=sA+23; sML=sA+24; sWb=sA+25; sM4=sA+26; sC0=sA+27; sC1=sA+28; sC2=sA+29; sN=sA+30; sMa=sA+31; sMb=sA+32; sSp=sA+33
    OSL=[65536,98304,131072,0,32768]
    def common_init():
        a(f'v_mov_b32 v{vidx}, 0xdddddddd')
        a(f'v_bfe_u32 v{t[2]}, v{lane}, 2, 1\nv_mul_u32_u24 v{t[3]}, 0x3f80, v{t[2]}\nv_lshl_or_b32 v{SEL+2}, v{t[3]}, 16, v{t[3]}')
        a(f'v_mov_b32 v{SEL+3}, v{SEL+2}\nv_xor_b32 v{SEL}, 0x3f803f80, v{SEL+2}\nv_xor_b32 v{SEL+1}, 0x3f803f80, v{SEL+2}')
        a(f'v_bfe_u32 v{t[3]}, v{lane}, 3, 2\nv_and_b32 v{t[4]}, 35, v{lane}\nv_lshl_add_u32 v{t[4]}, v{t[3]}, 2, v{t[4]}\nv_lshl_add_u32 v{t[4]}, v{t[2]}, 4, v{t[4]}\nv_lshlrev_b32 v{vkp}, 4, v{t[4]}')
        a(f's_lshl_b32 s{sM8}, s{sW3}, 13\ns_lshl_b32 s{sT}, s{sHD}, 18\ns_add_u32 s{sKVA}, s{sT}, {WS_KV}\ns_add_u32 s{sKVB}, s{sT}, {WS_KV+(32<<18)}')
        a(f's_lshl_b32 s{sT}, s{sHD}, 12\ns_add_u32 s{sFA}, s{sT}, {WS_FL}\ns_add_u32 s{sFB}, s{sT}, {WS_FL+32*4096}')
        a(f's_lshr_b32 s{sT}, s{sMT}, 2\ns_lshl_b32 s{sT}, s{sT}, 4\ns_lshl_b32 s{sMsk}, 0xffff, s{sT}\ns_not_b32 s{sAll}, s{sMsk}')
        a(f's_and_b32 s{sT}, s{sHD}, 1\ns_lshl_b32 s{sT}, s{sT}, 4\ns_add_u32 s{sPi}, s{sT}, s{sHP}')
        a(f's_lshl_b32 s{sME}, 0xffff, s{sT}\ns_not_b32 s{sML}, s{sME}')
        a(f's_mov_b32 s{sC0}, {f2u(2.0**-102)}\ns_mov_b32 s{sC1}, 0x7f800000\ns_mov_b32 s{sC2}, {f2u(2.0**120)}\ns_mov_b32 s{sOffs}, {f2u(-OFFS)}')
    def late_init():
        a(f'v_bfe_u32 v{t[2]}, v{lane}, 4, 1\nv_lshrrev_b32 v{t[3]}, 5, v{lane}\nv_and_b32 v{vos}, 15, v{lane}\nv_lshlrev_b32 v{vos}, 4, v{vos}\nv_lshl_add_u32 v{vos}, v{t[2]}, 10, v{vos}\nv_lshl_add_u32 v{vos}, v{t[3]}, 8, v{vos}')
        a(f's_mov_b32 s{sX}, s{pWo}\ns_mov_b32 s{sX+1}, s{pWo+1}\ns_mov_b32 s{sX+2}, 0x200000')
        a(f's_mov_b32 s{sW}, s{pOut}\ns_mov_b32 s{sW+1}, s{pOut+1}\ns_mov_b32 s{sW+2}, 0x800000')
        a(f's_lshl_b32 s{sT}, s{sBR}, 6\ns_lshl_b32 s{sT2}, s{sHP}, 2\ns_add_u32 s{sT}, s{sT}, s{sT2}\ns_add_u32 s{sT}, s{sT}, s{sW3}')
        a(f's_lshl_b32 s{sOb}, s{sT}, 16\ns_add_u32 s{sOb}, s{sOb}, {WS_OF}\ns_lshl_b32 s{sFO}, s{sT}, 12\ns_add_u32 s{sFO}, s{sFO}, {WS_F2}')
        a(f's_and_b32 s{sT}, s{sHD}, 1\ns_lshl_b32 s{sWb}, s{sT}, 16\ns_lshl_b32 s{sSp}, s{sT}, 15\ns_lshl_b32 s{sM4}, s{sW3}, 12')
        a(f'v_lshrrev_b32 v{t[2]}, 4, v{lane}\nv_and_b32 v{t[3]}, 15, v{lane}\nv_lshlrev_b32 v{t[4]}, 1, v{t[2]}\nv_xor_b32 v{t[3]}, v{t[3]}, v{t[4]}')
        a(f's_lshr_b32 s{sT}, s{sW3}, 1\ns_lshl_b32 s{sT}, s{sT}, 6\ns_and_b32 s{sT2}, s{sW3}, 1\ns_lshl_b32 s{sT2}, s{sT2}, 4\ns_add_u32 s{sT}, s{sT}, s{sT2}')
        a(f'v_add_u32 v{t[2]}, s{sT}, v{t[2]}\nv_lshlrev_b32 v{t[2]}, 11, v{t[2]}\nv_lshl_add_u32 v{vgw[0]}, v{t[3]}, 4, v{t[2]}')
        a(f's_lshl_b32 s{sT}, s{sMT}, 8\nv_add_u32 v{vgw[0]}, s{sT}, v{vgw[0]}')
        a(f'v_xor_b32 v{vgw[1]}, 128, v{vgw[0]}\nv_add_u32 v{vgw[1]}, {4*2048-1024}, v{vgw[1]}')
        a(f's_and_b32 s{sT2}, s{sHP}, 3\ns_lshl_b32 s{sT2}, s{sT2}, 2\ns_add_u32 s{sT2}, s{sT2}, s{sW3}\ns_lshl_b32 s{sT2}, s{sT2}, 17\ns_add_u32 s{sT}, s{sT}, s{sT2}')
        a(f'v_lshrrev_b32 v{t[2]}, 2, v{lane}\nv_and_b32 v{t[3]}, 3, v{lane}\nv_lshlrev_b32 v{t[3]}, 6, v{t[3]}\nv_lshl_add_u32 v{t[2]}, v{t[2]}, 11, v{t[3]}\nv_add_u32 v{vwt}, s{sT}, v{t[2]}')
    def wo_touch(i): return [f's_mov_b32 s{sK}, {i*16*2048}', f'buffer_load_dword v{vdum}, v{vwt}, {sr(sX,4)}, s{sK} offen']
    def dma32(ldsbase, soff_setup):
        o=list(soff_setup)+[f's_add_u32 s{sK}, s{sK}, s{sM8}']
        for i in range(2):
            o+=[f's_add_u32 m0, s{sM8}, {ldsbase+i*4096}']
            o+=[f's_add_u32 s{sK}, s{sK}, 4096' if i else 's_nop 0']
            o+=[f'buffer_load_dwordx4 v{vl16}, {sr(sWS,4)}, s{sK} offen offset:{c*1024} sc1 lds' for c in range(4)]
        return o
    def dmaB(s,slots,X):
        if X and 1<=s<=3: su=[f's_and_b32 s{sK}, s{sMT}, 3', f's_cmp_ge_u32 s{sK}, {s}', f's_cselect_b32 s{sK}, {s-1}, {s}', f's_and_b32 s{sT3}, s{sMT}, 4', f's_or_b32 s{sK}, s{sK}, s{sT3}']
        else: su=[f's_and_b32 s{sK}, s{sMT}, 4', f's_xor_b32 s{sK}, s{sK}, {s}']
        return dma32(slots[s%3],su+[f's_lshl_b32 s{sK}, s{sK}, 15', f's_add_u32 s{sK}, s{sK}, s{sKVB}'])
    def dmaA(i,area):
        if i==0: su=[f's_max_u32 s{sK}, s{sMT}, 1', f's_sub_u32 s{sK}, s{sK}, 1', f's_lshl_b32 s{sK}, s{sK}, 15']
        else: su=[f's_lshl_b32 s{sK}, s{sMT}, 15']
        return dma32(area+i*32768,su+[f's_add_u32 s{sK}, s{sK}, s{sKVA}'])
    def out_issue(s):
        b=OSL[s%5]; sp=s&7; par=s>>3
        o=[f's_add_u32 m0, s{sM4}, {b+16384}', f's_xor_b32 s{sK}, s{sWb}, {(par<<16)+sp*128*2048}']
        o+=[f'buffer_load_dwordx4 v{vgw[0]}, {sr(sX,4)}, s{sK} offen lds', f'buffer_load_dwordx4 v{vgw[1]}, {sr(sX,4)}, s{sK} offen offset:1024 lds']
        o+=[f's_add_u32 s{sK}, s{sK}, {8*2048-2048}']
        o+=[f'buffer_load_dwordx4 v{vgw[0]}, {sr(sX,4)}, s{sK} offen offset:2048 lds', f'buffer_load_dwordx4 v{vgw[1]}, {sr(sX,4)}, s{sK} offen offset:3072 lds']
        o+=[f's_add_u32 m0, s{sM4}, {b}', f's_xor_b32 s{sK}, s{sSp}, {s*4096}', f's_add_u32 s{sK}, s{sK}, s{sOb}']
        o+=[f'buffer_load_dwordx4 v{vl16}, {sr(sWS,4)}, s{sK} offen offset:{c*1024} sc1 lds' for c in range(4)]
        return o
    def QK(sb,kb,q,c):
        return [f'v_mfma_f32_32x32x16_bf16 {vr(sb,16)}, {vr(kb,4)}, {vr(q,4)}, {c}', f'v_mfma_f32_32x32x16_bf16 {vr(sb,16)}, {vr(kb+4,4)}, {vr(q+4,4)}, {vr(sb,16)}']
    def PV(o,vb,sb,c): return f'v_smfmac_f32_32x32x32_bf16 {vr(o,16)}, {vr(vb+4*c,4)}, {vr(sb+8*c,8)}, v{vidx}'
    def SM(l,sb,c): return f'v_smfmac_f32_16x16x64_bf16 {vr(l,4)}, {vr(SEL,4)}, {vr(sb+8*c,8)}, v{vidx}'
    def maxtree(dst, sb, first):
        o=[]
        if first:
            o.append(f'v_max3_f32 v{dst}, v{sb}, v{sb+1}, v{sb+2}')
            for i in range(3,15,2): o.append(f'v_max3_f32 v{dst}, v{dst}, v{sb+i}, v{sb+i+1}')
            o.append(f'v_max_f32 v{dst}, v{dst}, v{sb+15}')
        else:
            for i in range(0,16,2): o.append(f'v_max3_f32 v{dst}, v{dst}, v{sb+i}, v{sb+i+1}')
        return o
    def finish_max(A,mx,tmp,nm,offs,fill=True):
        A(f'v_mov_b32 v{tmp}, v{mx}\ns_nop 1\nv_permlane32_swap_b32 v{tmp}, v{mx}\ns_nop 1\nv_max_f32 v{mx}, v{mx}, v{tmp}')
        A(f'v_sub_f32 v{nm}, {offs}, v{mx}')
        if fill:
            A(f'v_mov_b32 v{nm+1}, v{nm}')
            for i in range(2,16,2): A(f'v_mov_b64 {vr(nm+i,2)}, {vr(nm,2)}')
    def zero(A,r,n):
        for i in range(0,n,2): A(f'v_mov_b64 {vr(r+i,2)}, 0')
    def make_xm(A):
        A(f'v_and_b32 v{t[2]}, 31, v{lane}\nv_lshrrev_b32 v{t[3]}, 5, v{lane}\nv_lshlrev_b32 v{t[3]}, 4, v{t[3]}\nv_sub_u32 v{t[2]}, v{t[2]}, v{t[3]}\nv_cvt_f32_i32 v{t[2]}, v{t[2]}')
        A(f'v_mul_f32 v{t[2]}, {f2u(2.0**100)}, v{t[2]}')
        for r in range(16): A(f'v_add_f32 v{XM+r}, {f2u((0.5-r)*2.0**100)}, v{t[2]}')
    def slot(sc, prev, nxt, cur, F):
        E=[f'v_exp_f32 v{sc+i}, v{sc+i}' for i in range(16)]
        def g(k):
            x=F.get(k,[])
            if callable(x): return [x]
            return x
        seq=E[0:2]
        if prev: seq+=[prev[0]]+g('S1')+E[2:3]+[prev[1]]+g('P1')
        else: seq+=g('S1')+E[2:3]+g('P1')
        seq+=E[3:6]
        if nxt: seq+=[nxt[0]]+g('Q0')+E[6:9]+[nxt[1]]+g('Q1')
        else: seq+=g('Q0')+E[6:9]+g('Q1')
        seq+=E[9:12]+[cur[0]]+g('S0')+E[12:13]+[cur[1]]+g('P0')+E[13:16]
        for x in seq:
            if callable(x): x()
            else: a(x)
    def finalize(o,l,q,dst,isA):
        FB=lab('FB'); RT=lab('RT')
        a(f'v_rcp_f32 v{t[0]}, v{l}\nv_cmp_gt_f32 s[4:5], s{sC2}, v{l}')
        for i in range(0,16,2): a(f'v_pk_mul_f32 {vr(o+i,2)}, {vr(o+i,2)}, {vr(t[0],2)} op_sel_hi:[1,0]')
        a(f'v_pk_mul_f32 {vr(t[0],2)}, {vr(o,2)}, {vr(o,2)}')
        for i in range(2,16,2): a(f'v_pk_fma_f32 {vr(t[0],2)}, {vr(o+i,2)}, {vr(o+i,2)}, {vr(t[0],2)}')
        a(f'v_add_f32 v{t[0]}, v{t[0]}, v{t[1]}\nv_sqrt_f32 v{t[1]}, v{t[0]}\nv_cmp_gt_f32 s[6:7], s{sC1}, v{t[0]}\nv_mul_f32 v{t[1]}, v{t[1]}, v{l}\nv_cmp_lt_f32 vcc, s{sC0}, v{t[1]}')
        a(f's_and_b64 s[4:5], s[4:5], s[6:7]\ns_and_b64 s[4:5], s[4:5], vcc\ns_cmp_eq_u64 s[4:5], -1\ns_cbranch_scc0 {FB}\n{RT}:')
        for i in range(8): a(f'v_cvt_pk_bf16_f32 v{dst+i}, v{o+2*i}, v{o+2*i+1}')
        for c in range(2): a(f'buffer_store_dwordx4 {vr(dst+4*c,4)}, v{vos}, {sr(sWS,4)}, s{sO} offen offset:{c*512} sc1')
        T=tail; C=NM[0]; nm=NM[1]
        T(f'{FB}:')
        make_xm(T)
        if isA: T(f's_min_u32 s{sN}, s{sJQ}, 8\ns_add_u32 s{sN}, s{sN}, 1')
        else: T(f's_mov_b32 s{sN}, 64')
        T(f'v_mov_b32 v{t[4]}, 0xff800000\nv_mov_b32 v{nm}, 0')
        for ps in range(2):
            LP=lab('FL')
            if ps==1:
                finish_max(T,t[4],t[2],nm,'0',fill=False); zero(T,o,16); zero(T,l,4)
            T(f's_mov_b32 s{sCnt}, 0\n{LP}:')
            if isA:
                T(f's_sub_u32 s{sT}, s{sJQ}, s{sCnt}\ns_lshl_b32 s{sT}, s{sT}, 12\ns_add_u32 s{sT}, s{sT}, s{sKVA}')
                T(f's_mov_b32 s{sMa}, 0\ns_mov_b32 s{sMb}, {f2u(2.0**100)}\ns_cmp_eq_u32 s{sCnt}, 0\ns_cselect_b32 s{sMa}, 1.0, s{sMa}\ns_cselect_b32 s{sMb}, 0, s{sMb}')
                T(f's_cmp_eq_u32 s{sCnt}, 8\ns_cselect_b32 s{sMa}, -1.0, s{sMa}\ns_cselect_b32 s{sMb}, 0, s{sMb}')
            else:
                T(f's_lshl_b32 s{sT}, s{sCnt}, 12\ns_add_u32 s{sT}, s{sT}, s{sKVB}\ns_mov_b32 s{sMa}, 0\ns_mov_b32 s{sMb}, {f2u(2.0**100)}')
            for c in range(2): T(f'buffer_load_dwordx4 {vr(KF[0]+4*c,4)}, v{vkp}, {sr(sWS,4)}, s{sT} offen offset:{c*1024} sc1')
            if ps==1:
                for c in range(2): T(f'buffer_load_dwordx4 {vr(VF[0]+4*c,4)}, v{vl16}, {sr(sWS,4)}, s{sT} offen offset:{2048+c*1024} sc1')
            T(f'v_mov_b32 v{t[3]}, s{sMb}')
            for r in range(16): T(f'v_fma_f32 v{C+r}, v{XM+r}, s{sMa}, v{t[3]}\nv_min_f32 v{C+r}, v{C+r}, v{nm}')
            T('s_waitcnt vmcnt(0)\ns_nop 0')
            for x in QK(S[0],KF[0],q,vr(C,16)): T(x)
            T('s_nop 11')
            if ps==0:
                for x in maxtree(t[4],S[0],False): T(x)
            else:
                for i in range(16): T(f'v_exp_f32 v{S[0]+i}, v{S[0]+i}')
                T('s_nop 1')
                for c in range(2): T(SM(l,S[0],c)); T(PV(o,VF[0],S[0],c))
            T(f's_add_u32 s{sCnt}, s{sCnt}, 1\ns_cmp_lt_u32 s{sCnt}, s{sN}\ns_cbranch_scc1 {LP}')
        T(f's_nop 11\nv_rcp_f32 v{t[0]}, v{l}\ns_nop 0')
        for i in range(0,16,2): T(f'v_pk_mul_f32 {vr(o+i,2)}, {vr(o+i,2)}, {vr(t[0],2)} op_sel_hi:[1,0]')
        T(f's_branch {RT}')
    def o_addr(br_o, sblk):
        a(f's_lshl_b32 s{sT}, s{sMT}, 3\ns_add_u32 s{sT}, s{sT}, s{sblk}\ns_lshl_b32 s{sT}, s{sT}, 5\ns_add_u32 s{sT}, s{sT}, s{sPi}')
        a(f's_lshl_b32 s{sO}, s{sT}, 11\ns_add_u32 s{sO}, s{sO}, {WS_OF+(br_o<<22)}\ns_lshl_b32 s{sF2}, s{sT}, 7\ns_add_u32 s{sF2}, s{sF2}, {WS_F2+(br_o<<18)}')
    def old_block(fn):
        def f():
            Lb=lab('OB'); if_young_skip(Lb); fn(); a(f'{Lb}:')
        return f
    def young_block(fn):
        def f():
            Lb=lab('YB'); if_old_skip(Lb); fn(); a(f'{Lb}:')
        return f
    def phaseB(X):
        slots=[98304,131072,65536] if X else [0,32768,131072]
        area=0 if X else 65536
        a(f's_lshl_b32 s{sT}, s{sKH}, 14')
        for i in range(3):
            a(f's_add_u32 s{sT2}, s{sT}, {slots[i]}\nv_add_u32 v{vka[i]}, s{sT2}, v{vkp}\nv_add_u32 v{vva[i]}, s{sT2}, v{vl16}')
        def rdK(buf,T): return [f'ds_read_b128 {vr(KF[buf]+4*c,4)}, v{vka[(T//4)%3]} offset:{(T%4)*4096+c*1024}' for c in range(2)]
        def rdV(buf,T): return [f'ds_read_b128 {vr(VF[buf]+4*c,4)}, v{vva[(T//4)%3]} offset:{(T%4)*4096+2048+c*1024}' for c in range(2)]
        a(f'v_xor_b32 v{t[4]}, 0x4000, v{vka[0]}')
        if X:
            a(f's_lshl_b32 s{sT}, s{sW3}, 1\ns_add_u32 s{sT}, s{sT}, s{sKH}\ns_lshl_b32 s{sT}, s{sT}, 11\ns_add_u32 s{sT}, s{sT}, 8192\nv_add_u32 v{t[2]}, s{sT}, v{vl16}\nv_xor_b32 v{t[3]}, 0x800, v{t[2]}')
            a('s_waitcnt lgkmcnt(0)')
            zero(a,O[0],40)
            if opt.get('t1early',0):
                Ly=lab('T1y'); Le=lab('T1e')
                if_young_skip(Ly); a(f's_barrier\ns_branch {Le}\n{Ly}:\ns_setprio 1\n{Le}:')
            else:
                young_block(lambda: a('s_setprio 1'))(); a('s_barrier')
            TR.now('T1')
            for i in range(2):
                for c in range(2): a(f'ds_read_b128 {vr(Q[i]+4*c,4)}, v{t[2+i]} offset:{c*1024}')
        else:
            zero(a,O[0],40)
            a('s_waitcnt vmcnt(2)\ns_barrier')
            TR.now('YB0')
        emit(rdK(0,0))
        for c in range(2): a(f'ds_read_b128 {vr(KF[1]+4*c,4)}, v{t[4]} offset:{c*1024}')
        emit(rdV(0,0))
        assert O[1]==O[0]+16 and L[0]==O[1]+16 and L[1]==L[0]+4
        if not X:
            old_block(lambda: emit(dmaB(1,slots,X)))()
        hq=list(held); xh=opt.get('xh',[3,3,3,3,0,0,0,0,0,0])
        def hx(i):
            if X and xh[i]:
                hs=[hq.pop(0) for _ in range(xh[i])]
                young_block(lambda: emit(hs))()
        if X: old_block(lambda: (a('s_waitcnt vmcnt(0)'),a(flag_post(sF1))))()
        hx(0)
        a('s_waitcnt lgkmcnt(4)')
        emit(QK(S[0],KF[0],Q[0],'0')+QK(S[1],KF[0],Q[1],'0'))
        a('s_waitcnt lgkmcnt(2)')
        emit(QK(NM[0],KF[1],Q[0],'0')+QK(NM[1],KF[1],Q[1],'0'))
        hx(1)
        if X: late_init()
        else: a('s_nop 7')
        hx(2)
        emit(maxtree(t[0],S[0],True)+maxtree(t[1],S[1],True)+maxtree(t[0],NM[0],False)+maxtree(t[1],NM[1],False))
        finish_max(a,t[0],t[2],NM[0],f's{sOffs}')
        a('s_nop 1')
        emit(QK(S[0],KF[0],Q[0],vr(NM[0],16)))
        finish_max(a,t[1],t[2],NM[1],f's{sOffs}')
        hx(3)
        TR.now('standin')
        NT=32
        def barrier_block(s):
            def f():
                if X and s==1:
                    def pre():
                        assert not hq
                        TR.now('xp0'); a(flag_load(vpoll,sFB,sMsk)); a('s_waitcnt vmcnt(0)'); TR.now('xpl1')
                        if opt.get('xyf',3)==6: a(flag_post(sF1))
                        flag_check(vpoll,sFB,sMsk); TR.now('xpok')
                        emit(dmaB(1,slots,X)); a('s_setprio 0\ns_waitcnt vmcnt(0)')
                    young_block(pre)()
                    a('s_waitcnt lgkmcnt(0)')
                elif s==1: a('s_waitcnt vmcnt(0) lgkmcnt(0)'); a(flag_post(sF2))
                else:
                    def pre():
                        a(f's_waitcnt vmcnt({8 if s==7 else 0})')
                        if s==3: flag_check(vpoll,sFB,sAll)
                        if s==6: flag_check(vpoll,sFA,sMskA) if X else flag_check(vpoll,sFO,sME)
                    if s in (3,6): old_block(pre)(); a('s_waitcnt lgkmcnt(0)')
                    elif (not X) and s==2: old_block(pre)(); a('s_waitcnt lgkmcnt(0)')
                    else: a(f's_waitcnt vmcnt({8 if s==7 else 0}) lgkmcnt(0)')
                a('s_barrier')
                TR.mark(f'B{s}')
                def post():
                    if s+1<8: emit(dmaB(s+1,slots,X))
                    if s==2: a(flag_load(vpoll,sFB,sAll))
                    if s==5: a(flag_load(vpoll,sFA,sMskA) if X else flag_load(vpoll,sFO,sME))
                    if 2<=s<=5 and opt.get('wot',1): emit(wo_touch(s-2))
                    if s>=6: emit(dmaA(s-6,area) if X else out_issue(s-6))
                old_block(post)()
            return f
        if X: a(f's_lshl_b32 s{sT}, s{sMT}, 2\ns_lshl_b32 s{sMskA}, 15, s{sT}\ns_lshr_b32 s{sT}, s{sMskA}, 4\ns_or_b32 s{sMskA}, s{sMskA}, s{sT}')
        for T in range(NT):
            kb=T&1
            for qb in range(2):
                F={}
                if qb==0:
                    prev=(SM(L[1],S[1],1),PV(O[1],VF[kb^1],S[1],1)) if T>0 else None
                    nxt=QK(S[1],KF[kb],Q[1],vr(NM[1],16))
                    R=rdK(kb^1,T+1) if T+1<NT else []
                    if T%4==3 and T+1<NT: F['S1']=barrier_block(T//4+1)
                else:
                    prev=(SM(L[0],S[0],1),PV(O[0],VF[kb],S[0],1))
                    nxt=QK(S[0],KF[kb^1],Q[0],vr(NM[0],16)) if T+1<NT else None
                    R=rdV(kb^1,T+1) if T+1<NT else []
                F.setdefault('S1',['s_waitcnt lgkmcnt(0)',TR.commit])
                F['P1']=R[0:1]; F['Q0']=R[1:2]
                F['Q1']=['s_nop 0']; F['S0']=['s_nop 0']; F['P0']=['s_nop 0']
                n=2*T+qb
                if X and n<6 and xh[4+n]: F['P0']=(lambda n=n: hx(4+n))
                if X and n<6 and n==opt.get('xyf',3):
                    assert sum(xh[4+n:])==0
                    F['P0']=young_block(lambda: (a('s_waitcnt vmcnt(0)'),a(flag_post(sF1))))
                if not X:
                    yh=opt.get('yh',[2,9,12]); kk=12//len(yh)
                    if n in yh:
                        hs=held[yh.index(n)*kk:(yh.index(n)+1)*kk]
                        F['P0']=young_block(lambda hs=hs: emit(hs))
                    if n==yh[-1]+opt.get('yhd',5): F['P0']=young_block(lambda: (a('s_waitcnt vmcnt(0)'),a(flag_post(sF1))))
                if opt.get('prio',1) and n>=6 and n%2==0:
                    F['Q1']=[f's_setprio {3-((n-6)%8)//2}' if n<54 else f's_setprio {max(0,3-(n-54)//3)}']
                if X and T==29 and qb==0:
                    F['Q1']=[f's_lshl_b32 s{sT}, s{sHD}, 6',f's_lshl_b32 s{sT2}, s{sMT}, 3',f's_add_u32 s{sT}, s{sT}, s{sT2}',f's_add_u32 s{sT}, s{sT}, s{sWave}',f's_lshl_b32 s{sT}, s{sT}, 11']
                    F['S0']=[f'buffer_load_dwordx4 {vr(QA,4)}, v{vl16}, {sr(sWS,4)}, s{sT} offen sc1']
                    F['P0']=[f'buffer_load_dwordx4 {vr(QA+4,4)}, v{vl16}, {sr(sWS,4)}, s{sT} offen offset:1024 sc1']
                slot(S[qb],prev,nxt,(SM(L[qb],S[qb],0),PV(O[qb],VF[kb],S[qb],0)),F)
        a('s_nop 1')
        a(SM(L[1],S[1],1)); a(PV(O[1],VF[1],S[1],1))
        a('s_setprio 0')
        TR.now('Bmain')
        a(f's_lshl_b32 s{sT}, s{sWave}, 12\ns_add_u32 s{sT}, s{sT}, {slots[0]}\nv_add_u32 v{t[2]}, s{sT}, v{vl16}\nv_xor_b32 v{t[3]}, 0x4000, v{t[2]}')
        a(f's_lshl_b32 s{sT}, s{sWave}, 8\ns_add_u32 s{sT}, s{sT}, {slots[2]}\nv_lshl_add_u32 v{t[4]}, v{lane}, 2, s{sT}\nv_xor_b32 v{t[0]}, 0x400, v{t[4]}')
        a(f's_lshl_b32 s{sQB}, s{sW3}, 1\ns_add_u32 s{sQB}, s{sQB}, s{sKH}')
        o_addr(1,sQB)
        a(f'ds_write_b32 v{t[4]}, v{L[1]}')
        for i in range(4): a(f'ds_write_b128 v{t[2]}, {vr(O[1]+4*i,4)} offset:{i*1024}')
        a('s_waitcnt vmcnt(0) lgkmcnt(0)\ns_barrier')
        a(f'ds_read_b32 v{L[1]}, v{t[0]}')
        for i in range(4): a(f'ds_read_b128 {vr(O[1]+4*i,4)}, v{t[3]} offset:{i*1024}')
        if X: make_xm(a)
        a('s_waitcnt lgkmcnt(0)')
        if X: a('s_barrier')
        a(f'v_add_f32 v{L[0]}, v{L[0]}, v{L[1]}')
        for i in range(0,16,2): a(f'v_pk_add_f32 {vr(O[0]+i,2)}, {vr(O[0]+i,2)}, {vr(O[1]+i,2)}')
        finalize(O[0],L[0],Q[0],Q[1],False)
        if X: young_block(lambda: (a('s_waitcnt vmcnt(0)'),a(flag_post(sF2))))()
        TR.now('Bend')
    def phaseA(X):
        area=0 if X else 65536
        slotsY=[0,32768,131072]
        if X: a(f's_mov_b32 s{sQB}, s{sWave}')
        else: a(f's_sub_u32 s{sT}, 11, s{sWave}\ns_cmp_lt_u32 s{sWave}, 4\ns_cselect_b32 s{sQB}, s{sWave}, s{sT}')
        a(f's_lshl_b32 s{sJQ}, s{sMT}, 3\ns_add_u32 s{sJQ}, s{sJQ}, s{sQB}')
        a(f's_lshl_b32 s{sT}, s{sQB}, 12\ns_add_u32 s{sT}, s{sT}, {area}\nv_add_u32 v{vkA}, s{sT}, v{vkp}\nv_add_u32 v{vvA}, s{sT}, v{vl16}')
        def rdKA(buf,tt): return [f'ds_read_b128 {vr(KF[buf]+4*c,4)}, v{vkA} offset:{(8-tt)*4096+c*1024}' for c in range(2)]
        def rdVA(buf,tt): return [f'ds_read_b128 {vr(VF[buf]+4*c,4)}, v{vvA} offset:{(8-tt)*4096+2048+c*1024}' for c in range(2)]
        CD=NM[1]; NA=NM[0]; OA=O[1]; LA=L[0]
        if not X:
            a(f's_lshl_b32 s{sT}, s{sQB}, 11\ns_add_u32 s{sT}, s{sT}, 8192\nv_add_u32 v{t[0]}, s{sT}, v{vl16}')
            make_xm(a)
            a('s_waitcnt lgkmcnt(0)')
            for r in range(16): a(f'v_min_f32 v{CD+r}, 0, v{XM+r}')
            zero(a,OA,20)
            if opt.get('ypost',0)==0: old_block(lambda: (a('s_waitcnt vmcnt(0)'),a(flag_post(sF1))))()
            if opt.get('t1early',0): old_block(lambda: a('s_barrier'))()
            else: a('s_barrier')
            TR.now('T1')
            for c in range(2): a(f'ds_read_b128 {vr(QA+4*c,4)}, v{t[0]} offset:{c*1024}')
        emit(rdKA(0,0)+rdVA(0,0))
        if X:
            emit(rdKA(1,1))
            for r in range(16): a(f'v_min_f32 v{CD+r}, 0, v{XM+r}')
            zero(a,OA,20)
        a('s_waitcnt lgkmcnt(0)')
        emit(QK(S[0],KF[0],QA,vr(CD,16)))
        lf=opt.get('lf',1)
        def sync(p):
            def f():
                Lk=lab('YK')
                if lf: a(f's_cmp_lg_u32 s{sQB}, {p-1}\ns_cbranch_scc1 {Lk}')
                def pre():
                    Ls=lab('YS')
                    a(f's_cmp_eq_u32 s{sMT}, 0\ns_cbranch_scc1 {Ls}')
                    a(flag_load(vpoll,sFA,sMskA)); a('s_waitcnt vmcnt(0)'); flag_check(vpoll,sFA,sMskA)
                    emit(dmaA(0,area)); a('s_waitcnt vmcnt(0)')
                    a(f'{Ls}:')
                if not lf: old_block(pre)()
                elif p<=4: pre()
                a('s_barrier')
                if lf and p>4: a('s_setprio 1')
                n_=TR.n; TR.now('YAsync'); TR.n=n_
                a(f'{Lk}:')
            return f
        if X:
            emit(QK(S[1],KF[1],QA,'0'))
            a('s_nop 9')
            emit(maxtree(t[4],S[0],True))
        else:
            if opt.get('ypost',0)==1: old_block(lambda: (a('s_waitcnt vmcnt(0)'),a(flag_post(sF1))))()
            a(f's_lshl_b32 s{sT}, s{sMT}, 2\ns_add_u32 s{sT}, s{sT}, s{sW3}\ns_sub_u32 s{sT}, s{sT}, 4\ns_lshl_b32 s{sMskA}, 1, s{sT}')
            sync(1)()
            emit(rdKA(1,1))
            late_init()
            a('s_waitcnt lgkmcnt(0)')
            emit(QK(S[1],KF[1],QA,'0'))
            emit(maxtree(t[4],S[0],True))
            a('s_nop 1')
        Lm=lab('AM')
        a(f's_cmp_eq_u32 s{sJQ}, 0\ns_cbranch_scc1 {Lm}')
        emit(maxtree(t[4],S[1],False))
        a(f'{Lm}:')
        finish_max(a,t[4],t[2],NA,f's{sOffs}')
        for r in range(16): a(f'v_min_f32 v{CD+r}, v{NA}, v{XM+r}')
        a('s_nop 1')
        emit(QK(S[0],KF[0],QA,vr(CD,16)))
        if X: a(f's_mov_b32 s{sMsk}, s{sF2}')
        o_addr(0,sQB)
        a('s_nop 3')
        if X: TR.now('Aprep')
        for tt in range(9):
            b=tt&1
            F={}
            prev=(SM(LA,S[b^1],1),PV(OA,VF[b^1],S[b^1],1)) if tt>0 else None
            nxt=None
            if tt<8:
                Lp=lab('AP'); Lr=lab('AR')
                F['S1']=[f's_cmp_eq_u32 s{sJQ}, {tt}', f's_cbranch_scc1 {Lp}', f'{Lr}:']
                tail(f'{Lp}:\ns_nop 7\nv_mov_b32 v{NA}, {f2u(-2.0**120)}\nv_mov_b32 v{NA+1}, v{NA}')
                for r in range(2,16,2): tail(f'v_mov_b64 {vr(NA+r,2)}, {vr(NA,2)}')
                tail(f's_branch {Lr}')
                F['P1']=['s_waitcnt lgkmcnt(0)']
                if tt==7: F['P1']+=[f'v_min_f32 v{CD+r}, v{NA}, -v{XM+r}' for r in range(16)]
                nxt=QK(S[b^1],KF[b^1],QA,vr(CD if tt==7 else NA,16))
                RV=rdVA(b^1,tt+1); RK=rdKA(b,tt+2) if tt+2<=8 else ['s_nop 0','s_nop 0']
                F['Q0']=RV[0:1]; F['Q1']=RV[1:2]; F['S0']=RK[0:1]; F['P0']=RK[1:2]
            else:
                F['P1']=['s_waitcnt lgkmcnt(0)']
            if (not X) and lf and tt<=6: F['S0']=[sync(tt+2)]+F['S0']
            if X and tt==opt.get('xbflag',2): F['P0']=F.get('P0',[])+[old_block(lambda: (a('s_waitcnt vmcnt(0)'),a(flag_post(sMsk))))]
            if not X:
                p=opt.get('ypoll',6)
                if tt==p: F['P0']=F.get('P0',[])+[flag_load(vpoll,sFB,sMsk)]
                if tt==p+1:
                    def blk():
                        a('s_waitcnt vmcnt(0)')
                        flag_check(vpoll,sFB,sMsk)
                        a(f's_lshl_b32 s{sT}, s{sHD}, 5\ns_lshl_b32 s{sT2}, s{sMT}, 2\ns_add_u32 s{sT}, s{sT}, s{sT2}\ns_add_u32 s{sT}, s{sT}, s{sW3}\ns_lshl_b32 s{sT}, s{sT}, 1\ns_add_u32 s{sT}, s{sT}, s{sKH}')
                        a(f's_lshl_b32 s{sT}, s{sT}, 11\ns_add_u32 s{sT}, s{sT}, {WS_QF+(32<<17)}\ns_xor_b32 s{sT2}, s{sT}, 0x800')
                        for i in range(2):
                            for c in range(2): a(f'buffer_load_dwordx4 {vr(Q[i]+4*c,4)}, v{vl16}, {sr(sWS,4)}, s{(sT,sT2)[i]} offen offset:{c*1024} sc1')
                        young_block(lambda: emit(dmaB(0,slotsY,False)))()
                    F['P0']=F.get('P0',[])+[blk]
            slot(S[b],prev,nxt,(SM(LA,S[b],0),PV(OA,VF[b],S[b],0)),F)
        a('s_nop 1')
        a(SM(LA,S[0],1)); a(PV(OA,VF[0],S[0],1))
        a('s_nop 11')
        finalize(OA,LA,QA,S[1],True)
        if not X: a('s_setprio 0'); TR.n+=1
        TR.now('Aend')
    n0=TR.n
    a('XOLD:'); U['old_epi'](True); a('XPATH:'); common_init()
    TR.path='X'
    phaseB(True); phaseA(True)
    def xpre():
        a(flag_load(vpoll,sFO,sME)); a('s_waitcnt vmcnt(0)'); a(flag_post(sF2)); flag_check(vpoll,sFO,sME)
        emit(out_issue(0)); emit(out_issue(1))
        a('s_waitcnt vmcnt(8)\ns_barrier'); emit(out_issue(2)); a('s_branch OUTL')
    old_block(xpre)()
    a('s_branch OUTC')
    nX=TR.n; TR.n=n0
    a('YOLD:'); U['old_epi'](False); a('YPATH:'); common_init()
    TR.path='Y'
    phaseA(False); phaseB(False)
    TR.n=max(TR.n,nX); TR.path='XY'
    if_young_skip('OUTC')
    a('s_barrier'); emit(out_issue(2)); a('s_waitcnt vmcnt(8)'); a(flag_post(sF2))
    a('OUTL:')
    def loader_tail(A_emit, s0, issued):
        for s in range(s0,16):
            A_emit([f's_waitcnt vmcnt({8*(issued-s)})','s_barrier'])
            if issued<15:
                issued+=1; A_emit(out_issue(issued))
        A_emit(['s_branch LEND'])
    for s in range(1,7):
        a('s_waitcnt vmcnt(8)\ns_barrier')
        if s==5: a(flag_load(vpoll,sFO,sML))
        if s<6: emit(out_issue(s+2))
    Lv=lab('LV')
    a(U['flag_test'](vpoll,sML)); a(f's_cbranch_scc0 {Lv}')
    emit(out_issue(8)); loader_tail(emit,7,8)
    a(f'{Lv}:')
    a(flag_load(vpoll,sFO,sML)); a('s_waitcnt vmcnt(0)\ns_barrier')
    flag_check(vpoll,sFO,sML)
    emit(out_issue(8)); emit(out_issue(9)); loader_tail(emit,8,9)
    a('LEND:')
    if stamps: TR.dump(0,pWS,vdum)
    a('s_endpgm')
    a('OUTC:')
    V=Alloc(8)
    voa=[V(f'voa{i}') for i in range(3)]; vwa=[[V(f'vwa{i}{f}') for f in range(4)] for i in range(3)]
    vo=V('vo'); u=[V(f'u{i}') for i in range(3)]
    V.n=max(V.n,28)
    acc=[[V(f'acc{m}{f}',4,4) for f in range(4)] for m in range(4)]
    V.n=max(V.n,KF[0])
    OFr=[[V(f'of{b}{m}',4,4) for m in range(4)] for b in range(2)]
    WF=[[V(f'wf{b}{f}',4,4) for f in range(4)] for b in range(2)]
    assert V.n<=256
    bases=[65536,131072,0]; sel=[(0,0),(0,32768),(1,0),(2,0),(2,32768)]
    a(f's_and_b32 s{sT}, s{sW3}, 1\ns_lshl_b32 s{sT}, s{sT}, 13\nv_add_u32 v{voa[2]}, s{sT}, v{vl16}')
    a(f'v_bfe_u32 v{u[0]}, v{lane}, 2, 3\nv_lshrrev_b32 v{u[1]}, 5, v{lane}\nv_lshl_add_u32 v{u[1]}, v{u[1]}, 4, v{u[0]}\nv_lshlrev_b32 v{u[1]}, 8, v{u[1]}')
    a(f'v_and_b32 v{u[2]}, 3, v{lane}\nv_lshl_add_u32 v{u[1]}, v{u[2]}, 3, v{u[1]}')
    a(f's_lshr_b32 s{sT}, s{sW3}, 1\ns_lshl_b32 s{sT}, s{sT}, 2\nv_xor_b32 v{u[0]}, s{sT}, v{u[0]}\nv_lshl_add_u32 v{u[1]}, v{u[0]}, 5, v{u[1]}')
    a(f'v_add_u32 v{voa[0]}, {bases[0]}, v{voa[2]}')
    for f in range(4): a(f'v_xor_b32 v{vwa[0][f]}, {bases[0]+16384+32*f}, v{u[1]}')
    def reads(s,j,b):
        bi,o0=sel[s%5]
        def wr(f):
            off=o0+j*8192
            return [f'ds_read_b64_tr_b16 {vr(WF[b][f],2)}, v{vwa[bi][f]} offset:{off}', f'ds_read_b64_tr_b16 {vr(WF[b][f]+2,2)}, v{vwa[bi][f]} offset:{off+2048}']
        def xr(m): return [f'ds_read_b128 {vr(OFr[b][m],4)}, v{voa[bi]} offset:{o0+(m>>1)*4096+j*2048+(m&1)*1024}']
        return xr(0)+wr(0)+wr(1)+wr(2)+wr(3)+xr(1)+xr(2)+xr(3)
    def mfmas(b,first):
        M=[]
        for m in range(4):
            for f in (range(4) if m%2==0 else range(3,-1,-1)):
                d=vr(acc[m][f],4)
                M.append(f'v_mfma_f32_16x16x32_bf16 {d}, {vr(WF[b][f],4)}, {vr(OFr[b][m],4)}, {"0" if first else d}')
        return M
    a('s_barrier')
    TR.mark('OB0')
    emit(reads(0,0,0))
    a(f'v_add_u32 v{voa[1]}, {bases[1]}, v{voa[2]}')
    for i in (1,2):
        for f in range(4): a(f'v_xor_b32 v{vwa[i][f]}, {bases[i]+16384+32*f}, v{u[1]}')
    a(f'v_and_b32 v{u[0]}, 15, v{lane}\nv_lshlrev_b32 v{vo}, 12, v{u[0]}\nv_bfe_u32 v{u[0]}, v{lane}, 4, 1\nv_lshl_add_u32 v{vo}, v{u[0]}, 5, v{vo}\nv_lshrrev_b32 v{u[0]}, 5, v{lane}\nv_lshl_add_u32 v{vo}, v{u[0]}, 4, v{vo}')
    a(f's_lshl_b32 s{sOb}, s{sHP}, 1\ns_and_b32 s{sT}, s{sW3}, 1\ns_add_u32 s{sOb}, s{sOb}, s{sT}\ns_lshl_b32 s{sOb}, s{sOb}, 18')
    a(f's_lshl_b32 s{sT}, s{sBR}, 11\ns_add_u32 s{sOb}, s{sOb}, s{sT}\ns_lshl_b32 s{sT}, s{sMT}, 8\ns_add_u32 s{sOb}, s{sOb}, s{sT}\ns_lshr_b32 s{sT}, s{sW3}, 1\ns_lshl_b32 s{sT}, s{sT}, 7\ns_add_u32 s{sOb}, s{sOb}, s{sT}')
    for s in range(16):
        for j in range(2):
            a('s_waitcnt lgkmcnt(0)')
            TR.commit()
            if j==1 and s<15:
                a('s_barrier')
                if s%2==1: TR.mark(f'OB{s+1}')
            R=reads(s,1,1) if j==0 else (reads(s+1,0,0) if s<15 else [])
            M=mfmas(j,s==0 and j==0)
            fill=[[r] for r in R]+[[] for _ in range(16-len(R))]
            if 2*s+j==opt.get('oflag',3): fill[13]+=['s_waitcnt vmcnt(0)',flag_post(sF2)]
            emit(interleave(M,fill))
    TR.now('omain')
    a('s_nop 7')
    ost=opt.get('k3st',' sc1')
    for m in range(4):
        for p in range(2):
            c0=acc[m][2*p]
            for i in range(4): a(f'v_cvt_pk_bf16_f32 v{c0+i}, v{c0+2*i}, v{c0+2*i+1}')
            a(f's_add_u32 s{sT}, s{sOb}, {m*16*4096}\ns_nop 0')
            a(f'v_permlane16_swap_b32 v{c0}, v{c0+2}\nv_permlane16_swap_b32 v{c0+1}, v{c0+3}')
            a(f'buffer_store_dwordx4 {vr(c0,4)}, v{vo}, {sr(sW,4)}, s{sT} offen offset:{p*64}{ost}')
    if opt.get('amp'):
        role,k0,k1,mult=opt['amp']
        a('s_waitcnt vmcnt(0)'); TR.now('end')
        f=lambda k: [i for i in TR.map[role] if TR.map[role][i]==k][-1]
        a(f's_cmp_lg_u32 s{sBR}, {1 if role=="X" else 0}\ns_cbranch_scc1 END')
        if opt.get('ampwg') is not None: a(f's_and_b32 s4, s2, 0xf7\ns_cmp_lg_u32 s4, {opt["ampwg"]}\ns_cbranch_scc1 END')
        a(f's_nop 1\nv_readlane_b32 s4, v{vtr}, {f(k0)}\nv_readlane_b32 s5, v{vtr}, {f(k1)}\ns_nop 3\ns_sub_u32 s4, s5, s4\ns_min_u32 s4, s4, 200000\ns_mul_i32 s4, s4, {mult}\ns_lshr_b32 s4, s4, 1')
        a('s_memrealtime s[6:7]\ns_waitcnt lgkmcnt(0)\nAMPL:\ns_memrealtime s[46:47]\ns_waitcnt lgkmcnt(0)\ns_sub_u32 s46, s46, s6\ns_cmp_lt_u32 s46, s4\ns_cbranch_scc1 AMPL')
    if stamps:
        a('s_waitcnt vmcnt(0)'); TR.now('end'); TR.dump(0,pWS,vdum); stamp_end(a,0,pWS,OFr[0][0])
```

```python
from asm import *
from fy import *
def rest_of_kernel(U):
    a,tail,opt,TR,stamps=U['a'],U['tail'],U['opt'],U['TR'],U['stamps']
    lab,emit,if_young,if_old,old_block,young_block=U['lab'],U['emit'],U['if_young'],U['if_old'],U['old_block'],U['young_block']
    flag_load,flag_test,flag_check,flag_post,zero,held,old_epi=U['flag_load'],U['flag_test'],U['flag_check'],U['flag_post'],U['zero'],U['held'],U['old_epi']
    def ldws(so,c): return f'buffer_load_dwordx4 v{vl16}, {sr(sWS,4)}, s{so} offen offset:{c*1024} sc1 lds'
    def chunkB(s,X):
        if X and 1<=s<=3: su=[f's_and_b32 s{sK}, s{sMT}, 3', f's_cmp_ge_u32 s{sK}, {s}', f's_cselect_b32 s{sK}, {s-1}, {s}', f's_and_b32 s{sT3}, s{sMT}, 4', f's_or_b32 s{sK}, s{sK}, s{sT3}']
        else: su=[f's_and_b32 s{sK}, s{sMT}, 4', f's_xor_b32 s{sK}, s{sK}, {s}']
        return su+[f's_lshl_b32 s{sK}, s{sK}, 15', f's_add_u32 s{sK}, s{sK}, s{sKVB}']
    def chunkA(i):
        su=[f's_max_u32 s{sK}, s{sMT}, 1', f's_sub_u32 s{sK}, s{sK}, 1', f's_lshl_b32 s{sK}, s{sK}, 15'] if i==0 else [f's_lshl_b32 s{sK}, s{sMT}, 15']
        return su+[f's_add_u32 s{sK}, s{sK}, s{sKVA}']
    def dma4(lds,su):
        o=su+[f's_add_u32 s{sK}, s{sK}, s{sM8}']
        for i in range(2):
            o+=[f's_add_u32 m0, s{sM8}, {lds+i*4096}', f's_add_u32 s{sK}, s{sK}, 4096' if i else 's_nop 0']+[ldws(sK,c) for c in range(4)]
        return o
    def dma8(lds,su):
        return [(su+[f's_add_u32 s{sK}, s{sK}, s{sMw}', f's_add_u32 m0, s{sMw}, {lds}'],ldws(sK,0))]+[([],ldws(sK,c)) for c in range(1,4)]
    def ldW(i,off): return f'buffer_load_dwordx4 v{vgo[i]}, {sr(sWo,4)}, s{sK} offen offset:{off} lds'
    def outW(s):
        b=OSL[s%5]
        return [([f's_add_u32 m0, s{sM4}, {b+16384}', f's_xor_b32 s{sK}, s{sWb}, {((s>>3)<<16)+(s&7)*128*2048}'],ldW(0,0)),([],ldW(1,1024)),([f's_add_u32 s{sK}, s{sK}, {8*2048-2048}'],ldW(0,2048)),([],ldW(1,3072))]
    def outO(s):
        b=OSL[s%5]
        return [([f's_add_u32 m0, s{sM4}, {b}', f's_xor_b32 s{sK}, s{sSp}, {s*4096}', f's_add_u32 s{sK}, s{sK}, s{sOb}'],ldws(sK,0))]+[([],ldws(sK,c)) for c in range(1,4)]
    def outHalf(s):
        b=OSL[s%5]
        return [([f's_add_u32 m0, s{sPm}, {b+16384}', f's_xor_b32 s{sK}, s{sWb}, {(s&7)*128*2048}', f's_add_u32 s{sK}, s{sK}, s{sPw}'],ldW(0,0)),([],ldW(1,1024)),
                ([f's_add_u32 m0, s{sPm}, {b}', f's_xor_b32 s{sK}, s{sSp}, {s*4096}', f's_add_u32 s{sK}, s{sK}, s{sPo}'],ldws(sK,0)),([],ldws(sK,1))]
    def fl(items):
        o=[]
        for su,v in items: o+=su+[v]
        return o
    def QK(sb,kb,q,c):
        return [f'v_mfma_f32_32x32x16_bf16 {vr(sb,16)}, {vr(kb,4)}, {vr(q,4)}, {c}', f'v_mfma_f32_32x32x16_bf16 {vr(sb,16)}, {vr(kb+4,4)}, {vr(q+4,4)}, {vr(sb,16)}']
    def PV(o,vb,sb,c): return f'v_smfmac_f32_32x32x32_bf16 {vr(o,16)}, {vr(vb+4*c,4)}, {vr(sb+8*c,8)}, v{vidx}'
    def SM(l,sb,c): return f'v_smfmac_f32_16x16x64_bf16 {vr(l,4)}, {vr(SEL,4)}, {vr(sb+8*c,8)}, v{vidx}'
    def maxtree(dst, sb, first):
        o=[]
        if first:
            o.append(f'v_max3_f32 v{dst}, v{sb}, v{sb+1}, v{sb+2}')
            for i in range(3,15,2): o.append(f'v_max3_f32 v{dst}, v{dst}, v{sb+i}, v{sb+i+1}')
            o.append(f'v_max_f32 v{dst}, v{dst}, v{sb+15}')
        else:
            for i in range(0,16,2): o.append(f'v_max3_f32 v{dst}, v{dst}, v{sb+i}, v{sb+i+1}')
        return o
    def finish_max(A,mx,tmp,nm,offs,fill=True):
        A(f'v_mov_b32 v{tmp}, v{mx}\ns_nop 1\nv_permlane32_swap_b32 v{tmp}, v{mx}\ns_nop 1\nv_max_f32 v{mx}, v{mx}, v{tmp}')
        A(f'v_sub_f32 v{nm}, {offs}, v{mx}')
        if fill:
            A(f'v_mov_b32 v{nm+1}, v{nm}')
            for i in range(2,16,2): A(f'v_mov_b64 {vr(nm+i,2)}, {vr(nm,2)}')
    def slot(sc, prev, nxt, cur, F):
        E=[f'v_exp_f32 v{sc+i}, v{sc+i}' for i in range(16)]
        g=lambda k: F.get(k,[])
        seq=E[0:2]
        if prev: seq+=[prev[0]]+g('S1')+E[2:3]+[prev[1]]+g('P1')
        else: seq+=g('S1')+E[2:3]+g('P1')
        seq+=E[3:6]
        if nxt: seq+=[nxt[0]]+g('Q0')+E[6:9]+[nxt[1]]+g('Q1')
        else: seq+=g('Q0')+E[6:9]+g('Q1')
        seq+=E[9:12]+[cur[0]]+g('S0')+E[12:13]+[cur[1]]+g('P0')+E[13:16]
        emit(seq)
    def finalize(o,l,q,dst,isA):
        FB=lab('FB'); RT=lab('RT')
        a(f'v_rcp_f32 v{t[0]}, v{l}\nv_cmp_gt_f32 s[4:5], s{sC2}, v{l}')
        a(f'v_maximum3_f32 v{t[1]}, abs(v{o}), abs(v{o+1}), 0')
        for i in range(2,16,2): a(f'v_maximum3_f32 v{t[1]}, abs(v{o+i}), abs(v{o+i+1}), v{t[1]}')
        a(f'v_cmp_gt_f32 s[6:7], s{sC1}, v{t[1]}\nv_cmp_lt_f32 vcc, s{sC0}, v{t[1]}')
        a(f's_and_b64 s[4:5], s[4:5], s[6:7]\ns_and_b64 s[4:5], s[4:5], vcc\ns_cmp_eq_u64 s[4:5], -1\ns_cbranch_scc0 {FB}\n{RT}:')
        for i in range(16): a(f'v_mul_f32 v{o+i}, v{t[0]}, v{o+i}')
        for i in range(8): a(f'v_cvt_pk_bf16_f32 v{dst+i}, v{o+2*i}, v{o+2*i+1}')
        for c in range(2): a(f'buffer_store_dwordx4 {vr(dst+4*c,4)}, v{vos}, {sr(sWS,4)}, s{sOA if isA else sO} offen offset:{c*512} sc1')
        T=tail; C=NM[0]; nm=t[1]
        T(f'{FB}:')
        if isA: T(f's_min_u32 s{sN}, s{sJQ}, 8\ns_add_u32 s{sN}, s{sN}, 1')
        else: T(f's_mov_b32 s{sN}, 64')
        T(f'v_mov_b32 v{t[4]}, 0xff800000\nv_mov_b32 v{nm}, 0')
        for ps in range(2):
            LP=lab('FL')
            if ps==1:
                finish_max(T,t[4],t[2],nm,'0',fill=False); zero(T,o,16); zero(T,l,4)
            T(f's_mov_b32 s{sCnt}, 0\n{LP}:')
            if isA:
                T(f's_sub_u32 s{sT}, s{sJQ}, s{sCnt}\ns_lshl_b32 s{sT}, s{sT}, 12\ns_add_u32 s{sT}, s{sT}, s{sKVA}')
                T(f's_mov_b32 s{sMa}, 0\ns_mov_b32 s{sMb}, {f2u(2.0**100)}\ns_cmp_eq_u32 s{sCnt}, 0\ns_cselect_b32 s{sMa}, 1.0, s{sMa}\ns_cselect_b32 s{sMb}, 0, s{sMb}')
                T(f's_cmp_eq_u32 s{sCnt}, 8\ns_cselect_b32 s{sMa}, -1.0, s{sMa}\ns_cselect_b32 s{sMb}, 0, s{sMb}')
            else:
                T(f's_lshl_b32 s{sT}, s{sCnt}, 12\ns_add_u32 s{sT}, s{sT}, s{sKVB}\ns_mov_b32 s{sMa}, 0\ns_mov_b32 s{sMb}, {f2u(2.0**100)}')
            for c in range(2): T(f'buffer_load_dwordx4 {vr(KF[0]+4*c,4)}, v{vkp}, {sr(sWS,4)}, s{sT} offen offset:{c*1024} sc1')
            if ps==1:
                for c in range(2): T(f'buffer_load_dwordx4 {vr(VF[0]+4*c,4)}, v{vl16}, {sr(sWS,4)}, s{sT} offen offset:{2048+c*1024} sc1')
            T(f'v_mov_b32 v{t[3]}, s{sMb}')
            for r in range(16): T(f'v_fma_f32 v{C+r}, v{XM+r}, s{sMa}, v{t[3]}\nv_min_f32 v{C+r}, v{C+r}, v{nm}')
            T('s_waitcnt vmcnt(0)\ns_nop 0')
            for x in QK(S[0],KF[0],q,vr(C,16)): T(x)
            T('s_nop 11')
            if ps==0:
                for x in maxtree(t[4],S[0],False): T(x)
            else:
                for i in range(16): T(f'v_exp_f32 v{S[0]+i}, v{S[0]+i}')
                T('s_nop 1')
                for c in range(2): T(SM(l,S[0],c)); T(PV(o,VF[0],S[0],c))
            T(f's_add_u32 s{sCnt}, s{sCnt}, 1\ns_cmp_lt_u32 s{sCnt}, s{sN}\ns_cbranch_scc1 {LP}')
        T(f's_nop 11\nv_rcp_f32 v{t[0]}, v{l}\ns_nop 0')
        T(f's_branch {RT}')
    def o_addr(br_o):
        if br_o: o=[f's_lshl_b32 s{sT}, s{sMT}, 2', f's_add_u32 s{sT}, s{sT}, s{sW3}', f's_lshl_b32 s{sT}, s{sT}, 1', f's_add_u32 s{sT}, s{sT}, s{sKH}', f's_lshl_b32 s{sT}, s{sT}, 5']
        else: o=[f's_lshl_b32 s{sT}, s{sJQ}, 5']
        return o+[f's_add_u32 s{sT}, s{sT}, s{sPi}', f's_lshl_b32 s{sO}, s{sT}, 11', f's_add_u32 s{sO}, s{sO}, {WS_OF+(br_o<<22)}', f's_lshl_b32 s{sF2}, s{sT}, 7', f's_add_u32 s{sF2}, s{sF2}, {WS_F2+(br_o<<18)}']
    W0=['s_waitcnt vmcnt(0)']
    def phaseB(X):
        ring=96*K if X else 0
        area=0
        def rdK(buf,T): return [f'ds_read_b128 {vr(KF[buf]+4*c,4)}, v{vka[0]} offset:{((T//4)&1)*32768+(T%4)*4096+c*1024}' for c in range(2)]
        def rdV(buf,T): return [f'ds_read_b128 {vr(VF[buf]+4*c,4)}, v{vva[0]} offset:{((T//4)&1)*32768+(T%4)*4096+2048+c*1024}' for c in range(2)]
        if not X: a(f's_lshl_b32 s{sT}, s{sKH}, 14\nv_add_u32 v{vka[0]}, s{sT}, v{vkp}\nv_add_u32 v{vva[0]}, s{sT}, v{vl16}')
        a(f'v_xor_b32 v{t[4]}, 0x4000, v{vka[0]}')
        zero(a,O[0],40)
        if X:
            a('s_waitcnt lgkmcnt(0)')
            young_block(['s_setprio 1'])()
            a('s_barrier'); TR.now('T1')
            for i in range(2):
                for c in range(2): a(f'ds_read_b128 {vr(Q[i]+4*c,4)}, v{vq[i]} offset:{c*1024}')
        else:
            a('s_waitcnt vmcnt(2)\ns_barrier'); TR.now('YB0')
        emit(rdK(0,0))
        for c in range(2): a(f'ds_read_b128 {vr(KF[1]+4*c,4)}, v{t[4]} offset:{c*1024}')
        emit(rdV(0,0))
        hq=list(held); xh=opt.get('xh',[3,3,3,3])+[0]*6
        def hx(i):
            if X and xh[i]: young_block([hq.pop(0) for _ in range(xh[i])])()
        if X: old_block((U['urg'] if opt.get('xurg')=='T1' else [])+W0+[flag_post(sF1)])()
        hx(0)
        a('s_waitcnt lgkmcnt(4)')
        emit(QK(S[0],KF[0],Q[0],'0'))
        a('s_waitcnt lgkmcnt(2)')
        emit(QK(NM[0],KF[1],Q[0],'0')+QK(S[1],KF[0],Q[1],'0')+QK(NM[1],KF[1],Q[1],'0'))
        hx(1)
        a('s_nop 4')
        emit(maxtree(t[0],S[0],True)+maxtree(t[0],NM[0],False))
        hx(2)
        finish_max(a,t[0],t[2],NM[0],f's{sOffs}')
        mt_=maxtree(t[1],S[1],True)+maxtree(t[1],NM[1],False)
        emit(mt_[:2]+QK(S[0],KF[0],Q[0],vr(NM[0],16))+mt_[2:])
        finish_max(a,t[1],t[2],NM[1],f's{sOffs}')
        hx(3)
        TR.now('standin')
        NT=32
        wot=lambda i: [([f's_mov_b32 s{sK2}, {i*16*2048}'],f'buffer_load_dword v{vdum}, v{vwt}, {sr(sWo,4)}, s{sK2} offen')]
        otouch=[([f's_and_b32 s{sK2}, s{sMT}, 3', f's_lshl_b32 s{sK2}, s{sK2}, 1', f's_add_u32 s{sK2}, s{sK2}, s{sKH}', f's_lshl_b32 s{sK2}, s{sK2}, 12', f's_add_u32 s{sK2}, s{sK2}, s{sSp}', f's_add_u32 s{sK2}, s{sK2}, s{sOb}', f'v_lshlrev_b32 v{t[0]}, 2, v{vl16}'],
                 f'buffer_load_dword v{vdum}, v{t[0]}, {sr(sWS,4)}, s{sK2} offen sc1')]
        st=lambda s: dma8(ring+(s&1)*32768,chunkB(s,X))
        iv={}; late={}
        for s in range(0,7): iv[s]=st(s+1); late[s]=0
        iv[7]=[]; late[7]=0
        iv[2]=[([],flag_load(sFB,sOth))]+iv[2]
        if opt.get('wot',1):
            for s in (3,4): iv[s]=iv[s]+wot(s-3); late[s]=1
        if X:
            iv[0]=[]
            iv[5]=[([],flag_load(sFA,sMskA))]+iv[5]
            iv[6]+=dma8(area,chunkA(0)); late[6]=4
            iv[7]=dma8(area+32768,chunkA(1))+[([],f'buffer_load_dwordx4 {vr(QA+4*c,4)}, v{vl16}, {sr(sWS,4)}, s{sQAo} offen offset:{c*1024} sc1') for c in range(2)]
            chk={3:flag_check(sFB,sOth),6:flag_check(sFA,sMskA)}
        else:
            iv[4]=[([],flag_load(sFO,sME))]+iv[4]
            iv[5]+=outHalf(0)[:3]; late[5]=3
            iv[6]=outHalf(0)[3:]+iv[6]+outHalf(1)[:2]+(otouch if opt.get('otouch',1) else []); late[6]=len(iv[6])-5
            iv[7]=outHalf(1)[2:]+outHalf(2)
            chk={3:flag_check(sFB,sOth),5:flag_check(sFO,sME)}
        yh=opt.get('yh',[11,12,13]); kk=12//len(yh)
        pend=list(iv[0])
        for T in range(NT):
            kb=T&1
            for qb in range(2):
                n=2*T+qb
                F={k:[] for k in ('S1','P1','Q0','Q1','S0','P0')}
                if qb==0:
                    prev=(SM(L[1],S[1],1),PV(O[1],VF[kb^1],S[1],1)) if T>0 else None
                    nxt=QK(S[1],KF[kb],Q[1],vr(NM[1],16))
                    R=rdK(kb^1,T+1) if T+1<NT else []
                else:
                    prev=(SM(L[0],S[0],1),PV(O[0],VF[kb],S[0],1))
                    nxt=QK(S[0],KF[kb^1],Q[0],vr(NM[0],16)) if T+1<NT else None
                    R=rdV(kb^1,T+1) if T+1<NT else []
                if n%8==6 and n<62:
                    s=n//8+1
                    assert not pend
                    if X and s==1:
                        F['S1']+=[young_block([lambda: TR.now('xp0'),flag_load(sFB,sMsk)]+W0+([flag_post(sF1)] if opt.get('xyf',3)==6 else [])+[flag_check(sFB,sMsk),lambda: TR.now('xpok')]+dma4(ring+32768,chunkB(1,X))+['s_setprio 0']+W0),'s_waitcnt lgkmcnt(0)']
                    elif (not X) and s==2:
                        nh=sum(kk for y in yh if 10<=y<14)
                        Ly=lab('W'); F['S1']+=[f's_waitcnt vmcnt({nh}) lgkmcnt(0)',old_block(W0)]
                    else:
                        F['S1']+=[f's_waitcnt vmcnt({late[s-1]}) lgkmcnt(0)']
                    F['S1']+=['s_barrier',lambda s=s: TR.mark(f'B{s}')]
                    if s in chk: F['Q0']+=[chk[s]]
                    if (not X) and s==1: F['Q0']+=[flag_post(sF2A)]
                    if (not X) and s==3: F['Q0']+=[young_block([flag_post(sF1)])]
                    pend=list(iv[s])
                elif (not X) and n==58:
                    F['S1']+=['s_waitcnt lgkmcnt(0)','s_barrier']
                else:
                    F['S1']+=['s_waitcnt lgkmcnt(0)',TR.commit]
                F['P1']+=R[0:1]; F['Q0']=R[1:2]+F['Q0']
                if pend:
                    su,v=pend.pop(0)
                    h=(len(su)+1)//2
                    F['Q1']+=su[:h]; F['S0']+=su[h:]; F['P0']+=[v]
                if X and n<6 and xh[4+n]: F['P0']+=[young_block([hq.pop(0) for _ in range(xh[4+n])])]
                if X and n<6 and n==opt.get('xyf',3): F['P0']+=[young_block(W0+[flag_post(sF1)])]
                if (not X) and n in yh:
                    assert 10<=n<14
                    F['P0']+=[young_block(held[yh.index(n)*kk:(yh.index(n)+1)*kk])]
                if opt.get('prio',1) and n%2==0 and (n>=6 or not X):
                    F['Q1']+=[f's_setprio {3-((n+2)%8)//2}' if n<54 else f's_setprio {max(0,3-(n-54)//3)}']
                for k in ('Q1','S0','P0'):
                    if not F[k]: F[k]=['s_nop 0']
                slot(S[qb],prev,nxt,(SM(L[qb],S[qb],0),PV(O[qb],VF[kb],S[qb],0)),F)
        assert not pend
        lx=64*K if X else 32*K
        a(f's_add_u32 s{sT}, s{sMw}, {ring}\ns_setprio 0')
        a(SM(L[1],S[1],1)); a(PV(O[1],VF[1],S[1],1))
        TR.now('Bmain')
        a(f'v_add_u32 v{t[2]}, s{sT}, v{vl16}\nv_xor_b32 v{t[3]}, 0x4000, v{t[2]}')
        a(f's_lshl_b32 s{sT}, s{sWave}, 8\ns_add_u32 s{sT}, s{sT}, {lx}\nv_lshl_add_u32 v{t[4]}, v{lane}, 2, s{sT}\nv_xor_b32 v{t[0]}, 0x400, v{t[4]}')
        if X:
            a(f'v_add_u32 v{vka[0]}, s{sMw}, v{vkp}\nv_add_u32 v{vva[0]}, s{sMw}, v{vl16}')
            for r in range(16): a(f'v_min_f32 v{NM[1]+r}, 0, v{XM+r}')
        else: a('s_nop 5')
        a(f'ds_write_b32 v{t[4]}, v{L[1]}')
        for i in range(4): a(f'ds_write_b128 v{t[2]}, {vr(O[1]+4*i,4)} offset:{i*1024}')
        a('s_waitcnt vmcnt(0) lgkmcnt(0)\ns_barrier')
        a(f'ds_read_b32 v{L[1]}, v{t[0]}')
        for i in range(4): a(f'ds_read_b128 {vr(O[1]+4*i,4)}, v{t[3]} offset:{i*1024}')
        if not X:
            old_block(fl(outW(3)))()
        a('s_waitcnt lgkmcnt(0)\ns_barrier')
        if not X: old_block(fl(outO(3)))()
        a(f'v_add_f32 v{L[0]}, v{L[0]}, v{L[1]}')
        for i in range(16): a(f'v_add_f32 v{O[0]+i}, v{O[0]+i}, v{O[1]+i}')
        finalize(O[0],L[0],Q[0],Q[1],False)
        if X: young_block(W0+[flag_post(sF2)])()
        TR.now('Bend')
    def phaseA(X):
        area=0 if X else 64*K
        def rdKA(buf,tt): return [f'ds_read_b128 {vr(KF[buf]+4*c,4)}, v{vka[0]} offset:{(8-tt)*4096+c*1024}' for c in range(2)]
        def rdVA(buf,tt): return [f'ds_read_b128 {vr(VF[buf]+4*c,4)}, v{vva[0]} offset:{(8-tt)*4096+2048+c*1024}' for c in range(2)]
        CD=NM[1]; NA=NM[0]; OA=O[1]; LA=L[0]
        if not X:
            zero(a,OA,20)
            Ls=lab('YS'); Ls2=lab('YS')
            ypost=[flag_post(sF1),f's_cmp_eq_u32 s{sMT}, 0',f's_cbranch_scc1 {Ls}',flag_load(sFA,sMskA),f'{Ls}:']
            if opt.get('ypost',1)==0: old_block(W0+ypost)()
            a('s_waitcnt lgkmcnt(0)\ns_barrier'); TR.now('T1')
            for c in range(2): a(f'ds_read_b128 {vr(QA+4*c,4)}, v{vq[0]} offset:{c*1024}')
        emit(rdKA(0,0)+rdVA(0,0))
        if X:
            emit(rdKA(1,1)); zero(a,OA,20)
        else:
            old_block((W0+ypost if opt.get('ypost',1) else [])+[f's_cmp_eq_u32 s{sMT}, 0',f's_cbranch_scc1 {Ls2}']+W0+[flag_check(sFA,sMskA),lambda: TR.now('yok')]+dma4(area,chunkA(0))+[f'{Ls2}:'])()
        a('s_waitcnt lgkmcnt(0)')
        emit(QK(S[0],KF[0],QA,vr(CD,16)))
        def sync(p):
            def f():
                Lk=lab('YK')
                a(f's_cmp_lg_u32 s{sQB}, {p-1}\ns_cbranch_scc1 {Lk}')
                if p<=4: a('s_waitcnt vmcnt(0)')
                a('s_barrier')
                if p>4: a('s_setprio 1')
                n_=TR.n; TR.now('YAsync'); TR.n=n_
                a(f'{Lk}:')
            return f
        if X:
            emit(QK(S[1],KF[1],QA,'0'))
            a('s_nop 9')
            emit(maxtree(t[4],S[0],True))
        else:
            sync(1)()
            emit(rdKA(1,1))
            a('s_nop 4\ns_waitcnt lgkmcnt(0)')
            emit(QK(S[1],KF[1],QA,'0'))
            emit(maxtree(t[4],S[0],True))
            a('s_nop 1')
        Lm=lab('AM')
        a(f's_cmp_eq_u32 s{sJQ}, 0\ns_cbranch_scc1 {Lm}')
        emit(maxtree(t[4],S[1],False))
        a(f'{Lm}:')
        finish_max(a,t[4],t[2],NA,f's{sOffs}')
        for r in range(16): a(f'v_add_f32 v{S[0]+r}, v{S[0]+r}, v{NA}')
        if X: TR.now('Aprep')
        for tt in range(9):
            b=tt&1
            F={k:[] for k in ('S1','P1','Q0','Q1','S0','P0')}
            prev=(SM(LA,S[b^1],1),PV(OA,VF[b^1],S[b^1],1)) if tt>0 else None
            nxt=None
            F['P1']=['s_waitcnt lgkmcnt(0)']
            if tt<8:
                Lp=lab('AP'); Lr=lab('AR')
                F['S1']=[f's_cmp_eq_u32 s{sJQ}, {tt}', f's_cbranch_scc1 {Lp}', f'{Lr}:']
                tail(f'{Lp}:\ns_nop 7\nv_mov_b32 v{NA}, {f2u(-2.0**120)}\nv_mov_b32 v{NA+1}, v{NA}')
                for r in range(2,16,2): tail(f'v_mov_b64 {vr(NA+r,2)}, {vr(NA,2)}')
                tail(f's_branch {Lr}')
                if tt==7: F['P1']+=[f'v_min_f32 v{CD+r}, v{NA}, -v{XM+r}' for r in range(16)]
                nxt=QK(S[b^1],KF[b^1],QA,vr(CD if tt==7 else NA,16))
                RV=rdVA(b^1,tt+1); RK=rdKA(b,tt+2) if tt+2<=8 else ['s_nop 0','s_nop 0']
                F['Q0']=RV[0:1]; F['Q1']=RV[1:2]; F['S0']=RK[0:1]; F['P0']=RK[1:2]
            if (not X) and tt<=6: F['S0']=[sync(tt+2)]+F['S0']
            if X and tt==opt.get('xbflag',2): F['P0']+=[old_block(W0+[flag_post(sF2)])]
            if not X:
                if tt==6: F['P0']+=[flag_load(sFB,sMsk)]
                if tt==opt.get('ychk',7):
                    F['P0']+=W0+[flag_check(sFB,sMsk),young_block(dma4(0,chunkB(0,False))),f's_xor_b32 s{sT2}, s{sQBo}, 0x800']
                    F['P0']+=[f'buffer_load_dwordx4 {vr(Q[i]+4*c,4)}, v{vl16}, {sr(sWS,4)}, s{(sQBo,sT2)[i]} offen offset:{c*1024} sc1' for i in range(2) for c in range(2)]
            slot(S[b],prev,nxt,(SM(LA,S[b],0),PV(OA,VF[b],S[b],0)),F)
        a('s_nop 1')
        a(SM(LA,S[0],1)); a(PV(OA,VF[0],S[0],1))
        a('s_nop 11')
        finalize(OA,LA,QA,S[1],True)
        if not X: a('s_setprio 0'); TR.n+=1
        TR.now('Aend')
    n0=TR.n
    TR.path='X'
    a('XOLD:'); old_epi(True); a('XPATH:')
    phaseB(True); phaseA(True)
    a(f's_mov_b32 s{sF2}, s{sF2A}')
    if_young('OUTC')
    emit(fl(outW(0)+outW(1)+outW(2)))
    emit([flag_load(sFO,sME)]+W0+[flag_post(sF2),flag_check(sFO,sME)]+fl(outO(0)+outO(1)+outO(2)))
    a('s_waitcnt vmcnt(8)\ns_barrier'); emit(fl(outW(3)+outO(3)))
    a('s_waitcnt vmcnt(12)\ns_barrier'); emit(fl(outW(4)+outO(4)+outW(5)))
    a('s_waitcnt vmcnt(20)\ns_barrier'); emit(fl(outO(5)+outW(6)+outO(6)))
    a('s_branch OUTL')
    nX=TR.n; TR.n=n0
    TR.path='Y'
    a('YOLD:'); old_epi(False); a('YPATH:')
    phaseA(False); phaseB(False)
    TR.n=max(TR.n,nX); TR.path='XY'
    if_young('OUTC')
    a('s_barrier'); emit(fl(outW(4)+outO(4))); a('s_waitcnt vmcnt(8)'); a(flag_post(sF2))
    a('s_barrier'); emit(fl(outW(5)+outO(5)))
    a('s_barrier'); emit(fl(outW(6)+outO(6)))
    a('OUTL:')
    a('s_waitcnt vmcnt(24)\ns_barrier'); emit(fl(outW(7)+outO(7)))
    a('s_waitcnt vmcnt(24)\ns_barrier'); emit(fl(outW(8)))
    a('s_waitcnt vmcnt(20)\ns_barrier'); emit(fl(outW(9))); a(flag_load(sFO,sML))
    a('s_waitcnt vmcnt(17)\ns_barrier')
    def stream(s0,items,per):
        issued=[]
        for s in range(s0,16):
            if s>s0:
                need=max([i for i,x in enumerate(issued) if x<=s],default=-1)
                assert not any(x[0]<=s for x in items)
                a(f's_waitcnt vmcnt({len(issued)-1-need})\ns_barrier')
            k=0
            while items and items[0][0]<=s+4 and (k<per or items[0][0]<=s+1):
                st_,su,v=items.pop(0); emit(su+[v]); issued.append(st_); k+=1
        a('s_branch LEND')
    def tag(s,items): return [(s,su,v) for su,v in items]
    Lv=lab('LV')
    emit(W0+[flag_test(sML),f's_cbranch_scc0 {Lv}'])
    items=tag(8,outO(8))+tag(9,outO(9))
    for s in range(10,16): items+=tag(s,outW(s)+outO(s))
    stream(6,list(items),opt.get('oper',7))
    a(f'{Lv}:')
    emit(fl(outW(10))+[flag_load(sFO,sML),'s_barrier']+W0+[flag_check(sFO,sML)])
    items=tag(8,outO(8))+tag(9,outO(9))+tag(10,outO(10))
    for s in range(11,16): items+=tag(s,outW(s)+outO(s))
    stream(7,list(items),8)
    a('LEND:')
    if stamps: TR.dump(0,sWS,vdum)
    a('s_endpgm')
    a('OUTC:')
    voa=[8,9,10]; vwa=[[11,12,13,14],[15,16,17,18],[19,20,21,22]]; u=[23,24,25]; vo=26
    V=Alloc(28)
    acc=[[V('',4,4) for f in range(4)] for m in range(4)]
    V.n=KF[0]
    OFr=[[V('',4,4) for m in range(4)] for b in range(2)]
    WFr=[[V('',4,4) for f in range(4)] for b in range(2)]
    bases=[64*K,128*K,0]; sel=[(0,0),(0,32768),(1,0),(2,32768),(2,0)]
    a(f's_and_b32 s{sT}, s{sW3}, 1\ns_lshl_b32 s{sT}, s{sT}, 13\nv_add_u32 v{voa[2]}, s{sT}, v{vl16}')
    a(f'v_bfe_u32 v{u[0]}, v{lane}, 2, 3\nv_lshrrev_b32 v{u[1]}, 5, v{lane}\nv_lshl_add_u32 v{u[1]}, v{u[1]}, 4, v{u[0]}\nv_lshlrev_b32 v{u[1]}, 8, v{u[1]}')
    a(f'v_and_b32 v{u[2]}, 3, v{lane}\nv_lshl_add_u32 v{u[1]}, v{u[2]}, 3, v{u[1]}')
    a(f's_lshr_b32 s{sT}, s{sW3}, 1\ns_lshl_b32 s{sT}, s{sT}, 2\nv_xor_b32 v{u[0]}, s{sT}, v{u[0]}\nv_lshl_add_u32 v{u[1]}, v{u[0]}, 5, v{u[1]}')
    a(f'v_add_u32 v{voa[0]}, {bases[0]}, v{voa[2]}')
    for f in range(4): a(f'v_xor_b32 v{vwa[0][f]}, {bases[0]+16384+32*f}, v{u[1]}')
    def reads(s,j,b):
        bi,o0=sel[s%5]
        def wr(f):
            off=o0+j*8192
            return [f'ds_read_b64_tr_b16 {vr(WFr[b][f],2)}, v{vwa[bi][f]} offset:{off}', f'ds_read_b64_tr_b16 {vr(WFr[b][f]+2,2)}, v{vwa[bi][f]} offset:{off+2048}']
        def xr(m): return [f'ds_read_b128 {vr(OFr[b][m],4)}, v{voa[bi]} offset:{o0+(m>>1)*4096+j*2048+(m&1)*1024}']
        return xr(0)+wr(0)+wr(1)+wr(2)+wr(3)+xr(1)+xr(2)+xr(3)
    def mfmas(b,first):
        M=[]
        for m in range(4):
            for f in (range(4) if m%2==0 else range(3,-1,-1)):
                d=vr(acc[m][f],4)
                M.append(f'v_mfma_f32_16x16x32_bf16 {d}, {vr(WFr[b][f],4)}, {vr(OFr[b][m],4)}, {"0" if first else d}')
        return M
    a('s_barrier')
    TR.mark('OB0')
    emit(reads(0,0,0))
    a(f'v_add_u32 v{voa[1]}, {bases[1]}, v{voa[2]}')
    for i in (1,2):
        for f in range(4): a(f'v_xor_b32 v{vwa[i][f]}, {bases[i]+16384+32*f}, v{u[1]}')
    vtw=u[0]; vtr_=u[1]
    epi=[f'v_and_b32 v{u[2]}, 15, v{lane}', f'v_bfe_u32 v{vtw}, v{lane}, 4, 1', f'v_lshrrev_b32 v{vo}, 5, v{lane}', f'v_lshl_add_u32 v{vtw}, v{vtw}, 1, v{vo}',
         f'v_and_b32 v{vo}, 7, v{lane}', f'v_xor_b32 v{vtw}, v{vtw}, v{vo}', f'v_lshlrev_b32 v{vtw}, 4, v{vtw}', f'v_lshl_add_u32 v{vtw}, v{u[2]}, 7, v{vtw}', f'v_add_u32 v{vtw}, s{sM8}, v{vtw}',
         f'v_lshrrev_b32 v{u[2]}, 3, v{lane}', f'v_xor_b32 v{vtr_}, v{vo}, v{u[2]}', f'v_lshlrev_b32 v{vtr_}, 4, v{vtr_}', f'v_lshl_add_u32 v{vtr_}, v{u[2]}, 7, v{vtr_}', f'v_add_u32 v{vtr_}, s{sM8}, v{vtr_}',
         f'v_lshlrev_b32 v{vo}, 4, v{vo}', f'v_lshl_add_u32 v{vo}, v{u[2]}, 12, v{vo}', f'v_xor_b32 v{u[2]}, 64, v{vtw}']
    def packm(m):
        o=[]
        for p in range(2):
            c0=acc[m][2*p]; o+=[f'v_cvt_pk_bf16_f32 v{c0+i}, v{c0+2*i}, v{c0+2*i+1}' for i in range(4)]
        for p in range(2):
            c0=acc[m][2*p]; o+=(['s_nop 0'] if p else [])+[f'v_permlane16_swap_b32 v{c0}, v{c0+2}', f'v_permlane16_swap_b32 v{c0+1}, v{c0+3}']
        for p in range(2): o+=[f'ds_write_b128 v{(vtw,u[2])[p]}, {vr(acc[m][2*p],4)} offset:{m*2048}']
        return o
    for s in range(16):
        for j in range(2):
            a('s_waitcnt lgkmcnt(0)')
            TR.commit()
            if j==1 and s<15:
                a('s_barrier')
                if s%2==1: TR.mark(f'OB{s+1}')
            R=reads(s,1,1) if j==0 else (reads(s+1,0,0) if s<15 else [])
            M=mfmas(j,s==0 and j==0)
            fill=[[r] for r in R]+[[] for _ in range(16-len(R))]
            if 2*s+j==opt.get('oflag',3): fill[13]+=W0+[flag_post(sF2)]
            if s>=5 and epi:
                for q in (12,13,14,15):
                    if epi: fill[q].append(epi.pop(0))
            if s==15 and j==1:
                pm=packm(0)
                for q in range(11,16): fill[q]+=pm[(q-11)*3:(q-10)*3]
            emit(interleave(M,fill))
    TR.now('omain')
    ost=opt.get('k3st',' sc1')
    D=OFr[0][0]
    def rd(m): return [f'ds_read_b128 {vr(D+8*m+4*i,4)}, v{vtr_} offset:{m*2048+i*1024}' for i in range(2)]
    def stq(m):
        o=[]
        for i in range(2): o+=[f's_add_u32 s{sT}, s{sOc}, {(m*16+i*8)*4096}', f'buffer_store_dwordx4 {vr(D+8*m+4*i,4)}, v{vo}, {sr(sOut,4)}, s{sT} offen{ost}']
        return o
    emit(rd(0)+packm(1)+rd(1)+['s_waitcnt lgkmcnt(4)']+stq(0)+packm(2)+rd(2)+['s_waitcnt lgkmcnt(4)']+stq(1)+packm(3)+rd(3)+['s_waitcnt lgkmcnt(4)']+stq(2)+['s_waitcnt lgkmcnt(0)']+stq(3))
    if opt.get('amp'):
        role,k0,k1,mult=opt['amp']
        a('s_waitcnt vmcnt(0)'); TR.now('end')
        f=lambda k: [i for i in TR.map[role] if TR.map[role][i]==k][-1]
        a(f's_cmp_lg_u32 s{sBR}, {1 if role=="X" else 0}\ns_cbranch_scc1 END')
        a(f's_nop 1\nv_readlane_b32 s4, v{vtr}, {f(k0)}\nv_readlane_b32 s5, v{vtr}, {f(k1)}\ns_nop 3\ns_sub_u32 s4, s5, s4\ns_min_u32 s4, s4, 200000\ns_mul_i32 s4, s4, {mult}\ns_lshr_b32 s4, s4, 1')
        a('s_memrealtime s[6:7]\ns_waitcnt lgkmcnt(0)\nAMPL:\ns_memrealtime s[46:47]\ns_waitcnt lgkmcnt(0)\ns_sub_u32 s46, s46, s6\ns_cmp_lt_u32 s46, s4\ns_cbranch_scc1 AMPL')
    if stamps:
        a('s_waitcnt vmcnt(0)'); TR.now('end'); TR.dump(0,sWS,vdum)
        a('s_memrealtime s[4:5]\ns_memtime s[6:7]\ns_waitcnt lgkmcnt(0)\ns_sub_u32 s6, s6, s92')
        a(f'v_mov_b32 v28, s90\nv_mov_b32 v29, s4\nv_mov_b32 v30, s6\nv_mov_b32 v31, 0\ns_lshl_b32 s4, s2, 5\ns_add_u32 s4, s4, {WS_STAMP}\nv_mov_b32 v32, s4')
        a(f'global_store_dwordx4 v32, v[28:31], s[{sWS}:{sWS+1}]')
```

```python
import sys, json, struct, math
from asm import *
from k1 import WS_STAMP, WS_TRACE, Trace
NAME='concat_heads__sliding_block__softmax_full_mha__prompt_kernel'
WS_QF=0; WS_KV=8<<20; WS_OF=24<<20; WS_FL=32<<20; WS_F2=WS_FL+(256<<10); WS_EP=WS_F2+(512<<10); WS_SIZE=WS_EP+128
def f2u(x): return struct.unpack('<I',struct.pack('<f',x))[0]
QSCALE=f2u((32**-0.5)*math.log2(math.e))
OFFS=88.0
SPIN=1<<20
K=1024
pDbg=6; sX=8; sW=12; sWS=16; sWo=36; sOut=40
sWave=20; sMT=21; sHP=22; sBR=23; sHD=24; sT=25; sT2=26; sT3=27; sW3=28; sKH=29; sSpin=30; sK=31
sQS=32
sQo=34; sKV0=35; sKV1=44; sF1=45
sXm=46; sWm=50; sKX=52; sKW=53
sCnt=46; sN=47; sMa=48; sMb=49; sF2b=50; sK2=51
_S=Alloc(54)
sKVB,sKVA,sM8,sMw,sFB,sFA,sMsk,sOth,sMskA,sJQ,sQB,sO,sF2,sPi,sOffs,sOb,sFO,sME,sML,sWb,sM4,sSp,sC0,sC1,sC2,sQBo,sQAo,sPm,sPw,sPo,sOc,sOA,sF2A=[_S(str(i)) for i in range(33)]
assert _S.n<=90
vtr=1; lane=2; vl16=3; vst=4; vfl=5; vtag=6
vka=[8,9]; vva=[10,11]; vq=[12,13]; vpoll=14; vkp=16; vidx=17; vos=18; vgo=[19,20]; vwt=21; t=[22,23,24,25,26]; vdum=27
SEL=28; XM=32
NM=[64,48]; Q=[80,88]; O=[96,112]; L=[128,132]; S=[136,152]; KF=[168,176]; VF=[184,192]; QA=200
H=208
OSL=[64*K,96*K,128*K,32*K,0]

def build(stamps=False,opt={}):
    a=Asm(); tail=Asm()
    TR=Trace(a,(stamps and opt.get('trace') is not None) or opt.get('amp'),vtr)
    uid=[0]
    def lab(p):
        uid[0]+=1; return f'{p}{uid[0]}'
    def emit(lst):
        for x in lst:
            if callable(x): x()
            else: a(x)
    def if_young(name): a(f's_cmp_ge_u32 s{sWave}, 4\ns_cbranch_scc1 {name}')
    def if_old(name): a(f's_cmp_lt_u32 s{sWave}, 4\ns_cbranch_scc1 {name}')
    def old_block(lst):
        def f():
            Lb=lab('OB'); if_young(Lb); emit(lst); a(f'{Lb}:')
        return f
    def young_block(lst):
        def f():
            Lb=lab('YB'); if_old(Lb); emit(lst); a(f'{Lb}:')
        return f
    def flag_load(soff,smask):
        return f's_mov_b32 exec_lo, s{smask}\ns_mov_b32 exec_hi, 0\nbuffer_load_dwordx2 {vr(vpoll,2)}, v{vfl}, {sr(sWS,4)}, s{soff} offen sc1\ns_mov_b64 exec, -1'
    def flag_test(smask):
        return f'v_cmp_eq_u64 vcc, {vr(vtag,2)}, {vr(vpoll,2)}\ns_and_b32 s{sT3}, vcc_lo, s{smask}\ns_cmp_eq_u32 s{sT3}, s{smask}'
    def flag_check(soff,smask):
        def f():
            Lc=lab('FC'); D=lab('FD')
            a(flag_test(smask)); a(f's_cbranch_scc0 {Lc}\n{D}:')
            tail(f'{Lc}:\ns_mov_b32 s{sSpin}, 0\n{Lc}x:\ns_andn2_b32 s{sT3}, s{smask}, s{sT3}')
            if opt.get('slp'): tail(f's_sleep {opt["slp"]}')
            tail(flag_load(soff,sT3)); tail('s_waitcnt vmcnt(0)')
            tail(flag_test(smask)); tail(f's_cbranch_scc1 {D}')
            tail(f's_add_u32 s{sSpin}, s{sSpin}, 1\ns_cmp_lt_u32 s{sSpin}, {SPIN}\ns_cbranch_scc1 {Lc}x\ns_branch {D}')
        return f
    def flag_post(soff):
        return f's_mov_b64 exec, 0xff\nbuffer_store_dwordx4 {vr(vtag,4)}, v{vl16}, {sr(sWS,4)}, s{soff} offen sc1\ns_mov_b64 exec, -1'
    def zero(A,r,n):
        for i in range(0,n,2): A(f'v_mov_b64 {vr(r+i,2)}, 0')
    a('s_cmp_ge_u32 s2, 256\ns_cbranch_scc1 END')
    if stamps: a('s_memrealtime s[90:91]\ns_memtime s[92:93]')
    TR.now('start')
    a(f's_bfe_u32 s{sBR}, s2, 0x10003\ns_mul_i32 s{sT}, s{sBR}, 24\ns_add_u32 s4, s0, s{sT}\ns_addc_u32 s5, s1, 0')
    a(f's_load_dwordx2 s[{sX}:{sX+1}], s[4:5], 0\ns_load_dwordx2 s[{sW}:{sW+1}], s[4:5], 8\ns_load_dwordx2 s[{sWo}:{sWo+1}], s[4:5], 16')
    a(f's_load_dwordx2 s[{sOut}:{sOut+1}], s[0:1], 48\ns_load_dwordx2 s[{pDbg}:{pDbg+1}], s[0:1], 56\ns_load_dwordx2 s[{sWS}:{sWS+1}], s[0:1], 64')
    a(f'v_lshrrev_b32 v{vdum}, 6, v0\nv_and_b32 v{lane}, 63, v0')
    a(f'v_readfirstlane_b32 s{sWave}, v{vdum}')
    a(f's_bfe_u32 s{sMT}, s2, 0x20004\ns_and_b32 s{sT}, s2, 1\ns_lshl_b32 s{sT}, s{sT}, 2\ns_add_u32 s{sMT}, s{sMT}, s{sT}')
    a(f's_lshr_b32 s{sHP}, s2, 6\ns_and_b32 s{sT}, s2, 6\ns_lshl_b32 s{sT}, s{sT}, 1\ns_add_u32 s{sHP}, s{sHP}, s{sT}')
    a(f's_and_b32 s{sW3}, s{sWave}, 3\ns_lshr_b32 s{sKH}, s{sWave}, 2')
    a(f's_mov_b32 s{sX+2}, 0x400000\ns_mov_b32 s{sX+3}, 0x20000\ns_mov_b32 s{sW+2}, 0x600000\ns_mov_b32 s{sW+3}, 0x20000')
    vxa=[64,65]; vwa=[66,67]; vgx=list(range(68,76)); vgw=[76,77]; g=[78,79]
    V=Alloc(80)
    acc=[[[None]*2 for s in range(3)] for m in range(4)]
    for m in range(4):
        for s in range(2):
            for fb in range(2): acc[m][s][fb]=V('',4,4)
    for tl in range(2):
        for fb in range(2):
            for mm in range(2): acc[2*tl+mm][2][fb]=V('',4,4)
    XF=[None,None]; WF=[None,None]
    for b in (1,0):
        XF[b]=[V('',4,4) for m in range(4)]; WF[b]=[[V('',4,4) for fb in range(2)] for s in range(3)]
    assert V.n==256
    def g1_dsaddr():
        a(f's_mul_i32 s{sT}, s{sW3}, 24576')
        a(f'v_and_b32 v{t[2]}, 15, v{lane}\nv_lshrrev_b32 v{t[3]}, 4, v{lane}\nv_bfe_u32 v{t[4]}, v{lane}, 1, 3')
        a(f'v_xor_b32 v{t[4]}, v{t[4]}, v{t[3]}\nv_lshlrev_b32 v{t[4]}, 4, v{t[4]}\nv_lshl_add_u32 v{t[4]}, v{t[2]}, 7, v{t[4]}')
        a(f'v_add_u32 v{vxa[0]}, s{sT}, v{t[4]}\nv_xor_b32 v{vxa[1]}, 64, v{vxa[0]}')
        a(f'v_lshlrev_b32 v{vst}, 4, v{t[2]}\nv_lshl_add_u32 v{vst}, v{t[3]}, 9, v{vst}')
        a(f'v_bfe_u32 v{t[2]}, v{lane}, 2, 2\nv_lshl_add_u32 v{t[4]}, v{t[3]}, 3, v{t[2]}\nv_lshlrev_b32 v{t[4]}, 7, v{t[4]}')
        a(f'v_and_b32 v{t[1]}, 3, v{lane}\nv_lshl_add_u32 v{t[4]}, v{t[1]}, 3, v{t[4]}')
        a(f'v_lshrrev_b32 v{t[2]}, 1, v{t[2]}\nv_lshl_add_u32 v{t[4]}, v{t[2]}, 5, v{t[4]}')
        a(f's_xor_b32 s{sT}, s{sKH}, s{sBR}\ns_xor_b32 s{sT}, s{sT}, 1')
        a(f'v_and_b32 v{t[3]}, 1, v{t[3]}\nv_xor_b32 v{t[3]}, s{sT}, v{t[3]}\nv_lshl_add_u32 v{t[4]}, v{t[3]}, 6, v{t[4]}')
        a(f'v_add_u32 v{vwa[0]}, {96*K}, v{t[4]}\nv_xor_b32 v{vwa[1]}, 32, v{vwa[0]}')
    def precompute():
        a(f'v_lshlrev_b32 v{vl16}, 4, v{lane}\nv_and_b32 v{vfl}, 31, v{lane}\nv_lshlrev_b32 v{vfl}, 7, v{vfl}')
        a(f's_lshl_b32 s{sHD}, s{sHP}, 1\ns_add_u32 s{sHD}, s{sHD}, 1\ns_sub_u32 s{sHD}, s{sHD}, s{sBR}')
        a(f's_mov_b32 s{sWS+2}, {WS_SIZE}\ns_mov_b32 s{sWS+3}, 0x20000\ns_mov_b32 s{sWo+2}, 0x200000\ns_mov_b32 s{sWo+3}, 0x20000\ns_mov_b32 s{sOut+2}, 0x800000\ns_mov_b32 s{sOut+3}, 0x20000')
        a(f's_mov_b32 s{sQS}, {QSCALE}\ns_mov_b32 s{sQS+1}, {QSCALE}')
        a(f's_xor_b32 s{sT}, s{sHD}, s{sKH}\ns_lshl_b32 s{sT2}, s{sBR}, 5\ns_add_u32 s{sT}, s{sT}, s{sT2}')
        a(f's_lshl_b32 s{sT2}, s{sMT}, 2\ns_add_u32 s{sT2}, s{sT2}, s{sW3}')
        a(f's_lshl_b32 s{sF1}, s{sT}, 5\ns_add_u32 s{sF1}, s{sF1}, s{sT2}')
        a(f's_lshl_b32 s{sQo}, s{sF1}, 12\ns_lshl_b32 s{sKV0}, s{sF1}, 13\ns_add_u32 s{sKV0}, s{sKV0}, {WS_KV}\ns_add_u32 s{sKV1}, s{sKV0}, 4096')
        a(f's_lshl_b32 s{sF1}, s{sF1}, 7\ns_add_u32 s{sF1}, s{sF1}, {WS_FL}')
        a(f's_lshl_b32 s{sM8}, s{sW3}, 13\ns_lshl_b32 s{sM4}, s{sW3}, 12\ns_lshl_b32 s{sMw}, s{sWave}, 12')
        a(f's_add_u32 s{sT}, s{sM8}, {96*K}\nv_add_u32 v{g[0]}, s{sT}, v{vst}\ns_add_u32 s{sT}, s{sM4}, 8192\nv_add_u32 v{g[1]}, s{sT}, v{vst}')
        a(f's_sub_u32 s{sT3}, s{sT2}, 4\ns_lshl_b32 s{sT3}, 1, s{sT3}\ns_lshl_b32 s{sT}, s{sMT}, 2\ns_lshl_b32 s{sMskA}, 15, s{sT}\ns_lshr_b32 s{sT}, s{sMskA}, 4\ns_or_b32 s{sMskA}, s{sMskA}, s{sT}')
        a(f's_cmp_eq_u32 s{sBR}, 0\ns_cselect_b32 s{sMskA}, s{sT3}, s{sMskA}')
        a(f'v_mov_b32 v{vidx}, 0xdddddddd')
        a(f'v_bfe_u32 v{t[2]}, v{lane}, 2, 1\nv_mul_u32_u24 v{t[3]}, 0x3f80, v{t[2]}\nv_lshl_or_b32 v{SEL+2}, v{t[3]}, 16, v{t[3]}')
        a(f'v_mov_b32 v{SEL+3}, v{SEL+2}\nv_xor_b32 v{SEL}, 0x3f803f80, v{SEL+2}\nv_xor_b32 v{SEL+1}, 0x3f803f80, v{SEL+2}')
        a(f'v_bfe_u32 v{t[3]}, v{lane}, 3, 2\nv_and_b32 v{t[4]}, 35, v{lane}\nv_lshl_add_u32 v{t[4]}, v{t[3]}, 2, v{t[4]}\nv_lshl_add_u32 v{t[4]}, v{t[2]}, 4, v{t[4]}\nv_lshlrev_b32 v{vkp}, 4, v{t[4]}')
        a(f's_lshl_b32 s{sT}, s{sHD}, 18\ns_add_u32 s{sKVA}, s{sT}, {WS_KV}\ns_add_u32 s{sKVB}, s{sT}, {WS_KV+(32<<18)}')
        a(f's_lshl_b32 s{sT}, s{sHD}, 12\ns_add_u32 s{sFA}, s{sT}, {WS_FL}\ns_add_u32 s{sFB}, s{sT}, {WS_FL+32*4096}')
        a(f's_lshr_b32 s{sT}, s{sMT}, 2\ns_lshl_b32 s{sT}, s{sT}, 4\ns_lshl_b32 s{sMsk}, 0xffff, s{sT}\ns_not_b32 s{sOth}, s{sMsk}')
        a(f's_and_b32 s{sT}, s{sHD}, 1\ns_lshl_b32 s{sWb}, s{sT}, 16\ns_lshl_b32 s{sSp}, s{sT}, 15\ns_lshl_b32 s{sT}, s{sT}, 4\ns_add_u32 s{sPi}, s{sT}, s{sHP}')
        a(f's_lshl_b32 s{sME}, 0xffff, s{sT}\ns_not_b32 s{sML}, s{sME}')
        a(f's_mov_b32 s{sC0}, {f2u(2.0**-104)}\ns_mov_b32 s{sC1}, 0x7f800000\ns_mov_b32 s{sC2}, {f2u(2.0**120)}\ns_mov_b32 s{sOffs}, {f2u(-OFFS)}')
        a(f's_sub_u32 s{sT}, 11, s{sWave}\ns_cmp_gt_u32 s{sKH}, s{sBR}\ns_cselect_b32 s{sQB}, s{sT}, s{sWave}\ns_lshl_b32 s{sJQ}, s{sMT}, 3\ns_add_u32 s{sJQ}, s{sJQ}, s{sQB}')
        a(f's_lshl_b32 s{sT}, s{sHD}, 6\ns_add_u32 s{sQAo}, s{sT}, s{sJQ}\ns_lshl_b32 s{sQAo}, s{sQAo}, 11')
        a(f's_lshl_b32 s{sT2}, s{sW3}, 1\ns_add_u32 s{sT2}, s{sT2}, s{sKH}\ns_lshl_b32 s{sT3}, s{sMT}, 3\ns_add_u32 s{sT}, s{sT}, s{sT3}\ns_add_u32 s{sT}, s{sT}, s{sT2}\ns_lshl_b32 s{sQBo}, s{sT}, 11\ns_add_u32 s{sQBo}, s{sQBo}, {WS_QF+(32<<17)}')
        a(f's_cmp_eq_u32 s{sBR}, 0\ns_cselect_b32 s{sT2}, s{sQB}, s{sT2}\ns_lshl_b32 s{sT2}, s{sT2}, 11\ns_add_u32 s{sT2}, s{sT2}, 8192\nv_add_u32 v{vq[0]}, s{sT2}, v{vl16}\nv_xor_b32 v{vq[1]}, 0x800, v{vq[0]}')
        a(f's_lshl_b32 s{sT}, s{sKH}, 14\ns_add_u32 s{sT}, s{sT}, {96*K}\ns_lshl_b32 s{sT2}, s{sQB}, 12\ns_add_u32 s{sT2}, s{sT2}, {64*K}\ns_cmp_eq_u32 s{sBR}, 0\ns_cselect_b32 s{sT}, s{sT2}, s{sT}')
        a(f'v_add_u32 v{vka[0]}, s{sT}, v{vkp}\nv_add_u32 v{vva[0]}, s{sT}, v{vl16}')
        a(f'v_bfe_u32 v{t[2]}, v{lane}, 4, 1\nv_lshrrev_b32 v{t[3]}, 5, v{lane}\nv_and_b32 v{vos}, 15, v{lane}\nv_lshlrev_b32 v{vos}, 4, v{vos}\nv_lshl_add_u32 v{vos}, v{t[2]}, 10, v{vos}\nv_lshl_add_u32 v{vos}, v{t[3]}, 8, v{vos}')
        a(f'v_and_b32 v{t[2]}, 31, v{lane}\nv_lshlrev_b32 v{t[3]}, 4, v{t[3]}\nv_sub_u32 v{t[2]}, v{t[2]}, v{t[3]}\nv_cvt_f32_i32 v{t[2]}, v{t[2]}\nv_mul_f32 v{t[2]}, {f2u(2.0**100)}, v{t[2]}')
        for r in range(16): a(f'v_add_f32 v{XM+r}, {f2u((0.5-r)*2.0**100)}, v{t[2]}')
        for r in range(16): a(f'v_min_f32 v{NM[1]+r}, 0, v{XM+r}')
        a(f's_lshl_b32 s{sT}, s{sBR}, 6\ns_lshl_b32 s{sT2}, s{sHP}, 2\ns_add_u32 s{sT}, s{sT}, s{sT2}\ns_add_u32 s{sT}, s{sT}, s{sW3}')
        a(f's_lshl_b32 s{sOb}, s{sT}, 16\ns_add_u32 s{sOb}, s{sOb}, {WS_OF}\ns_lshl_b32 s{sFO}, s{sT}, 12\ns_add_u32 s{sFO}, s{sFO}, {WS_F2}')
        a(f'v_lshrrev_b32 v{t[2]}, 4, v{lane}\nv_and_b32 v{t[3]}, 15, v{lane}\nv_lshlrev_b32 v{t[4]}, 1, v{t[2]}\nv_xor_b32 v{t[3]}, v{t[3]}, v{t[4]}')
        a(f's_lshr_b32 s{sT}, s{sW3}, 1\ns_lshl_b32 s{sT}, s{sT}, 6\ns_and_b32 s{sT2}, s{sW3}, 1\ns_lshl_b32 s{sT2}, s{sT2}, 4\ns_add_u32 s{sT}, s{sT}, s{sT2}')
        a(f'v_add_u32 v{t[2]}, s{sT}, v{t[2]}\nv_lshlrev_b32 v{t[2]}, 11, v{t[2]}\nv_lshl_add_u32 v{vgo[0]}, v{t[3]}, 4, v{t[2]}')
        a(f's_lshl_b32 s{sT}, s{sMT}, 8\nv_add_u32 v{vgo[0]}, s{sT}, v{vgo[0]}')
        a(f'v_xor_b32 v{vgo[1]}, 128, v{vgo[0]}\nv_add_u32 v{vgo[1]}, {4*2048-1024}, v{vgo[1]}')
        a(f's_and_b32 s{sT2}, s{sHP}, 3\ns_lshl_b32 s{sT2}, s{sT2}, 3\ns_add_u32 s{sT2}, s{sT2}, s{sWave}\ns_lshl_b32 s{sT2}, s{sT2}, 16\ns_add_u32 s{sT}, s{sT}, s{sT2}')
        a(f'v_lshrrev_b32 v{t[2]}, 2, v{lane}\nv_and_b32 v{t[3]}, 3, v{lane}\nv_lshlrev_b32 v{t[3]}, 6, v{t[3]}\nv_lshl_add_u32 v{t[2]}, v{t[2]}, 11, v{t[3]}\nv_add_u32 v{vwt}, s{sT}, v{t[2]}')
        a(f's_lshl_b32 s{sT}, s{sKH}, 11\ns_add_u32 s{sPm}, s{sM4}, s{sT}\ns_add_u32 s{sPo}, s{sOb}, s{sT}\ns_lshl_b32 s{sPw}, s{sKH}, 14')
        a(f's_lshl_b32 s{sT}, s{sJQ}, 5\ns_add_u32 s{sT}, s{sT}, s{sPi}\ns_lshl_b32 s{sOA}, s{sT}, 11\ns_add_u32 s{sOA}, s{sOA}, {WS_OF}\ns_lshl_b32 s{sF2A}, s{sT}, 7\ns_add_u32 s{sF2A}, s{sF2A}, {WS_F2}')
        a(f's_lshl_b32 s{sT}, s{sMT}, 2\ns_add_u32 s{sT}, s{sT}, s{sW3}\ns_lshl_b32 s{sT}, s{sT}, 1\ns_add_u32 s{sT}, s{sT}, s{sKH}\ns_lshl_b32 s{sT}, s{sT}, 5\ns_add_u32 s{sT}, s{sT}, s{sPi}')
        a(f's_lshl_b32 s{sO}, s{sT}, 11\ns_add_u32 s{sO}, s{sO}, {WS_OF+(1<<22)}\ns_lshl_b32 s{sF2}, s{sT}, 7\ns_add_u32 s{sF2}, s{sF2}, {WS_F2+(1<<18)}')
        a(f'v_mov_b64 {vr(vtag,2)}, 0')
        a(f's_lshl_b32 s{sOc}, s{sHP}, 1\ns_and_b32 s{sT}, s{sW3}, 1\ns_add_u32 s{sOc}, s{sOc}, s{sT}\ns_lshl_b32 s{sOc}, s{sOc}, 18')
        a(f's_lshl_b32 s{sT}, s{sBR}, 11\ns_add_u32 s{sOc}, s{sOc}, s{sT}\ns_lshl_b32 s{sT}, s{sMT}, 8\ns_add_u32 s{sOc}, s{sOc}, s{sT}\ns_lshr_b32 s{sT}, s{sW3}, 1\ns_lshl_b32 s{sT}, s{sT}, 7\ns_add_u32 s{sOc}, s{sOc}, s{sT}')
        a(f'v_mov_b32 v{t[4]}, 0')
    def dmaX(s,jj,first):
        o=[[f's_add_u32 m0, s{sXm+jj}, {(s%3)*8192}']+([f's_movk_i32 s{sKX}, {s*128}'] if first else [])]
        o+=[[f'buffer_load_dwordx4 v{vgx[2*jj]}, {sr(sX,4)}, s{sKX} offen lds'],[f'buffer_load_dwordx4 v{vgx[2*jj+1]}, {sr(sX,4)}, s{sKX} offen offset:1024 lds']]
        return o
    def dmaW(n,i,setk=True):
        s,seg=divmod(n,3)
        return [[f's_add_u32 m0, s{sWm+i}, {(n%8)*8192}']+([f's_mov_b32 s{sKW}, {s*64*6144+seg*2048}'] if setk else []),[f'buffer_load_dwordx4 v{vgw[i]}, {sr(sW,4)}, s{sKW} offen lds']]
    def flat(groups):
        o=[]
        for gr in groups:
            o+=gr
            if len(gr)==1 and 'm0' in gr[0]: o.append('s_nop 0')
        return o
    cols=[(s,fb) for s in range(3) for fb in range(2)]
    def reads(s,j,b):
        def wr(seg,fb):
            off=((3*s+seg)%8)*8192+j*4096
            return [f'ds_read_b64_tr_b16 {vr(WF[b][seg][fb],2)}, v{vwa[fb]} offset:{off}', f'ds_read_b64_tr_b16 {vr(WF[b][seg][fb]+2,2)}, v{vwa[fb]} offset:{off+512}']
        def xr(m): return [f'ds_read_b128 {vr(XF[b][m],4)}, v{vxa[j]} offset:{(s%3)*8192+m*2048}']
        R=xr(0)
        for c in cols: R+=wr(*c)
        return R+xr(1)+xr(2)+xr(3)
    def mfmas(b, first):
        M=[]
        for m in range(4):
            for seg,fb in (cols if m%2==0 else cols[::-1]):
                A_,B_=(WF[b][seg][fb],XF[b][m]) if seg<2 else (XF[b][m],WF[b][seg][fb])
                d=vr(acc[m][seg][fb],4)
                M.append(f'v_mfma_f32_16x16x32_bf16 {d}, {vr(A_,4)}, {vr(B_,4)}, {"0" if first else d}')
        return M
    def stage_full(s):
        return dmaX(s,0,True)+dmaW(3*s,0)+dmaW(3*s+1,0)+dmaW(3*s+2,0)+dmaX(s,1,False)+dmaW(3*s,1)+dmaW(3*s+1,1)+dmaW(3*s+2,1)+dmaX(s,2,False)+dmaX(s,3,False)
    pieces=[(acc[0][1][0],'k',0,0),(acc[0][0][0],'q',0,0),(acc[0][2][1],'v',0,1),(acc[0][2][0],'v',0,0),(acc[1][1][0],'k',0,1),(acc[1][0][0],'q',0,1),
            (acc[2][0][0],'q',1,0),(acc[2][1][0],'k',1,0),(acc[2][2][1],'v',1,1),(acc[2][2][0],'v',1,0),(acc[3][1][0],'k',1,1),(acc[3][0][0],'q',1,1)]
    done_at=[3,1,6,7,9,11,13,15,18,19,21,23]
    hreg=[H+8+4*i for i in range(10)]+[H,H+4]
    def packi(dst,c,kind):
        o=[f'v_mul_f32 v{c+i}, s{sQS}, v{c+i}' for i in range(8)] if kind=='q' else []
        return o+[f'v_cvt_pk_bf16_f32 v{dst+i}, v{c+2*i}, v{c+2*i+1}' for i in range(4)]
    def gstore(reg,kind,tl,sub):
        if kind=='q': so,off=sQo,tl*2048+sub*256
        else: so,off=(sKV0,sKV1)[tl],(2048 if kind=='v' else 0)+sub*256
        return f'buffer_store_dwordx4 {vr(reg,4)}, v{vst}, {sr(sWS,4)}, s{so} offen offset:{off} sc1'
    def lstore(reg,kind,tl,sub):
        if kind=='q': return f'ds_write_b128 v{g[1]}, {vr(reg,4)} offset:{tl*2048+sub*256}'
        return f'ds_write_b128 v{g[0]}, {vr(reg,4)} offset:{tl*4096+(2048 if kind=="v" else 0)+sub*256}'
    held=[gstore(hreg[i],*p[1:]) for i,p in enumerate(pieces)]
    def g1_loop(old, extra={}):
        TR.mark('B0')
        emit(reads(0,0,0))
        pend=[]
        if old: pend=dmaW(6,0)+dmaW(6,1,False)+dmaX(2,0,True)+dmaW(7,0)+dmaW(7,1,False)+dmaX(2,1,False)+dmaX(2,2,False)+dmaX(2,3,False)
        rest=[]
        for s in range(16):
            for j in range(2):
                if j==1 and s<15:
                    assert not pend
                    a(f's_waitcnt vmcnt({12 if s<14 else 0}) lgkmcnt(0)' if old else ('s_waitcnt vmcnt(0) lgkmcnt(0)' if s==12 else 's_waitcnt lgkmcnt(0)'))
                    if s==12:
                        Lc=lab('DC'); D=lab('DD')
                        a(f'v_cmp_eq_u32 vcc, 1, v{vtag+1}\ns_cmp_eq_u64 vcc, -1\ns_cbranch_scc0 {Lc}\n{D}:\nv_not_b32 v{vtag+1}, v{vtag}')
                        tail(f'{Lc}:\ns_mov_b32 s{sSpin}, 0\n{Lc}x:\nglobal_load_dwordx2 {vr(vtag,2)}, v{t[4]}, s[{pDbg}:{pDbg+1}] sc1\ns_waitcnt vmcnt(0)')
                        tail(f'v_cmp_eq_u32 vcc, 1, v{vtag+1}\ns_cmp_eq_u64 vcc, -1\ns_cbranch_scc1 {D}')
                        tail(f's_add_u32 s{sSpin}, s{sSpin}, 1\ns_cmp_lt_u32 s{sSpin}, {SPIN}\ns_cbranch_scc1 {Lc}x\ns_branch {D}')
                    a('s_barrier')
                    if s%2==1: TR.mark(f'B{s+1}')
                    sn=s+1
                    if old:
                        if 3*sn+5<48: pend+=dmaW(3*sn+5,0)+dmaW(3*sn+5,1,False)
                        if sn+2<16: pend+=dmaX(sn+2,0,True)+dmaW(3*sn+6,0)+dmaW(3*sn+7,0)+dmaX(sn+2,1,False)+dmaW(3*sn+6,1)+dmaW(3*sn+7,1)+dmaX(sn+2,2,False)+dmaX(sn+2,3,False)
                else:
                    a('s_waitcnt lgkmcnt(0)'); TR.commit()
                R=reads(s,1,1) if j==0 else (reads(s+1,0,0) if s<15 else [])
                M=mfmas(j, s==0 and j==0)
                fill=[[] for _ in M]
                for q,r_ in enumerate(R): fill[q].append(r_)
                step=1 if (s==0 and j==0) else 2
                for sl in range(0,24,step):
                    if pend: fill[sl]+=pend.pop(0)
                if (s,j) in extra: fill[18]+=extra[(s,j)]
                if opt.get('fwarm',1) and (not old) and j==1 and 2<=s<8:
                    r_,x_=((sF1,4096),(sF2A,16384),(sF2,4096))[(s-2)//2]
                    fill[17]+=[f's_xor_b32 s{sK}, s{r_}, {x_*(s&1)}']; fill[19]+=[flag_post(sK)]
                if (s,j)==(10,0): fill[21]+=[f'global_load_dwordx2 {vr(vtag,2)}, v{t[4]}, s[{pDbg}:{pDbg+1}] sc1']
                if (s,j)==(15,1):
                    qq=[]
                    for i,p in enumerate(pieces):
                        qq+=[(done_at[i],x) for x in packi(hreg[i],p[0],p[1])]
                    pos=[0]*24; cnt=0
                    for sl in range(24):
                        pos[sl]=cnt; cnt+=1
                        n_=0
                        while qq and n_<2 and qq[0][0]<=sl and cnt-pos[qq[0][0]]-1>=8:
                            fill[sl].append(qq.pop(0)[1]); cnt+=1; n_+=1
                    for d,x in qq:
                        gap=cnt-pos[d]-1
                        if gap<8: rest.append(f's_nop {7-gap}'); cnt+=8-gap
                        rest.append(x); cnt+=1
                emit(interleave(M,fill))
        assert not pend
        return rest
    if_young('G1Y')
    a(f'v_lshrrev_b32 v{t[2]}, 3, v{lane}\nv_and_b32 v{t[3]}, 7, v{lane}\nv_lshrrev_b32 v{t[4]}, 4, v{lane}')
    a(f's_lshl_b32 s{sT}, s{sMT}, 8\ns_lshl_b32 s{sT2}, s{sWave}, 6\ns_add_u32 s{sT}, s{sT}, s{sT2}')
    a(f'v_add_u32 v{vdum}, s{sT}, v{t[2]}\nv_lshlrev_b32 v{vdum}, 11, v{vdum}')
    a(f'v_xor_b32 v{t[0]}, v{t[3]}, v{t[4]}\nv_lshl_add_u32 v{t[0]}, v{t[0]}, 4, v{vdum}')
    a(f'v_xor_b32 v{t[1]}, 64, v{t[0]}\nv_add_u32 v{t[1]}, {8*2048-1024}, v{t[1]}')
    a(f's_and_b32 s{sT2}, s{sHP}, 3\ns_mul_i32 s{sT3}, s{sWave}, 24576')
    for jj in range(4):
        a(f's_xor_b32 s{sT}, s{sT2}, {jj}\ns_lshl_b32 s{sXm+jj}, s{sT}, 11\ns_add_u32 s{sXm+jj}, s{sXm+jj}, s{sT3}\ns_lshl_b32 s{sT}, s{sT}, 15')
        a(f'v_add_u32 v{vgx[2*jj]}, s{sT}, v{t[0]}\nv_add_u32 v{vgx[2*jj+1]}, s{sT}, v{t[1]}')
    a(f's_and_b32 s{sT2}, s{sMT}, 1\ns_lshl_b32 s{sT}, s{sWave}, 1\ns_add_u32 s{sT}, s{sT}, s{sT2}')
    a(f's_lshl_b32 s{sWm}, s{sT}, 10\ns_add_u32 s{sWm}, s{sWm}, {96*K}\ns_xor_b32 s{sWm+1}, s{sWm}, 1024')
    a(f's_lshl_b32 s{sT}, s{sT}, 3\nv_add_u32 v{vdum}, s{sT}, v{t[2]}\nv_xor_b32 v{t[0]}, 8, v{vdum}')
    a(f'v_mul_u32_u24 v{vdum}, 6144, v{vdum}\nv_mul_u32_u24 v{t[0]}, 6144, v{t[0]}')
    a(f's_lshl_b32 s{sT2}, s{sT2}, 2\nv_and_b32 v{t[4]}, 1, v{t[4]}\nv_lshl_add_u32 v{t[4]}, v{t[4]}, 1, s{sT2}\nv_xor_b32 v{t[4]}, v{t[4]}, v{t[3]}')
    a(f's_lshl_b32 s{sT}, s{sHP}, 7\nv_lshl_add_u32 v{t[4]}, v{t[4]}, 4, s{sT}')
    a(f'v_add_u32 v{vgw[0]}, v{t[4]}, v{vdum}\nv_xor_b32 v{t[4]}, 64, v{t[4]}\nv_add_u32 v{vgw[1]}, v{t[4]}, v{t[0]}')
    a('s_waitcnt lgkmcnt(0)')
    st0=stage_full(0); sp=opt.get('pcsplit',12)
    emit(flat(st0[:sp]))
    g1_dsaddr(); precompute()
    emit(flat(st0[sp:])); emit(flat(stage_full(1)))
    a('s_waitcnt vmcnt(14)\ns_barrier')
    ntr0=TR.n
    rest=g1_loop(True)
    emit(rest)
    TR.now('mainend')
    a(f's_cmp_eq_u32 s{sBR}, 0\ns_cbranch_scc1 YOLD\ns_branch XOLD')
    def old_epi(X):
        kv=[i for i,p in enumerate(pieces) if p[1]!='q']
        if X:
            for i,p in enumerate(pieces): a(lstore(hreg[i],*p[1:]))
            if opt.get('xurg','now')=='wait': a('s_waitcnt lgkmcnt(0)')
            if opt.get('xurg','now')!='T1':
                for i in kv: a(held[i])
        else:
            if opt.get('yurg','mix')=='mix':
                for i,p in enumerate(pieces):
                    if i in kv: a(held[i])
                    a(lstore(hreg[i],*p[1:]))
            else:
                for i in kv: a(held[i])
                for i,p in enumerate(pieces): a(lstore(hreg[i],*p[1:]))
    urg=[held[i] for i,p in enumerate(pieces) if p[1]!='q']
    a('G1Y:')
    ntr1=TR.n; TR.n=ntr0
    g1_dsaddr()
    a('s_waitcnt lgkmcnt(0)')
    if opt.get('tlb',1):
        a(f's_mul_i32 s{sK}, s{sW3}, {10<<20}')
        for i in range(5): a(f's_load_dword s{sSpin}, s[{sWS}:{sWS+1}], s{sK}\ns_add_u32 s{sK}, s{sK}, {2<<20}')
        a(f's_lshl_b32 s{sK}, s{sW3}, 21\ns_load_dword s{sSpin}, s[{sOut}:{sOut+1}], s{sK}')
        a(f's_lshl_b32 s{sK}, s{sW3}, 19\ns_load_dword s{sSpin}, s[{sWo}:{sWo+1}], s{sK}')
    precompute()
    a(f's_lshl_b32 s{sT}, s2, 3\ns_add_u32 s{sT}, s{sT}, s{sWave}\ns_cmp_eq_u32 s{sT}, 7\ns_cbranch_scc0 G1Y1')
    a(f's_mov_b32 s{sT}, {WS_EP}\ns_mov_b64 exec, 1')
    a(f'buffer_load_dword v{vgx[0]}, off, {sr(sWS,4)}, s{sT} sc1\nv_mov_b32 v{vgx[1]}, 1\ns_waitcnt vmcnt(0)')
    a(f'v_add_u32 v{vgx[0]}, 1, v{vgx[0]}')
    a(f'buffer_store_dword v{vgx[0]}, off, {sr(sWS,4)}, s{sT} sc1\nglobal_store_dwordx2 v{t[4]}, {vr(vgx[0],2)}, s[{pDbg}:{pDbg+1}] sc1')
    a('s_mov_b64 exec, -1\nG1Y1:')
    vpf=vgx[4]
    a(f's_lshl_b32 s{sT}, s{sMT}, 4\ns_add_u32 s{sT}, s{sT}, s{sHP}\ns_and_b32 s{sT2}, s{sT}, 1\ns_lshr_b32 s{sT}, s{sT}, 1\ns_lshl_b32 s{sT3}, s{sW3}, 6\ns_add_u32 s{sT}, s{sT}, s{sT3}')
    a(f's_mul_i32 s{sT}, s{sT}, 6144\ns_lshl_b32 s{sT2}, s{sT2}, 10\ns_add_u32 s{sT}, s{sT}, s{sT2}\ns_add_u32 s{sT}, s{sT}, 384')
    a(f'v_min_u32 v{t[2]}, 5, v{lane}\nv_lshrrev_b32 v{t[3]}, 1, v{t[2]}\nv_and_b32 v{t[2]}, 1, v{t[2]}\nv_lshlrev_b32 v{t[2]}, 6, v{t[2]}\nv_lshl_add_u32 v{t[2]}, v{t[3]}, 11, v{t[2]}\nv_add_u32 v{vpf}, s{sT}, v{t[2]}')
    ex={}
    for gi,pos in enumerate(opt.get('vp',[0,4,8])):
        ex[(pos,0)]=[f's_mov_b32 s{sK}, {(gi+1)*4*64*6144}', f'buffer_load_dword v{vdum}, v{vpf}, {sr(sW,4)}, s{sK} offen']
    if opt.get('ctouch',1):
        a(f's_getpc_b64 s[4:5]\ns_lshr_b32 s{sT}, s2, 3\ns_lshl_b32 s{sT}, s{sT}, 11\nv_lshrrev_b32 v{vgx[5]}, 1, v{vfl}\nv_add_u32 v{vgx[5]}, s{sT}, v{vgx[5]}')
        a(f'v_min_u32 v{vgx[5]}, CODE_END-G1Y1-512, v{vgx[5]}')
        Lc=lab('CT')
        ex[(opt.get('ctpos',13),0)]=[f's_cmp_lg_u32 s{sWave}, 4', f's_cbranch_scc1 {Lc}', f'global_load_dword v{vdum}, v{vgx[5]}, s[4:5]', f'{Lc}:']
    a('s_barrier')
    rest=g1_loop(False,ex)
    emit(rest)
    TR.now('mainend')
    assert TR.n==ntr1
    a(f's_cmp_eq_u32 s{sBR}, 0\ns_cbranch_scc1 YPATH\ns_branch XPATH')
    import fy2
    fy2.rest_of_kernel(locals())
    a('END:\ns_endpgm')
    build.trmap=TR.map
    return '; @launch grid=(256,1,1) block=(512,1,1) lds=163840\n.amdgcn_target "amdgcn-amd-amdhsa--gfx950"\n'+kernel_header(NAME)+a.text()+tail.text()+'CODE_END:\n    s_endpgm\n'+'.section .rodata,"a"\n.p2align 6\n'+kernel_desc(NAME,256)
if __name__=='__main__':
    opt=json.loads(sys.argv[2]) if len(sys.argv)>2 else {}
    ref=open('concat_heads__sliding_block__softmax_full_mha__prompt.s.ref').read().split('\n')
    open(sys.argv[1],'w').write('\n'.join(ref[:10])+'\n'+build(False,opt))
```

```python
from asm import *
from fy import *
def rest_of_kernel(U):
    a,tail,opt,TR,stamps=U['a'],U['tail'],U['opt'],U['TR'],U['stamps']
    lab,emit,if_young,if_old,old_block,young_block=U['lab'],U['emit'],U['if_young'],U['if_old'],U['old_block'],U['young_block']
    flag_load,flag_test,flag_check,flag_post,zero,held,old_epi=U['flag_load'],U['flag_test'],U['flag_check'],U['flag_post'],U['zero'],U['held'],U['old_epi']
    urg,heldq,when,flag_load64,flag_check64=U['urg'],U['heldq'],U['when'],U['flag_load64'],U['flag_check64']
    post_if,masked=U['post_if'],U['masked']
    cY=f's_cmp_eq_u32 s{sKH}, 1'; cW=lambda k: f's_cmp_eq_u32 s{sWhen}, {k}'
    def ldws(so,c): return f'buffer_load_dwordx4 v{vl16}, {sr(sWS,4)}, s{so} offen offset:{c*1024} sc1 lds'
    def chunkB(s,X):
        if X and 1<=s<=3: su=[f's_and_b32 s{sK}, s{sMT}, 3', f's_cmp_ge_u32 s{sK}, {s}', f's_cselect_b32 s{sK}, {s-1}, {s}', f's_and_b32 s{sT3}, s{sMT}, 4', f's_or_b32 s{sK}, s{sK}, s{sT3}']
        else: su=[f's_and_b32 s{sK}, s{sMT}, 4', f's_xor_b32 s{sK}, s{sK}, {s}']
        return su+[f's_lshl_b32 s{sK}, s{sK}, 15', f's_add_u32 s{sK}, s{sK}, s{sKVB}']
    def chunkA(i):
        su=[f's_max_u32 s{sK}, s{sMT}, 1', f's_sub_u32 s{sK}, s{sK}, 1', f's_lshl_b32 s{sK}, s{sK}, 15'] if i==0 else [f's_lshl_b32 s{sK}, s{sMT}, 15']
        return su+[f's_add_u32 s{sK}, s{sK}, s{sKVA}']
    def dma4(lds,su):
        o=su+[f's_add_u32 s{sK}, s{sK}, s{sM8}']
        for i in range(2):
            o+=[f's_add_u32 m0, s{sM8}, {lds+i*4096}', f's_add_u32 s{sK}, s{sK}, 4096' if i else 's_nop 0']+[ldws(sK,c) for c in range(4)]
        return o
    def dma8(lds,su):
        return [(su+[f's_add_u32 s{sK}, s{sK}, s{sMw}', f's_add_u32 m0, s{sMw}, {lds}'],ldws(sK,0))]+[([],ldws(sK,c)) for c in range(1,4)]
    def ldW(i,off): return f'buffer_load_dwordx4 v{vgo[i]}, {sr(sWo,4)}, s{sK} offen offset:{off} lds'
    def outW(s):
        b=OSL[s%5]
        return [([f's_add_u32 m0, s{sM4}, {b+16384}', f's_xor_b32 s{sK}, s{sWb}, {((s>>3)<<16)+(s&7)*128*2048}'],ldW(0,0)),([],ldW(1,1024)),([f's_add_u32 s{sK}, s{sK}, {8*2048-2048}'],ldW(0,2048)),([],ldW(1,3072))]
    def outO(s):
        b=OSL[s%5]
        return [([f's_add_u32 m0, s{sM4}, {b}', f's_xor_b32 s{sK}, s{sSp}, {s*4096}', f's_add_u32 s{sK}, s{sK}, s{sOb}'],ldws(sK,0))]+[([],ldws(sK,c)) for c in range(1,4)]
    def outHalf(s):
        b=OSL[s%5]
        return [([f's_add_u32 m0, s{sPm}, {b+16384}', f's_xor_b32 s{sK}, s{sWb}, {(s&7)*128*2048}', f's_add_u32 s{sK}, s{sK}, s{sPw}'],ldW(0,0)),([],ldW(1,1024)),
                ([f's_add_u32 m0, s{sPm}, {b}', f's_xor_b32 s{sK}, s{sSp}, {s*4096}', f's_add_u32 s{sK}, s{sK}, s{sPo}'],ldws(sK,0)),([],ldws(sK,1))]
    def fl(items):
        o=[]
        for su,v in items: o+=su+[v]
        return o
    def QK(sb,kb,q,c):
        return [f'v_mfma_f32_32x32x16_bf16 {vr(sb,16)}, {vr(kb,4)}, {vr(q,4)}, {c}', f'v_mfma_f32_32x32x16_bf16 {vr(sb,16)}, {vr(kb+4,4)}, {vr(q+4,4)}, {vr(sb,16)}']
    def PV(o,vb,sb,c): return f'v_smfmac_f32_32x32x32_bf16 {vr(o,16)}, {vr(vb+4*c,4)}, {vr(sb+8*c,8)}, v{vidx}'
    def SM(l,sb,c): return f'v_smfmac_f32_16x16x64_bf16 {vr(l,4)}, {vr(SEL,4)}, {vr(sb+8*c,8)}, v{vidx}'
    def maxtree(dst, sb, first):
        o=[]
        if first:
            o.append(f'v_max3_f32 v{dst}, v{sb}, v{sb+1}, v{sb+2}')
            for i in range(3,15,2): o.append(f'v_max3_f32 v{dst}, v{dst}, v{sb+i}, v{sb+i+1}')
            o.append(f'v_max_f32 v{dst}, v{dst}, v{sb+15}')
        else:
            for i in range(0,16,2): o.append(f'v_max3_f32 v{dst}, v{dst}, v{sb+i}, v{sb+i+1}')
        return o
    def finish_max(A,mx,tmp,nm,offs,fill=True):
        A(f'v_mov_b32 v{tmp}, v{mx}\ns_nop 1\nv_permlane32_swap_b32 v{tmp}, v{mx}\ns_nop 1\nv_max_f32 v{mx}, v{mx}, v{tmp}')
        A(f'v_sub_f32 v{nm}, {offs}, v{mx}')
        if fill:
            A(f'v_mov_b32 v{nm+1}, v{nm}')
            for i in range(2,16,2): A(f'v_mov_b64 {vr(nm+i,2)}, {vr(nm,2)}')
    def slot(sc, prev, nxt, cur, F):
        E=[f'v_exp_f32 v{sc+i}, v{sc+i}' for i in range(16)]
        g=lambda k: F.get(k,[])
        seq=E[0:2]
        if prev: seq+=[prev[0]]+g('S1')+E[2:3]+[prev[1]]+g('P1')
        else: seq+=g('S1')+E[2:3]+g('P1')
        seq+=E[3:6]
        if nxt: seq+=[nxt[0]]+g('Q0')+E[6:9]+[nxt[1]]+g('Q1')
        else: seq+=g('Q0')+E[6:9]+g('Q1')
        seq+=E[9:12]+[cur[0]]+g('S0')+E[12:13]+[cur[1]]+g('P0')+E[13:16]
        emit(seq)
    def finalize(o,l,q,dst,isA):
        FB=lab('FB'); RT=lab('RT')
        a(f'v_rcp_f32 v{t[0]}, v{l}\nv_cmp_gt_f32 s[4:5], s{sC2}, v{l}')
        a(f'v_maximum3_f32 v{t[1]}, abs(v{o}), abs(v{o+1}), 0')
        for i in range(2,16,2): a(f'v_maximum3_f32 v{t[1]}, abs(v{o+i}), abs(v{o+i+1}), v{t[1]}')
        a(f'v_cmp_gt_f32 s[6:7], s{sC1}, v{t[1]}\nv_cmp_lt_f32 vcc, s{sC0}, v{t[1]}')
        a(f's_and_b64 s[4:5], s[4:5], s[6:7]\ns_and_b64 s[4:5], s[4:5], vcc\ns_cmp_eq_u64 s[4:5], -1\ns_cbranch_scc0 {FB}\n{RT}:')
        for i in range(16): a(f'v_mul_f32 v{o+i}, v{t[0]}, v{o+i}')
        for i in range(8): a(f'v_cvt_pk_bf16_f32 v{dst+i}, v{o+2*i}, v{o+2*i+1}')
        for c in range(2): a(f'buffer_store_dwordx4 {vr(dst+4*c,4)}, v{vos}, {sr(sWS,4)}, s{sOA if isA else sO} offen offset:{c*512} sc1')
        T=tail; C=NM[0]; nm=t[1]
        T(f'{FB}:')
        if isA: T(f's_min_u32 s{sN}, s{sJQ}, 8\ns_add_u32 s{sN}, s{sN}, 1')
        else: T(f's_mov_b32 s{sN}, 64')
        T(f'v_mov_b32 v{t[4]}, 0xff800000\nv_mov_b32 v{nm}, 0')
        for ps in range(2):
            LP=lab('FL')
            if ps==1:
                finish_max(T,t[4],t[2],nm,'0',fill=False); zero(T,o,16); zero(T,l,4)
            T(f's_mov_b32 s{sCnt}, 0\n{LP}:')
            if isA:
                T(f's_sub_u32 s{sT}, s{sJQ}, s{sCnt}\ns_lshl_b32 s{sT}, s{sT}, 12\ns_add_u32 s{sT}, s{sT}, s{sKVA}')
                T(f's_mov_b32 s{sMa}, 0\ns_mov_b32 s{sMb}, {f2u(2.0**100)}\ns_cmp_eq_u32 s{sCnt}, 0\ns_cselect_b32 s{sMa}, 1.0, s{sMa}\ns_cselect_b32 s{sMb}, 0, s{sMb}')
                T(f's_cmp_eq_u32 s{sCnt}, 8\ns_cselect_b32 s{sMa}, -1.0, s{sMa}\ns_cselect_b32 s{sMb}, 0, s{sMb}')
            else:
                T(f's_lshl_b32 s{sT}, s{sCnt}, 12\ns_add_u32 s{sT}, s{sT}, s{sKVB}\ns_mov_b32 s{sMa}, 0\ns_mov_b32 s{sMb}, {f2u(2.0**100)}')
            for c in range(2): T(f'buffer_load_dwordx4 {vr(KF[0]+4*c,4)}, v{vkp}, {sr(sWS,4)}, s{sT} offen offset:{c*1024} sc1')
            if ps==1:
                for c in range(2): T(f'buffer_load_dwordx4 {vr(VF[0]+4*c,4)}, v{vl16}, {sr(sWS,4)}, s{sT} offen offset:{2048+c*1024} sc1')
            T(f'v_mov_b32 v{t[3]}, s{sMb}')
            for r in range(16): T(f'v_fma_f32 v{C+r}, v{XM+r}, s{sMa}, v{t[3]}\nv_min_f32 v{C+r}, v{C+r}, v{nm}')
            T('s_waitcnt vmcnt(0)\ns_nop 0')
            for x in QK(S[0],KF[0],q,vr(C,16)): T(x)
            T('s_nop 11')
            if ps==0:
                for x in maxtree(t[4],S[0],False): T(x)
            else:
                for i in range(16): T(f'v_exp_f32 v{S[0]+i}, v{S[0]+i}')
                T('s_nop 1')
                for c in range(2): T(SM(l,S[0],c)); T(PV(o,VF[0],S[0],c))
            T(f's_add_u32 s{sCnt}, s{sCnt}, 1\ns_cmp_lt_u32 s{sCnt}, s{sN}\ns_cbranch_scc1 {LP}')
        T(f's_nop 11\nv_rcp_f32 v{t[0]}, v{l}\ns_nop 0')
        T(f's_branch {RT}')
    def o_addr(br_o):
        if br_o: o=[f's_lshl_b32 s{sT}, s{sMT}, 2', f's_add_u32 s{sT}, s{sT}, s{sW3}', f's_lshl_b32 s{sT}, s{sT}, 1', f's_add_u32 s{sT}, s{sT}, s{sKH}', f's_lshl_b32 s{sT}, s{sT}, 5']
        else: o=[f's_lshl_b32 s{sT}, s{sJQ}, 5']
        return o+[f's_add_u32 s{sT}, s{sT}, s{sPi}', f's_lshl_b32 s{sO}, s{sT}, 11', f's_add_u32 s{sO}, s{sO}, {WS_OF+(br_o<<22)}', f's_lshl_b32 s{sF2}, s{sT}, 7', f's_add_u32 s{sF2}, s{sF2}, {WS_F2+(br_o<<18)}']
    W0=['s_waitcnt vmcnt(0)']
    wo_=opt.get('wo',[]); wy_=opt.get('wy',[])
    def standin_local():
        pcs,hreg=U['pieces'],U['hreg']
        reg={(p[1],2*p[2]+p[3]):hreg[i] for i,p in enumerate(pcs) if p[1]!='v'}
        D=[NM[1],NM[0],S[0],S[1]]
        a('s_nop 1')
        for mq in range(4):
            for mk in range(4): a(f'v_mfma_f32_16x16x32_bf16 {vr(D[mq]+4*mk,4)}, {vr(reg[("k",mk)],4)}, {vr(reg[("q",mq)],4)}, 0')
        for mq in range(4): emit(maxtree(t[mq],D[mq],True))
        a(f'v_lshlrev_b32 v{vdum}, 2, v{lane}\nv_permlane16_swap_b32 v{t[0]}, v{t[1]}\nv_permlane16_swap_b32 v{t[2]}, v{t[3]}\ns_nop 0')
        a(f'v_max_f32 v{t[0]}, v{t[0]}, v{t[1]}\nv_max_f32 v{t[2]}, v{t[2]}, v{t[3]}\nv_mov_b32 v{t[1]}, v{t[0]}\nv_mov_b32 v{t[3]}, v{t[2]}\ns_nop 0')
        a(f'v_permlane32_swap_b32 v{t[0]}, v{t[1]}\nv_permlane32_swap_b32 v{t[2]}, v{t[3]}\ns_nop 0')
        a(f'v_max_f32 v{t[0]}, v{t[0]}, v{t[1]}\nv_max_f32 v{t[2]}, v{t[2]}, v{t[3]}\nv_sub_f32 v{t[0]}, s{sOffs}, v{t[0]}\nv_sub_f32 v{t[2]}, s{sOffs}, v{t[2]}')
    def phaseB(X):
        ring=96*K if X else 0
        area=0
        def rdK(buf,T): return [f'ds_read_b128 {vr(KF[buf]+4*c,4)}, v{vka[0]} offset:{((T//4)&1)*32768+(T%4)*4096+c*1024}' for c in range(2)]
        def rdV(buf,T): return [f'ds_read_b128 {vr(VF[buf]+4*c,4)}, v{vva[0]} offset:{((T//4)&1)*32768+(T%4)*4096+2048+c*1024}' for c in range(2)]
        if not X: a(f's_lshl_b32 s{sT}, s{sKH}, 14\nv_add_u32 v{vka[0]}, s{sT}, v{vkp}\nv_add_u32 v{vva[0]}, s{sT}, v{vl16}')
        nmb=32*K if X else 144*K
        a(f's_lshr_b32 s{sT}, s{sPm}, 3\ns_add_u32 s{sT}, s{sT}, {nmb}\nv_lshl_add_u32 v{t[4]}, v{lane}, 2, s{sT}\nv_xor_b32 v{vpoll}, 0x100, v{t[4]}')
        zero(a,O[0],40)
        if X:
            if opt.get('xp0',0)==1: when(0,W0+[flag_post(sF1)])()
            a('s_waitcnt lgkmcnt(0)')
            a('s_barrier'); TR.now('T1')
        else:
            a(f's_add_u32 s{sT}, s{sPm}, {128*K}\nv_add_u32 v{vq[0]}, s{sT}, v{vl16}\nv_xor_b32 v{vq[1]}, 0x800, v{vq[0]}')
            young_block(W0)()
            a('s_barrier'); TR.now('YB0')
        for i in range(2):
            for c in range(2): a(f'ds_read_b128 {vr(Q[i]+4*c,4)}, v{vq[i]} offset:{c*1024}')
        emit(rdK(0,0)+rdV(0,0))
        if X:
            young_block(['s_setprio 3']+W0+heldq+[when(1,urg),standin_local]+[f'buffer_store_dword v{t[2*i]}, v{vdum}, {sr(sWS,4)}, s{sNMo} offen offset:{i*256} sc1' for i in range(2)]+['s_setprio 0'])()
        a(f'ds_read_b32 v{NM[0]}, v{t[4]}\nds_read_b32 v{NM[1]}, v{vpoll}')
        if X and opt.get('xp0',0)==0: when(0,W0+[flag_post(sF1)])()
        a('s_waitcnt lgkmcnt(0)')
        if not X: a(flag_load(sFB,sM1))
        def fillnm(nm): return [f'v_mov_b32 v{nm+1}, v{nm}']+[f'v_mov_b64 {vr(nm+i,2)}, {vr(nm,2)}' for i in range(2,16,2)]
        f1=fillnm(NM[1])
        emit(fillnm(NM[0])+f1[:2]+QK(S[0],KF[0],Q[0],vr(NM[0],16))+f1[2:])
        a('s_nop 5')
        TR.now('standin')
        NT=32
        wot=lambda i: [([f's_mov_b32 s{sK2}, {i*16*2048}'],f'buffer_load_dword v{vdum}, v{vwt}, {sr(sWo,4)}, s{sK2} offen')]
        otouch=[([f's_and_b32 s{sK2}, s{sMT}, 3', f's_lshl_b32 s{sK2}, s{sK2}, 1', f's_add_u32 s{sK2}, s{sK2}, s{sKH}', f's_lshl_b32 s{sK2}, s{sK2}, 12', f's_add_u32 s{sK2}, s{sK2}, s{sSp}', f's_add_u32 s{sK2}, s{sK2}, s{sOb}', f'v_lshlrev_b32 v{t[0]}, 2, v{vl16}'],
                 f'buffer_load_dword v{vdum}, v{t[0]}, {sr(sWS,4)}, s{sK2} offen sc1')]
        st=lambda s: dma8(ring+(s&1)*32768,chunkB(s,X))
        sched={n:[] for n in range(64)}
        def put(n,items,tag,pos='P0'):
            for i,(su,v) in enumerate(items): sched[n+i].append((pos,su,v,tag))
        pre={n:[] for n in range(64)}
        d0=opt.get('xd0',3) if X else opt.get('yd0',1)
        for s in range(1,7): put(8*s-2,st(s+1),f'st{s+1}')
        if X:
            put(opt.get('xf1',2),[([],old_block([flag_load(sFB,sM1)]))],'none')
            put(d0,[([],old_block(W0+[flag_check(sFB,sM1)]+dma4(ring+32768,chunkB(1,X))))],'st1')
            put(opt.get('xyf',1),[([],young_block(W0+[flag_post(sFQ),when(1,[flag_post(sF1)])]))],'none','P1')
        else:
            s1=st(1); put(d0,s1[0:1],'st1'); put(d0+1,s1[1:2],'st1','P1'); put(d0+1,s1[2:3],'st1'); put(d0+2,s1[3:4],'st1','P1')
            pre[d0].append((None,W0+[flag_post(sF2A),flag_check(sFB,sM1)]))
        put(opt.get('f2',5) if X else opt.get('yf2',4),[([],flag_load(sFB,sM2))],'f2'); pre[6].append(('f2',([post_if(cW(2),sF1)] if X else [])+[flag_check(sFB,sM2)]))
        put(11,[([],flag_load(sFB,sM3))],'f3'); pre[14].append(('f3',([post_if(cW(3),sF1)] if X else [])+[flag_check(sFB,sM3)]))
        put(20,[([],flag_load(sFB,sOth))],'fo'); pre[22].append(('fo',[flag_check(sFB,sOth)]))
        if opt.get('wot',1): put(26,wot(0),'wt'); put(34,wot(1),'wt')
        if wo_:
            cw=lambda s_: ((s_>>3)<<16)+(s_&7)*128*2048
            it=[]
            for q in range(3):
                su=[f's_mul_i32 s{sT2}, s{sKH}, {(cw((wy_ or wo_)[q])-cw(wo_[q]))&0xffffffff}', f's_add_u32 s{sT2}, s{sT2}, {cw(wo_[q])}', f's_xor_b32 s{sT2}, s{sT2}, s{sWb}']
                for j in range(4):
                    v=f'buffer_load_dwordx4 {vr(H+16*q+4*j,4)}, v{vgo[j&1]}, {sr(sWo,4)}, s{sT2} offen offset:{j*1024}'
                    it.append(([],'\n'.join((su if j==0 else [f's_add_u32 s{sT2}, s{sT2}, {8*2048-2048}'] if j==2 else [])+[v])))
            put(opt.get('wr0',40),it,'wr','P1')
        if opt.get('ct2',1):
            Lc=lab('PC')
            put(35,[([f's_getpc_b64 s[4:5]\n{Lc}:', f's_add_u32 s4, s4, OUTC-{Lc}\ns_addc_u32 s5, s5, 0', f's_andn2_b32 s{sK2}, s2, 7', f's_add_u32 s{sK2}, s{sK2}, s{sWave}', f's_lshl_b32 s{sK2}, s{sK2}, 6', f's_min_u32 s{sK2}, s{sK2}, CODE_END-OUTC-64', f'v_mov_b32 v{t[0]}, s{sK2}'],f'global_load_dword v{vdum}, v{t[0]}, s[4:5]')],'ct')
        yh=opt.get('yh',[10,16,18]); kk=12//len(yh)
        if X:
            put(44,[([],flag_load(sFA,sMskA))],'fa'); pre[46].append(('fa',[flag_check(sFA,sMskA)]))
            put(50,dma8(area,chunkA(0)),'a'); put(54,dma8(area+32768,chunkA(1)),'a')
            put(58,[([],f'buffer_load_dwordx4 {vr(QA+4*c,4)}, v{vl16}, {sr(sWS,4)}, s{sQAo} offen offset:{c*1024} sc1') for c in range(2)],'a')
        else:
            pre[23].append(('fo',[post_if(cY,sF1)]))
            put(36,[([],flag_load(sFO,sME))],'fe'); pre[38].append(('fe',[flag_check(sFO,sME)]))
            put(42,outHalf(0),'o'); put(50,outHalf(1),'o'); put(54,outHalf(2),'o')
            if opt.get('otouch',1): put(58,otouch,'o')
        ops=[]
        def waitfor(tag):
            last=max(i for i,x in enumerate(ops) if x==tag)
            return sum(x!='none' for x in ops[last+1:])
        for T in range(NT):
            kb=T&1
            for qb in range(2):
                n=2*T+qb
                F={k:[] for k in ('S1','P1','Q0','Q1','S0','P0')}
                if qb==0:
                    prev=(SM(L[1],S[1],1),PV(O[1],VF[kb^1],S[1],1)) if T>0 else None
                    nxt=QK(S[1],KF[kb],Q[1],vr(NM[1],16))
                    R=rdK(kb^1,T+1) if T+1<NT else []
                else:
                    prev=(SM(L[0],S[0],1),PV(O[0],VF[kb],S[0],1))
                    nxt=QK(S[0],KF[kb^1],Q[0],vr(NM[0],16)) if T+1<NT else None
                    R=rdV(kb^1,T+1) if T+1<NT else []
                if n%8==6 and n<62:
                    s=n//8+1
                    F['S1']+=[f's_waitcnt vmcnt({waitfor(f"st{s}")}) lgkmcnt(0)']
                    F['S1']+=['s_barrier',lambda s=s: TR.mark(f'B{s}')]
                elif (not X) and n==58:
                    F['S1']+=['s_waitcnt lgkmcnt(0)','s_barrier']
                else:
                    F['S1']+=['s_waitcnt lgkmcnt(0)',TR.commit]
                F['P1']+=R[0:1]; F['Q0']+=R[1:2]
                for pos,su,v,tg in sched[n]:
                    if pos=='P1': F['P1']+=[v]; ops.append(tg)
                for tg,code in pre[n]:
                    if tg: F['Q0']+=[f's_waitcnt vmcnt({waitfor(tg)})']
                    F['Q0']+=code
                for pos,su,v,tg in sched[n]:
                    if pos=='P0':
                        assert not F['P0']
                        h=(len(su)+1)//2
                        F['Q1']+=su[:h]; F['S0']+=su[h:]; F['P0']+=[v]; ops.append(tg)
                if X and n==opt.get('xc',3): F['P1']+=masked(cW(2),urg) if opt.get('msk') else [when(2,urg)]
                if X and n==opt.get('xdd',10): F['P1']+=masked(cW(3),urg) if opt.get('msk') else [when(3,urg)]
                if (not X) and n in yh:
                    assert n<20
                    hs=held[yh.index(n)*kk:(yh.index(n)+1)*kk]
                    F['P1']+=masked(cY,hs) if opt.get('msk') else [young_block(hs)]
                if opt.get('prio',1) and n%2==0:
                    F['Q1']+=[f's_setprio {3-((n+2)%8)//2}' if n<54 else f's_setprio {max(0,3-(n-54)//3)}']
                for k in ('Q1','S0','P0'):
                    if not F[k]: F[k]=['s_nop 0']
                slot(S[qb],prev,nxt,(SM(L[qb],S[qb],0),PV(O[qb],VF[kb],S[qb],0)),F)
        lx=64*K if X else 32*K
        a(f's_add_u32 s{sT}, s{sMw}, {ring}\ns_setprio 0')
        a(SM(L[1],S[1],1)); a(PV(O[1],VF[1],S[1],1))
        TR.now('Bmain')
        a(f'v_add_u32 v{t[2]}, s{sT}, v{vl16}\nv_xor_b32 v{t[3]}, 0x4000, v{t[2]}')
        a(f's_lshl_b32 s{sT}, s{sWave}, 8\ns_add_u32 s{sT}, s{sT}, {lx}\nv_lshl_add_u32 v{t[4]}, v{lane}, 2, s{sT}\nv_xor_b32 v{t[0]}, 0x400, v{t[4]}')
        if X:
            a(f'v_add_u32 v{vka[0]}, s{sMw}, v{vkp}\nv_add_u32 v{vva[0]}, s{sMw}, v{vl16}')
            for r in range(16): a(f'v_min_f32 v{NM[1]+r}, 0, v{XM+r}')
        else: a('s_nop 5')
        a(f'ds_write_b32 v{t[4]}, v{L[1]}')
        for i in range(4): a(f'ds_write_b128 v{t[2]}, {vr(O[1]+4*i,4)} offset:{i*1024}')
        a('s_waitcnt vmcnt(0) lgkmcnt(0)\ns_barrier')
        a(f'ds_read_b32 v{L[1]}, v{t[0]}')
        for i in range(4): a(f'ds_read_b128 {vr(O[1]+4*i,4)}, v{t[3]} offset:{i*1024}')
        if not X: young_block(['s_setprio 1'])()
        a('s_waitcnt lgkmcnt(0)\ns_barrier')
        a(f'v_add_f32 v{L[0]}, v{L[0]}, v{L[1]}')
        for i in range(16): a(f'v_add_f32 v{O[0]+i}, v{O[0]+i}, v{O[1]+i}')
        finalize(O[0],L[0],Q[0],Q[1],False)
        TR.now('Bend')
    def phaseA(X):
        area=0 if X else 64*K
        def rdKA(buf,tt): return [f'ds_read_b128 {vr(KF[buf]+4*c,4)}, v{vka[0]} offset:{(8-tt)*4096+c*1024}' for c in range(2)]
        def rdVA(buf,tt): return [f'ds_read_b128 {vr(VF[buf]+4*c,4)}, v{vva[0]} offset:{(8-tt)*4096+2048+c*1024}' for c in range(2)]
        CD=NM[1]; NA=NM[0]; OA=O[1]; LA=L[0]
        if not X:
            zero(a,OA,20)
            Ls=lab('YS'); Ls2=lab('YS')
            if opt.get('ypost',1)==0: old_block(W0+[flag_post(sF1)])()
            a('s_waitcnt lgkmcnt(0)\ns_barrier'); TR.now('T1')
            for c in range(2): a(f'ds_read_b128 {vr(QA+4*c,4)}, v{vq[0]} offset:{c*1024}')
        emit(rdKA(0,0)+rdVA(0,0))
        if X:
            if opt.get('aprio',1): a('s_setprio 3')
            emit(rdKA(1,1)); zero(a,OA,20)
        elif opt.get('ypost',1)==1: old_block(W0+[flag_post(sF1)])()
        a('s_waitcnt lgkmcnt(0)')
        emit(QK(S[0],KF[0],QA,vr(CD,16)))
        def sync(p):
            def f():
                Lk=lab('YK')
                a(f's_cmp_lg_u32 s{sQB}, {p-1}\ns_cbranch_scc1 {Lk}')
                if p<=4: a('s_waitcnt vmcnt(0)')
                a('s_barrier')
                if p>4: a('s_setprio 1')
                n_=TR.n; TR.now('YAsync'); TR.n=n_
                a(f'{Lk}:')
            return f
        if X:
            emit(QK(S[1],KF[1],QA,'0'))
            a('s_nop 9')
            emit(maxtree(t[4],S[0],True))
        else:
            a('s_nop 11')
            emit(maxtree(t[4],S[0],True))
            old_block([f's_cmp_eq_u32 s{sMT}, 0',f's_cbranch_scc1 {Ls2}',flag_load(sFA,sMskA)]+W0+[flag_check(sFA,sMskA),lambda: TR.now('yok')]+dma4(area,chunkA(0))+[f'{Ls2}:'])()
            sync(1)()
            emit(rdKA(1,1))
            a('s_waitcnt lgkmcnt(0)')
            emit(QK(S[1],KF[1],QA,'0'))
            a('s_nop 9')
        Lm=lab('AM')
        a(f's_cmp_eq_u32 s{sJQ}, 0\ns_cbranch_scc1 {Lm}')
        emit(maxtree(t[4],S[1],False))
        a(f'{Lm}:')
        finish_max(a,t[4],t[2],NA,f's{sOffs}')
        for r in range(16): a(f'v_add_f32 v{S[0]+r}, v{S[0]+r}, v{NA}')
        def poison(T_):
            T_(f'v_mov_b32 v{NA}, {f2u(-2.0**120)}\nv_mov_b32 v{NA+1}, v{NA}')
            for r in range(2,16,2): T_(f'v_mov_b64 {vr(NA+r,2)}, {vr(NA,2)}')
        if not X:
            Lp=lab('AP'); Lr=lab('AR')
            a(f's_cmp_eq_u32 s{sJQ}, 0\ns_cbranch_scc1 {Lp}\n{Lr}:'); tail(f'{Lp}:'); poison(tail); tail(f's_branch {Lr}')
        yblk=young_block([f's_waitcnt vmcnt({2 if opt.get("ychk",9)==10 else 0})',flag_check64(sFB,sM0)]+dma4(0,chunkB(0,False))+[f's_add_u32 m0, s{sM4}, {128*K}',f's_xor_b32 s{sK}, s{sQBo}, 0x800']+[ldws(sK,c) for c in range(4)]+[f's_lshr_b32 s{sK}, s{sM4}, 3',f's_add_u32 m0, s{sK}, {144*K}','s_mov_b32 exec_hi, 0',ldws(sNMo,0),'s_mov_b32 exec_hi, -1'])
        if X: TR.now('Aprep')
        for tt in range(9):
            b=tt&1
            F={k:[] for k in ('S1','P1','Q0','Q1','S0','P0')}
            prev=(SM(LA,S[b^1],1),PV(OA,VF[b^1],S[b^1],1)) if tt>0 else None
            nxt=None
            F['P1']=['s_waitcnt lgkmcnt(0)']
            if tt<8:
                if X:
                    Lp=lab('AP'); Lr=lab('AR')
                    F['S1']=[f's_cmp_eq_u32 s{sJQ}, {tt}', f's_cbranch_scc1 {Lp}', f'{Lr}:']
                    tail(f'{Lp}:\ns_nop 7'); poison(tail); tail(f's_branch {Lr}')
                if tt==7: F['P1']+=[f'v_min_f32 v{CD+r}, v{NA}, -v{XM+r}' for r in range(16)]
                nxt=QK(S[b^1],KF[b^1],QA,vr(CD if tt==7 else NA,16))
                RV=rdVA(b^1,tt+1); RK=rdKA(b,tt+2) if tt+2<=8 else ['s_nop 0','s_nop 0']
                F['Q0']=RV[0:1]; F['Q1']=RV[1:2]; F['S0']=RK[0:1]; F['P0']=RK[1:2]
            if (not X) and tt<=6:
                Lp=lab('YP'); Lr=lab('YR'); p=tt+2
                F['S1']=[f's_cmp_eq_u32 s{sQB}, {p-1}']
                F['S0']=[f's_cbranch_scc1 {Lp}', f'{Lr}:']+F['S0']
                tail(f'{Lp}:')
                if p<=4: tail('s_waitcnt vmcnt(0)')
                tail('s_barrier')
                if p>4: tail('s_setprio 1')
                if TR.on: tail(f's_memtime s[98:99]\ns_waitcnt lgkmcnt(0)\nv_writelane_b32 v{vtr}, s98, {TR.n}')
                tail(f's_cmp_lg_u32 s{sMT}, 0\ns_cbranch_scc1 {Lr}'); poison(tail); tail(f's_branch {Lr}')
            if X:
                xp,xf,xc_=opt.get('xa',[0,4,6])
                if tt<3: F['P1']+=fl(outHalf(tt)[0:1]); F['P0']+=fl(outHalf(tt)[1:2])
                if tt==xp: F['P0']+=[f's_waitcnt vmcnt({2*min(3,tt+1)})',flag_post(sF2)]
                if tt==xf: F['P0']+=[flag_load(sFO,sME)]
                if tt==xc_: F['P1']+=W0+[flag_check(sFO,sME)]
                if xc_<=tt<xc_+3: F['P1']+=fl(outHalf(tt-xc_)[2:3]); F['P0']+=fl(outHalf(tt-xc_)[3:4])
                if opt.get('aprio',1) and tt in (0,2,4,6): F['Q1']+=[f's_setprio {max(0,2-tt//2) if opt.get("aprio",1)==1 else 3-tt//2}']
            if not X:
                if tt==opt.get('yfl',7): F['P0']+=[young_block([flag_load64(sFB,sM0)])]
                if tt==opt.get('ychk',9): F['P0']+=[yblk]
            slot(S[b],prev,nxt,(SM(LA,S[b],0),PV(OA,VF[b],S[b],0)),F)
        a('s_nop 1')
        a(SM(LA,S[0],1)); a(PV(OA,VF[0],S[0],1))
        if (not X) and opt.get('ychk',9)==9: yblk()
        a('s_nop 11')
        finalize(OA,LA,QA,S[1],True)
        if (not X) and opt.get('ychk',9)==10: yblk()
        if not X: a('s_setprio 0'); TR.n+=1
        TR.now('Aend')
    n0=TR.n
    TR.path='X'
    a('XOLD:'); old_epi(True); standin_local()
    a(f's_lshr_b32 s{sT}, s{sM4}, 3\nv_add_u32 v{vdum}, s{sT}, v{vdum}\nds_write_b32 v{vdum}, v{t[0]} offset:{32*K}\nds_write_b32 v{vdum}, v{t[2]} offset:{32*K+256}')
    a('XPATH:')
    phaseB(True); phaseA(True)
    a(f's_mov_b32 s{sF2}, s{sF2A}')
    def tag(s,items): return [(s,su,v) for su,v in items]
    def stream(s0,s1,items,per,issued,hooks={},hooks0={}):
        for s in range(s0,s1+1):
            if s>s0:
                need=max([i for i,x in enumerate(issued) if x<=s],default=-1)
                assert not any(x[0]<=s for x in items)
                if need>=0: a(f's_waitcnt vmcnt({min(63,len(issued)-1-need)})')
                a('s_barrier')
            if s in hooks0: hooks0[s](issued)
            k=0; p=per[s] if isinstance(per,dict) else per
            while items and items[0][0]<=s+4 and (k<p or items[0][0]<=s+1):
                st_,su,v=items.pop(0); emit(su+[v]); issued.append(st_); k+=1
            if s in hooks: hooks[s](issued)
        assert not items
    def full(s0,s1):
        o=[]
        for s in range(s0,s1): o+=tag(s,outW(s)+outO(s))
        return o
    inreg=set(wo_)|set(wy_)
    outW_=outW
    outW=lambda s_: [] if s_ in inreg else outW_(s_)
    early=full(3,7)+tag(7,outW(7))+[(7,[],flag_load(sFO,sML))]+tag(7,outO(7))
    def wput(q,s_,vaddr): return [f'v_add_u32 v{vaddr}, {OSL[s_%5]+16384}, v{vdum}']+[f'ds_write_b128 v{vaddr}, {vr(H+16*q+4*j,4)} offset:{j*1024}' for j in range(4)]
    ofl=opt.get('ofl',2)
    def postP(issued):
        a(flag_post(sK2)); issued.append(99)
    a('s_waitcnt vmcnt(6)')
    if_young('OUTC')
    a(f's_xor_b32 s{sK2}, s{sF2}, 16384\ns_barrier\ns_branch OUTL0')
    nX=TR.n; TR.n=n0
    TR.path='Y'
    a('YOLD:'); old_epi(False); a('YPATH:')
    phaseA(False); phaseB(False)
    TR.n=max(TR.n,nX); TR.path='XY'
    def loader():
        def postY(issued):
            a(f's_waitcnt vmcnt({len(issued)-6})'); a(flag_post(sF2)); issued.append(99); postP(issued)
        a(f'OUTLY:\ns_xor_b32 s{sK2}, s{sF2}, 4096\nOUTL0:')
        a(f'v_add_u32 v{vdum}, s{sM4}, v{vl16}')
        hk={}
        for q,s_ in enumerate(wo_):
            assert s_<=9
            hk[max(0,s_-4)]=(lambda issued,q=q,s_=s_,prev=hk.get(max(0,s_-4)): ((prev(issued) if prev else None),emit(wput(q,s_,t[q])+['s_waitcnt lgkmcnt(0)'])))
        ne=len(early); ep=opt.get('eper',[(ne+4-i)//5 for i in range(5)]+[0])
        stream(0,5,list(early),dict(enumerate(ep)),[1,1,2,2,98,98],hk,{ofl:postY})
        a('OUTL:')
        Lv=lab('LV'); Lw=lab('LW')
        emit(['s_waitcnt vmcnt(4)',flag_test(sML),f's_cbranch_scc0 {Lv}'])
        it=full(8,16); stream(5,15,it,opt.get('oper',(len(it)+8)//9),[7]*4)
        a(f's_branch LEND\n{Lv}:')
        n9=len(outW(9))
        emit(fl(outW(8))+[flag_load(sFO,sML)]+fl(outW(9))+['s_barrier',f's_waitcnt vmcnt({n9})',flag_test(sML),f's_cbranch_scc0 {Lw}'])
        it=tag(8,outO(8))+tag(9,outO(9))+full(10,16); stream(6,15,it,(len(it)+7)//8,[9]*n9)
        a(f's_branch LEND\n{Lw}:')
        emit(fl(outW(10))+[flag_load(sFO,sML),'s_barrier']+W0+[flag_check(sFO,sML)])
        it=tag(8,outO(8))+tag(9,outO(9))+tag(10,outO(10))+full(11,16); stream(7,15,it,(len(it)+6)//7,[])
        a('LEND:')
        if stamps: TR.dump(0,sWS,vdum)
        a('s_endpgm')

    if_old('OUTLY')
    a('OUTC:')
    voa=[8,10,vva[1]]; vwa=[[12,13,14,15],[16,17,18,19],[20,21,22,23]]; u=[24,vka[1],25]; vo=26
    V=Alloc(28)
    acc=[[V('',4,4) for f in range(4)] for m in range(4)]
    V.n=96
    OFr=[[V('',4,4) for m in range(4)] for b in range(2)]
    WFr=[[V('',4,4) for f in range(4)] for b in range(2)]
    bases=[64*K,128*K,0]; sel=[(0,0),(0,32768),(1,0),(2,32768),(2,0)]
    a(f'v_add_u32 v{voa[0]}, {bases[0]}, v{voa[2]}')
    for f in range(4): a(f'v_xor_b32 v{vwa[0][f]}, {bases[0]+16384+32*f}, v{u[1]}')
    def reads(s,j,b):
        bi,o0=sel[s%5]
        def wr(f):
            off=o0+j*8192
            return [f'ds_read_b64_tr_b16 {vr(WFr[b][f],2)}, v{vwa[bi][f]} offset:{off}', f'ds_read_b64_tr_b16 {vr(WFr[b][f]+2,2)}, v{vwa[bi][f]} offset:{off+2048}']
        def xr(m): return [f'ds_read_b128 {vr(OFr[b][m],4)}, v{voa[bi]} offset:{o0+(m>>1)*4096+j*2048+(m&1)*1024}']
        return xr(0)+wr(0)+wr(1)+wr(2)+wr(3)+xr(1)+xr(2)+xr(3)
    def mfmas(b,first):
        M=[]
        for m in range(4):
            for f in (range(4) if m%2==0 else range(3,-1,-1)):
                d=vr(acc[m][f],4)
                M.append(f'v_mfma_f32_16x16x32_bf16 {d}, {vr(WFr[b][f],4)}, {vr(OFr[b][m],4)}, {"0" if first else d}')
        return M
    a(f's_cmp_eq_u32 s{sBR}, 1\ns_cbranch_scc1 OUTCX\nOUTC2:')
    tail('OUTCX:\ns_barrier\ns_branch OUTC2')
    TR.mark('OB0')
    emit(reads(0,0,0))
    a(f'v_add_u32 v{voa[1]}, {bases[1]}, v{voa[2]}\nv_add_u32 v{vdum}, s{sM4}, v{vl16}')
    for i in (1,2):
        for f in range(4): a(f'v_xor_b32 v{vwa[i][f]}, {bases[i]+16384+32*f}, v{u[1]}')
    vtw=u[0]; vtr_=u[1]
    epi=[f'v_and_b32 v{u[2]}, 15, v{lane}', f'v_bfe_u32 v{vtw}, v{lane}, 4, 1', f'v_lshrrev_b32 v{vo}, 5, v{lane}', f'v_lshl_add_u32 v{vtw}, v{vtw}, 1, v{vo}',
         f'v_and_b32 v{vo}, 7, v{lane}', f'v_xor_b32 v{vtw}, v{vtw}, v{vo}', f'v_lshlrev_b32 v{vtw}, 4, v{vtw}', f'v_lshl_add_u32 v{vtw}, v{u[2]}, 7, v{vtw}', f'v_add_u32 v{vtw}, s{sM8}, v{vtw}',
         f'v_lshrrev_b32 v{u[2]}, 3, v{lane}', f'v_xor_b32 v{vtr_}, v{vo}, v{u[2]}', f'v_lshlrev_b32 v{vtr_}, 4, v{vtr_}', f'v_lshl_add_u32 v{vtr_}, v{u[2]}, 7, v{vtr_}', f'v_add_u32 v{vtr_}, s{sM8}, v{vtr_}',
         f'v_lshlrev_b32 v{vo}, 4, v{vo}', f'v_lshl_add_u32 v{vo}, v{u[2]}, 12, v{vo}', f'v_xor_b32 v{u[2]}, 64, v{vtw}']
    def packm(m):
        o=[]
        for p in range(2):
            c0=acc[m][2*p]; o+=[f'v_cvt_pk_bf16_f32 v{c0+i}, v{c0+2*i}, v{c0+2*i+1}' for i in range(4)]
        for p in range(2):
            c0=acc[m][2*p]; o+=(['s_nop 0'] if p else [])+[f'v_permlane16_swap_b32 v{c0}, v{c0+2}', f'v_permlane16_swap_b32 v{c0+1}, v{c0+3}']
        for p in range(2): o+=[f'ds_write_b128 v{(vtw,u[2])[p]}, {vr(acc[m][2*p],4)} offset:{m*2048}']
        return o
    for s in range(16):
        for j in range(2):
            a('s_waitcnt lgkmcnt(0)')
            TR.commit()
            if j==1 and s<15:
                if s+1==ofl: a('s_waitcnt vmcnt(0)')
                elif s<2: a(f's_waitcnt vmcnt({4-2*s})')
                a('s_barrier')
                if s%2==1: TR.mark(f'OB{s+1}')
            R=reads(s,1,1) if j==0 else (reads(s+1,0,0) if s<15 else [])
            M=mfmas(j,s==0 and j==0)
            fill=[[r] for r in R]+[[] for _ in range(16-len(R))]
            if j==1 and s+5 in wy_:
                wp=wput(wy_.index(s+5),s+5,92)
                fill[11]+=wp[0:1]
                for q in range(4): fill[12+q]+=wp[1+q:2+q]
            if s>=5 and epi:
                for q in (12,13,14,15):
                    if epi: fill[q].append(epi.pop(0))
            if s==15 and j==1:
                pm=packm(0)
                for q in range(11,16): fill[q]+=pm[(q-11)*3:(q-10)*3]
            emit(interleave(M,fill))
    TR.now('omain')
    ost=opt.get('k3st',' sc1')
    D=OFr[0][0]
    def rd(m): return [f'ds_read_b128 {vr(D+8*m+4*i,4)}, v{vtr_} offset:{m*2048+i*1024}' for i in range(2)]
    def stq(m):
        o=[]
        for i in range(2): o+=[f's_add_u32 s{sT}, s{sOc}, {(m*16+i*8)*4096}', f'buffer_store_dwordx4 {vr(D+8*m+4*i,4)}, v{vo}, {sr(sOut,4)}, s{sT} offen{ost}']
        return o
    emit(rd(0)+packm(1)+rd(1)+['s_waitcnt lgkmcnt(4)']+stq(0)+packm(2)+rd(2)+['s_waitcnt lgkmcnt(4)']+stq(1)+packm(3)+rd(3)+['s_waitcnt lgkmcnt(4)']+stq(2)+['s_waitcnt lgkmcnt(0)']+stq(3))
    if opt.get('amp'):
        role,k0,k1,mult=opt['amp']
        a('s_waitcnt vmcnt(0)'); TR.now('end')
        f=lambda k: [i for i in TR.map[role] if TR.map[role][i]==k][-1]
        a(f's_cmp_lg_u32 s{sBR}, {1 if role=="X" else 0}\ns_cbranch_scc1 END')
        a(f's_nop 1\nv_readlane_b32 s4, v{vtr}, {f(k0)}\nv_readlane_b32 s5, v{vtr}, {f(k1)}\ns_nop 3\ns_sub_u32 s4, s5, s4\ns_min_u32 s4, s4, 200000\ns_mul_i32 s4, s4, {mult}\ns_lshr_b32 s4, s4, 1')
        a('s_memrealtime s[6:7]\ns_waitcnt lgkmcnt(0)\nAMPL:\ns_memrealtime s[46:47]\ns_waitcnt lgkmcnt(0)\ns_sub_u32 s46, s46, s6\ns_cmp_lt_u32 s46, s4\ns_cbranch_scc1 AMPL')
    if stamps:
        a('s_waitcnt vmcnt(0)'); TR.now('end'); TR.dump(0,sWS,vdum)
        a('s_memrealtime s[4:5]\ns_memtime s[6:7]\ns_waitcnt lgkmcnt(0)\ns_sub_u32 s6, s6, s92')
        a(f'v_mov_b32 v28, s90\nv_mov_b32 v29, s4\nv_mov_b32 v30, s6\nv_mov_b32 v31, 0\ns_lshl_b32 s4, s2, 5\ns_add_u32 s4, s4, {WS_STAMP}\nv_mov_b32 v32, s4')
        a(f'global_store_dwordx4 v32, v[28:31], s[{sWS}:{sWS+1}]')
    a('s_endpgm')
    loader()
```

```python
import sys, json, struct, math
from asm import *
from k1 import WS_STAMP, WS_TRACE, Trace
NAME='concat_heads__sliding_block__softmax_full_mha__prompt_kernel'
WS_QF=0; WS_KV=8<<20; WS_OF=24<<20; WS_FL=32<<20; WS_F2=WS_FL+(256<<10); WS_FQ=WS_F2+(512<<10); WS_NM=WS_FQ+(256<<10); WS_EP=WS_NM+(512<<10); WS_SIZE=WS_EP+128
def f2u(x): return struct.unpack('<I',struct.pack('<f',x))[0]
QSCALE=f2u((32**-0.5)*math.log2(math.e))
OFFS=88.0
SPIN=1<<20
K=1024
pDbg=6; sX=8; sW=12; sWS=16; sWo=36; sOut=40
sWave=20; sMT=21; sHP=22; sBR=23; sHD=24; sT=25; sT2=26; sT3=27; sW3=28; sKH=29; sSpin=30; sK=31
sQS=32
sQo=34; sKV0=35; sKV1=44; sF1=45
sXm=46; sWm=50; sKX=52; sKW=53
sCnt=46; sN=47; sMa=48; sMb=49; sF2b=50; sK2=51
_S=Alloc(54)
sKVB,sKVA,sM8,sMw,sFB,sFA,sMsk,sOth,sMskA,sJQ,sQB,sO,sF2,sPi,sOffs,sOb,sFO,sME,sML,sWb,sM4,sSp,sC0,sC1,sC2,sQBo,sQAo,sPm,sPw,sPo,sOc,sOA,sF2A,sWhen,sM1,sM2=[_S(str(i)) for i in range(36)]
sM3=3; sFQ=33; sM0=94; sNMo=96
assert _S.n<=90
vtr=1; lane=2; vl16=3; vst=4; vfl=5; vtag=6
vka=[8,9]; vva=[10,11]; vq=[12,13]; vpoll=14; vkp=16; vidx=17; vos=18; vgo=[19,20]; vwt=21; t=[22,23,24,25,26]; vdum=27
SEL=28; XM=32
NM=[64,48]; Q=[80,88]; O=[96,112]; L=[128,132]; S=[136,152]; KF=[168,176]; VF=[184,192]; QA=200
H=208
OSL=[64*K,96*K,128*K,32*K,0]

def build(stamps=False,opt={}):
    a=Asm(); tail=Asm()
    TR=Trace(a,(stamps and opt.get('trace') is not None) or opt.get('amp'),vtr)
    uid=[0]
    def lab(p):
        uid[0]+=1; return f'{p}{uid[0]}'
    def emit(lst):
        for x in lst:
            if callable(x): x()
            else: a(x)
    def if_young(name): a(f's_cmp_ge_u32 s{sWave}, 4\ns_cbranch_scc1 {name}')
    def if_old(name): a(f's_cmp_lt_u32 s{sWave}, 4\ns_cbranch_scc1 {name}')
    def old_block(lst):
        def f():
            Lb=lab('OB'); if_young(Lb); emit(lst); a(f'{Lb}:')
        return f
    def young_block(lst):
        def f():
            Lb=lab('YB'); if_old(Lb); emit(lst); a(f'{Lb}:')
        return f
    def flag_load(soff,smask):
        return f's_mov_b32 exec_lo, s{smask}\ns_mov_b32 exec_hi, 0\nbuffer_load_dwordx2 {vr(vpoll,2)}, v{vfl}, {sr(sWS,4)}, s{soff} offen sc1\ns_mov_b64 exec, -1'
    def flag_test(smask):
        return f'v_cmp_eq_u64 vcc, {vr(vtag,2)}, {vr(vpoll,2)}\ns_and_b32 s{sT3}, vcc_lo, s{smask}\ns_cmp_eq_u32 s{sT3}, s{smask}'
    def flag_check(soff,smask):
        def f():
            Lc=lab('FC'); D=lab('FD')
            a(flag_test(smask)); a(f's_cbranch_scc0 {Lc}\n{D}:')
            tail(f'{Lc}:\ns_mov_b32 s{sSpin}, 0\n{Lc}x:\ns_andn2_b32 s{sT3}, s{smask}, s{sT3}')
            if opt.get('slp'): tail(f's_sleep {opt["slp"]}')
            tail(flag_load(soff,sT3)); tail('s_waitcnt vmcnt(0)')
            tail(flag_test(smask)); tail(f's_cbranch_scc1 {D}')
            tail(f's_add_u32 s{sSpin}, s{sSpin}, 1\ns_cmp_lt_u32 s{sSpin}, {SPIN}\ns_cbranch_scc1 {Lc}x\ns_branch {D}')
        return f
    def flag_post(soff):
        return f's_mov_b64 exec, 0xff\nbuffer_store_dwordx4 {vr(vtag,4)}, v{vl16}, {sr(sWS,4)}, s{soff} offen sc1\ns_mov_b64 exec, -1'
    def post_if(cmp,soff):
        return f'{cmp}\ns_cselect_b64 exec, 0xff, 0\nbuffer_store_dwordx4 {vr(vtag,4)}, v{vl16}, {sr(sWS,4)}, s{soff} offen sc1\ns_mov_b64 exec, -1'
    def masked(cmp,lst): return [cmp,'s_cselect_b64 exec, -1, 0']+lst+['s_mov_b64 exec, -1']
    def when(k,lst):
        def f():
            Lb=lab('WH'); a(f's_cmp_lg_u32 s{sWhen}, {k}\ns_cbranch_scc1 {Lb}'); emit(lst); a(f'{Lb}:')
        return f
    def flag_load64(soff,sm): return f's_mov_b64 exec, s[{sm}:{sm+1}]\nbuffer_load_dwordx2 {vr(vpoll,2)}, v{vfl}, {sr(sWS,4)}, s{soff} offen sc1\ns_mov_b64 exec, -1'
    def flag_check64(soff,sm):
        def f():
            Lc=lab('FC'); D=lab('FD')
            tst=f'v_cmp_eq_u64 vcc, {vr(vtag,2)}, {vr(vpoll,2)}\ns_and_b64 vcc, vcc, s[{sm}:{sm+1}]\ns_cmp_eq_u64 vcc, s[{sm}:{sm+1}]'
            a(tst); a(f's_cbranch_scc0 {Lc}\n{D}:')
            tail(f'{Lc}:\ns_mov_b32 s{sSpin}, 0\n{Lc}x:'); tail(flag_load64(soff,sm)); tail('s_waitcnt vmcnt(0)'); tail(tst); tail(f's_cbranch_scc1 {D}')
            tail(f's_add_u32 s{sSpin}, s{sSpin}, 1\ns_cmp_lt_u32 s{sSpin}, {SPIN}\ns_cbranch_scc1 {Lc}x\ns_branch {D}')
        return f
    def zero(A,r,n):
        for i in range(0,n,2): A(f'v_mov_b64 {vr(r+i,2)}, 0')
    a('s_cmp_ge_u32 s2, 256\ns_cbranch_scc1 END')
    if stamps: a('s_memrealtime s[90:91]\ns_memtime s[92:93]')
    TR.now('start')
    a(f's_bfe_u32 s{sBR}, s2, 0x10003\ns_mul_i32 s{sT}, s{sBR}, 24\ns_add_u32 s4, s0, s{sT}\ns_addc_u32 s5, s1, 0')
    a(f's_load_dwordx2 s[{sX}:{sX+1}], s[4:5], 0\ns_load_dwordx2 s[{sW}:{sW+1}], s[4:5], 8\ns_load_dwordx2 s[{sWo}:{sWo+1}], s[4:5], 16')
    a(f's_load_dwordx2 s[{sOut}:{sOut+1}], s[0:1], 48\ns_load_dwordx2 s[{pDbg}:{pDbg+1}], s[0:1], 56\ns_load_dwordx2 s[{sWS}:{sWS+1}], s[0:1], 64')
    a(f'v_lshrrev_b32 v{vdum}, 6, v0\nv_and_b32 v{lane}, 63, v0')
    a(f'v_readfirstlane_b32 s{sWave}, v{vdum}')
    a(f's_bfe_u32 s{sMT}, s2, 0x20004\ns_and_b32 s{sT}, s2, 1\ns_lshl_b32 s{sT}, s{sT}, 2\ns_add_u32 s{sMT}, s{sMT}, s{sT}')
    a(f's_lshr_b32 s{sHP}, s2, 6\ns_and_b32 s{sT}, s2, 6\ns_lshl_b32 s{sT}, s{sT}, 1\ns_add_u32 s{sHP}, s{sHP}, s{sT}')
    a(f's_and_b32 s{sW3}, s{sWave}, 3\ns_lshr_b32 s{sKH}, s{sWave}, 2')
    a(f's_mov_b32 s{sX+2}, 0x400000\ns_mov_b32 s{sX+3}, 0x20000\ns_mov_b32 s{sW+2}, 0x600000\ns_mov_b32 s{sW+3}, 0x20000')
    vxa=[64,65]; vwa=[66,67]; vgx=list(range(68,76)); vgw=[76,77]; g=[78,79]
    V=Alloc(80)
    acc=[[[None]*2 for s in range(3)] for m in range(4)]
    for m in range(4):
        for s in range(2):
            for fb in range(2): acc[m][s][fb]=V('',4,4)
    for tl in range(2):
        for fb in range(2):
            for mm in range(2): acc[2*tl+mm][2][fb]=V('',4,4)
    XF=[None,None]; WF=[None,None]
    for b in (1,0):
        XF[b]=[V('',4,4) for m in range(4)]; WF[b]=[[V('',4,4) for fb in range(2)] for s in range(3)]
    assert V.n==256
    def g1_dsaddr():
        a(f's_mul_i32 s{sT}, s{sW3}, 24576')
        a(f'v_and_b32 v{t[2]}, 15, v{lane}\nv_lshrrev_b32 v{t[3]}, 4, v{lane}\nv_bfe_u32 v{t[4]}, v{lane}, 1, 3')
        a(f'v_xor_b32 v{t[4]}, v{t[4]}, v{t[3]}\nv_lshlrev_b32 v{t[4]}, 4, v{t[4]}\nv_lshl_add_u32 v{t[4]}, v{t[2]}, 7, v{t[4]}')
        a(f'v_add_u32 v{vxa[0]}, s{sT}, v{t[4]}\nv_xor_b32 v{vxa[1]}, 64, v{vxa[0]}')
        a(f'v_lshlrev_b32 v{vst}, 4, v{t[2]}\nv_lshl_add_u32 v{vst}, v{t[3]}, 9, v{vst}')
        a(f'v_bfe_u32 v{t[2]}, v{lane}, 2, 2\nv_lshl_add_u32 v{t[4]}, v{t[3]}, 3, v{t[2]}\nv_lshlrev_b32 v{t[4]}, 7, v{t[4]}')
        a(f'v_and_b32 v{t[1]}, 3, v{lane}\nv_lshl_add_u32 v{t[4]}, v{t[1]}, 3, v{t[4]}')
        a(f'v_lshrrev_b32 v{t[2]}, 1, v{t[2]}\nv_lshl_add_u32 v{t[4]}, v{t[2]}, 5, v{t[4]}')
        a(f's_xor_b32 s{sT}, s{sKH}, s{sBR}\ns_xor_b32 s{sT}, s{sT}, 1')
        a(f'v_and_b32 v{t[3]}, 1, v{t[3]}\nv_xor_b32 v{t[3]}, s{sT}, v{t[3]}\nv_lshl_add_u32 v{t[4]}, v{t[3]}, 6, v{t[4]}')
        a(f'v_add_u32 v{vwa[0]}, {96*K}, v{t[4]}\nv_xor_b32 v{vwa[1]}, 32, v{vwa[0]}')
    def precompute():
        a=Asm()
        a(f'v_lshlrev_b32 v{vl16}, 4, v{lane}\nv_and_b32 v{vfl}, 31, v{lane}\nv_lshlrev_b32 v{vfl}, 7, v{vfl}\nv_lshrrev_b32 v{t[0]}, 5, v{lane}\nv_mul_u32_u24 v{t[0]}, {WS_FQ-WS_FL}, v{t[0]}\nv_add_u32 v{vfl}, v{vfl}, v{t[0]}')
        a(f's_lshl_b32 s{sHD}, s{sHP}, 1\ns_add_u32 s{sHD}, s{sHD}, 1\ns_sub_u32 s{sHD}, s{sHD}, s{sBR}')
        a(f's_mov_b32 s{sWS+2}, {WS_SIZE}\ns_mov_b32 s{sWS+3}, 0x20000\ns_mov_b32 s{sWo+2}, 0x200000\ns_mov_b32 s{sWo+3}, 0x20000\ns_mov_b32 s{sOut+2}, 0x800000\ns_mov_b32 s{sOut+3}, 0x20000')
        a(f's_mov_b32 s{sQS}, {QSCALE}')
        a(f's_xor_b32 s{sT}, s{sHD}, s{sKH}\ns_lshl_b32 s{sT2}, s{sBR}, 5\ns_add_u32 s{sT}, s{sT}, s{sT2}')
        a(f's_lshl_b32 s{sT2}, s{sMT}, 2\ns_add_u32 s{sT2}, s{sT2}, s{sW3}')
        a(f's_lshl_b32 s{sF1}, s{sT}, 5\ns_add_u32 s{sF1}, s{sF1}, s{sT2}')
        a(f's_lshl_b32 s{sQo}, s{sF1}, 12\ns_lshl_b32 s{sKV0}, s{sF1}, 13\ns_add_u32 s{sKV0}, s{sKV0}, {WS_KV}\ns_add_u32 s{sKV1}, s{sKV0}, 4096')
        a(f's_lshl_b32 s{sF1}, s{sF1}, 7\ns_add_u32 s{sF1}, s{sF1}, {WS_FL}')
        a(f's_lshl_b32 s{sM8}, s{sW3}, 13\ns_lshl_b32 s{sM4}, s{sW3}, 12\ns_lshl_b32 s{sMw}, s{sWave}, 12')
        a(f's_add_u32 s{sT}, s{sM8}, {96*K}\nv_add_u32 v{g[0]}, s{sT}, v{vst}\ns_add_u32 s{sT}, s{sM4}, 8192\nv_add_u32 v{g[1]}, s{sT}, v{vst}')
        a(f's_sub_u32 s{sT3}, s{sT2}, 4\ns_lshl_b32 s{sT3}, 1, s{sT3}\ns_lshl_b32 s{sT}, s{sMT}, 2\ns_lshl_b32 s{sMskA}, 15, s{sT}\ns_lshr_b32 s{sT}, s{sMskA}, 4\ns_or_b32 s{sMskA}, s{sMskA}, s{sT}')
        a(f's_cmp_eq_u32 s{sBR}, 0\ns_cselect_b32 s{sMskA}, s{sT3}, s{sMskA}')
        a(f'v_mov_b32 v{vidx}, 0xdddddddd')
        a(f'v_bfe_u32 v{t[2]}, v{lane}, 2, 1\nv_mul_u32_u24 v{t[3]}, 0x3f80, v{t[2]}\nv_lshl_or_b32 v{SEL+2}, v{t[3]}, 16, v{t[3]}')
        a(f'v_mov_b32 v{SEL+3}, v{SEL+2}\nv_xor_b32 v{SEL}, 0x3f803f80, v{SEL+2}\nv_xor_b32 v{SEL+1}, 0x3f803f80, v{SEL+2}')
        a(f'v_bfe_u32 v{t[3]}, v{lane}, 3, 2\nv_and_b32 v{t[4]}, 35, v{lane}\nv_lshl_add_u32 v{t[4]}, v{t[3]}, 2, v{t[4]}\nv_lshl_add_u32 v{t[4]}, v{t[2]}, 4, v{t[4]}\nv_lshlrev_b32 v{vkp}, 4, v{t[4]}')
        a(f's_lshl_b32 s{sT}, s{sHD}, 18\ns_add_u32 s{sKVA}, s{sT}, {WS_KV}\ns_add_u32 s{sKVB}, s{sT}, {WS_KV+(32<<18)}')
        a(f's_lshl_b32 s{sT}, s{sHD}, 12\ns_add_u32 s{sFA}, s{sT}, {WS_FL}\ns_add_u32 s{sFB}, s{sT}, {WS_FL+32*4096}')
        a(f's_lshr_b32 s{sT}, s{sMT}, 2\ns_lshl_b32 s{sT}, s{sT}, 4\ns_lshl_b32 s{sMsk}, 0xffff, s{sT}\ns_not_b32 s{sOth}, s{sMsk}')
        a(f's_and_b32 s{sT}, s{sHD}, 1\ns_lshl_b32 s{sWb}, s{sT}, 16\ns_lshl_b32 s{sSp}, s{sT}, 15\ns_lshl_b32 s{sT}, s{sT}, 4\ns_add_u32 s{sPi}, s{sT}, s{sHP}')
        a(f's_lshl_b32 s{sME}, 0xffff, s{sT}\ns_not_b32 s{sML}, s{sME}')
        a(f's_mov_b32 s{sC0}, {f2u(2.0**-104)}\ns_mov_b32 s{sC1}, 0x7f800000\ns_mov_b32 s{sC2}, {f2u(2.0**120)}\ns_mov_b32 s{sOffs}, {f2u(-OFFS)}')
        a(f's_sub_u32 s{sT}, 11, s{sWave}\ns_cmp_gt_u32 s{sKH}, s{sBR}\ns_cselect_b32 s{sQB}, s{sT}, s{sWave}\ns_lshl_b32 s{sJQ}, s{sMT}, 3\ns_add_u32 s{sJQ}, s{sJQ}, s{sQB}')
        a(f's_lshl_b32 s{sT}, s{sHD}, 6\ns_add_u32 s{sQAo}, s{sT}, s{sJQ}\ns_lshl_b32 s{sQAo}, s{sQAo}, 11')
        a(f's_lshl_b32 s{sT2}, s{sW3}, 1\ns_add_u32 s{sT2}, s{sT2}, s{sKH}\ns_lshl_b32 s{sT3}, s{sMT}, 3\ns_add_u32 s{sT}, s{sT}, s{sT3}\ns_add_u32 s{sT}, s{sT}, s{sT2}\ns_lshl_b32 s{sQBo}, s{sT}, 11\ns_add_u32 s{sQBo}, s{sQBo}, {WS_QF+(32<<17)}')
        a(f's_cmp_eq_u32 s{sBR}, 0\ns_cselect_b32 s{sT2}, s{sQB}, s{sT2}\ns_lshl_b32 s{sT2}, s{sT2}, 11\ns_add_u32 s{sT2}, s{sT2}, 8192\nv_add_u32 v{vq[0]}, s{sT2}, v{vl16}\nv_xor_b32 v{vq[1]}, 0x800, v{vq[0]}')
        a(f's_lshl_b32 s{sT}, s{sKH}, 14\ns_add_u32 s{sT}, s{sT}, {96*K}\ns_lshl_b32 s{sT2}, s{sQB}, 12\ns_add_u32 s{sT2}, s{sT2}, {64*K}\ns_cmp_eq_u32 s{sBR}, 0\ns_cselect_b32 s{sT}, s{sT2}, s{sT}')
        a(f'v_add_u32 v{vka[0]}, s{sT}, v{vkp}\nv_add_u32 v{vva[0]}, s{sT}, v{vl16}')
        a(f'v_bfe_u32 v{t[2]}, v{lane}, 4, 1\nv_lshrrev_b32 v{t[3]}, 5, v{lane}\nv_and_b32 v{vos}, 15, v{lane}\nv_lshlrev_b32 v{vos}, 4, v{vos}\nv_lshl_add_u32 v{vos}, v{t[2]}, 10, v{vos}\nv_lshl_add_u32 v{vos}, v{t[3]}, 8, v{vos}')
        a(f'v_and_b32 v{t[2]}, 31, v{lane}\nv_lshlrev_b32 v{t[3]}, 4, v{t[3]}\nv_sub_u32 v{t[2]}, v{t[2]}, v{t[3]}\nv_cvt_f32_i32 v{t[2]}, v{t[2]}\nv_mul_f32 v{t[2]}, {f2u(2.0**100)}, v{t[2]}')
        for r in range(16): a(f'v_add_f32 v{XM+r}, {f2u((0.5-r)*2.0**100)}, v{t[2]}')
        for r in range(16): a(f'v_min_f32 v{NM[1]+r}, 0, v{XM+r}')
        a(f's_lshl_b32 s{sT}, s{sBR}, 6\ns_lshl_b32 s{sT2}, s{sHP}, 2\ns_add_u32 s{sT}, s{sT}, s{sT2}\ns_add_u32 s{sT}, s{sT}, s{sW3}')
        a(f's_lshl_b32 s{sOb}, s{sT}, 16\ns_add_u32 s{sOb}, s{sOb}, {WS_OF}\ns_lshl_b32 s{sFO}, s{sT}, 12\ns_add_u32 s{sFO}, s{sFO}, {WS_F2}')
        a(f'v_lshrrev_b32 v{t[2]}, 4, v{lane}\nv_and_b32 v{t[3]}, 15, v{lane}\nv_lshlrev_b32 v{t[4]}, 1, v{t[2]}\nv_xor_b32 v{t[3]}, v{t[3]}, v{t[4]}')
        a(f's_lshr_b32 s{sT}, s{sW3}, 1\ns_lshl_b32 s{sT}, s{sT}, 6\ns_and_b32 s{sT2}, s{sW3}, 1\ns_lshl_b32 s{sT2}, s{sT2}, 4\ns_add_u32 s{sT}, s{sT}, s{sT2}')
        a(f'v_add_u32 v{t[2]}, s{sT}, v{t[2]}\nv_lshlrev_b32 v{t[2]}, 11, v{t[2]}\nv_lshl_add_u32 v{vgo[0]}, v{t[3]}, 4, v{t[2]}')
        a(f's_lshl_b32 s{sT}, s{sMT}, 8\nv_add_u32 v{vgo[0]}, s{sT}, v{vgo[0]}')
        a(f'v_xor_b32 v{vgo[1]}, 128, v{vgo[0]}\nv_add_u32 v{vgo[1]}, {4*2048-1024}, v{vgo[1]}')
        a(f's_and_b32 s{sT2}, s{sHP}, 3\ns_lshl_b32 s{sT2}, s{sT2}, 3\ns_add_u32 s{sT2}, s{sT2}, s{sWave}\ns_lshl_b32 s{sT2}, s{sT2}, 16\ns_add_u32 s{sT}, s{sT}, s{sT2}')
        a(f'v_lshrrev_b32 v{t[2]}, 2, v{lane}\nv_and_b32 v{t[3]}, 3, v{lane}\nv_lshlrev_b32 v{t[3]}, 6, v{t[3]}\nv_lshl_add_u32 v{t[2]}, v{t[2]}, 11, v{t[3]}\nv_add_u32 v{vwt}, s{sT}, v{t[2]}')
        a(f's_lshl_b32 s{sT}, s{sKH}, 11\ns_add_u32 s{sPm}, s{sM4}, s{sT}\ns_add_u32 s{sPo}, s{sOb}, s{sT}\ns_lshl_b32 s{sPw}, s{sKH}, 14')
        a(f's_and_b32 s{sT}, s{sW3}, 1\ns_lshl_b32 s{sT}, s{sT}, 13\nv_add_u32 v{vva[1]}, s{sT}, v{vl16}')
        a(f'v_bfe_u32 v{t[0]}, v{lane}, 2, 3\nv_lshrrev_b32 v{t[1]}, 5, v{lane}\nv_lshl_add_u32 v{t[1]}, v{t[1]}, 4, v{t[0]}\nv_lshlrev_b32 v{t[1]}, 8, v{t[1]}')
        a(f'v_and_b32 v{t[2]}, 3, v{lane}\nv_lshl_add_u32 v{t[1]}, v{t[2]}, 3, v{t[1]}')
        a(f's_lshr_b32 s{sT}, s{sW3}, 1\ns_lshl_b32 s{sT}, s{sT}, 2\nv_xor_b32 v{t[0]}, s{sT}, v{t[0]}\nv_lshl_add_u32 v{vka[1]}, v{t[0]}, 5, v{t[1]}')
        a(f's_lshl_b32 s{sT}, s{sJQ}, 5\ns_add_u32 s{sT}, s{sT}, s{sPi}\ns_lshl_b32 s{sOA}, s{sT}, 11\ns_add_u32 s{sOA}, s{sOA}, {WS_OF}\ns_lshl_b32 s{sF2A}, s{sT}, 7\ns_add_u32 s{sF2A}, s{sF2A}, {WS_F2}')
        a(f's_lshl_b32 s{sT}, s{sMT}, 2\ns_add_u32 s{sT}, s{sT}, s{sW3}\ns_lshl_b32 s{sT}, s{sT}, 1\ns_add_u32 s{sT}, s{sT}, s{sKH}\ns_lshl_b32 s{sT}, s{sT}, 5\ns_add_u32 s{sT}, s{sT}, s{sPi}')
        a(f's_lshl_b32 s{sO}, s{sT}, 11\ns_add_u32 s{sO}, s{sO}, {WS_OF+(1<<22)}\ns_lshl_b32 s{sF2}, s{sT}, 7\ns_add_u32 s{sF2}, s{sF2}, {WS_F2+(1<<18)}')
        a(f'v_mov_b64 {vr(vtag,2)}, 0')
        a(f's_or_b32 s{sT}, s{sHD}, 1\ns_lshl_b32 s{sT}, s{sT}, 3\ns_add_u32 s{sT}, s{sT}, s{sMT}\ns_lshl_b32 s{sT}, s{sT}, 2\ns_add_u32 s{sT}, s{sT}, s{sW3}\ns_lshl_b32 s{sNMo}, s{sT}, 9\ns_add_u32 s{sNMo}, s{sNMo}, {WS_NM}')
        a(f's_add_u32 s{sFQ}, s{sF1}, {WS_FQ-WS_FL}\ns_and_b32 s{sT}, s{sMT}, 4\ns_lshl_b32 s{sT}, s{sT}, 2\ns_lshl_b32 s{sM0}, 15, s{sT}')
        a(f's_lshl_b32 s{sT}, s{sMT}, 2\ns_add_u32 s{sT}, s{sT}, s{sW3}\ns_lshl_b32 s{sM0+1}, 1, s{sT}')
        a(f's_and_b32 s{sT}, s{sMT}, 3\ns_mul_i32 s{sT2}, s{sT}, s{sBR}')
        for i,r in ((1,sM1),(2,sM2),(3,sM3)):
            a(f's_cmp_ge_u32 s{sT2}, {i}\ns_cselect_b32 s{sT3}, {4*(i-1)}, {4*i}\ns_lshl_b32 s{r}, s{sM0}, s{sT3}')
        wt=opt.get('when',[0,0,0,2,1,2,3,3]); assert 1 not in wt[:4] and 0 not in wt[4:]
        a(f's_lshl_b32 s{sT2}, s{sKH}, 2\ns_add_u32 s{sT}, s{sT}, s{sT2}\ns_lshl_b32 s{sT}, s{sT}, 1\ns_lshr_b32 s{sWhen}, {sum(w<<(2*i) for i,w in enumerate(wt))}, s{sT}\ns_and_b32 s{sWhen}, s{sWhen}, 3')
        a(f's_lshl_b32 s{sOc}, s{sHP}, 1\ns_and_b32 s{sT}, s{sW3}, 1\ns_add_u32 s{sOc}, s{sOc}, s{sT}\ns_lshl_b32 s{sOc}, s{sOc}, 18')
        a(f's_lshl_b32 s{sT}, s{sBR}, 11\ns_add_u32 s{sOc}, s{sOc}, s{sT}\ns_lshl_b32 s{sT}, s{sMT}, 8\ns_add_u32 s{sOc}, s{sOc}, s{sT}\ns_lshr_b32 s{sT}, s{sW3}, 1\ns_lshl_b32 s{sT}, s{sT}, 7\ns_add_u32 s{sOc}, s{sOc}, s{sT}')
        a(f'v_mov_b32 v{t[4]}, 0')
        return a
    def groups(a_):
        G=[]
        for x in a_.L:
            x=x.strip()
            if G and (x.startswith('s_cselect') or 'exec' in x or (G[-1][-1].startswith('s_mov_b') and 'exec' in G[-1][-1] and not G[-1][-1].endswith('exec, -1'))): G[-1].append(x)
            else: G.append([x])
        return G
    def dmaX(s,jj,first):
        o=[[f's_add_u32 m0, s{sXm+jj}, {(s%3)*8192}']+([f's_movk_i32 s{sKX}, {s*128}'] if first else [])]
        o+=[[f'buffer_load_dwordx4 v{vgx[2*jj]}, {sr(sX,4)}, s{sKX} offen lds'],[f'buffer_load_dwordx4 v{vgx[2*jj+1]}, {sr(sX,4)}, s{sKX} offen offset:1024 lds']]
        return o
    def dmaW(n,i,setk=True):
        s,seg=divmod(n,3)
        return [[f's_add_u32 m0, s{sWm+i}, {(n%8)*8192}']+([f's_mov_b32 s{sKW}, {s*64*6144+seg*2048}'] if setk else []),[f'buffer_load_dwordx4 v{vgw[i]}, {sr(sW,4)}, s{sKW} offen lds']]
    def flat(groups):
        o=[]
        for gr in groups:
            o+=gr
            if len(gr)==1 and 'm0' in gr[0]: o.append('s_nop 0')
        return o
    cols=[(s,fb) for s in range(3) for fb in range(2)]
    def reads(s,j,b):
        def wr(seg,fb):
            off=((3*s+seg)%8)*8192+j*4096
            return [f'ds_read_b64_tr_b16 {vr(WF[b][seg][fb],2)}, v{vwa[fb]} offset:{off}', f'ds_read_b64_tr_b16 {vr(WF[b][seg][fb]+2,2)}, v{vwa[fb]} offset:{off+512}']
        def xr(m): return [f'ds_read_b128 {vr(XF[b][m],4)}, v{vxa[j]} offset:{(s%3)*8192+m*2048}']
        R=xr(0)
        for c in cols: R+=wr(*c)
        return R+xr(1)+xr(2)+xr(3)
    def mfmas(b, first):
        M=[]
        for m in range(4):
            for seg,fb in (cols if m%2==0 else cols[::-1]):
                A_,B_=(WF[b][seg][fb],XF[b][m]) if seg<2 else (XF[b][m],WF[b][seg][fb])
                d=vr(acc[m][seg][fb],4)
                M.append(f'v_mfma_f32_16x16x32_bf16 {d}, {vr(A_,4)}, {vr(B_,4)}, {"0" if first else d}')
        return M
    def stage_full(s):
        return dmaX(s,0,True)+dmaW(3*s,0)+dmaW(3*s+1,0)+dmaW(3*s+2,0)+dmaX(s,1,False)+dmaW(3*s,1)+dmaW(3*s+1,1)+dmaW(3*s+2,1)+dmaX(s,2,False)+dmaX(s,3,False)
    pieces=[(acc[0][1][0],'k',0,0),(acc[0][0][0],'q',0,0),(acc[0][2][1],'v',0,1),(acc[0][2][0],'v',0,0),(acc[1][1][0],'k',0,1),(acc[1][0][0],'q',0,1),
            (acc[2][0][0],'q',1,0),(acc[2][1][0],'k',1,0),(acc[2][2][1],'v',1,1),(acc[2][2][0],'v',1,0),(acc[3][1][0],'k',1,1),(acc[3][0][0],'q',1,1)]
    done_at=[3,1,6,7,9,11,13,15,18,19,21,23]
    hreg=[H+8+4*i for i in range(10)]+[H,H+4]
    def packi(dst,c,kind):
        o=[f'v_mul_f32 v{c+i}, s{sQS}, v{c+i}' for i in range(8)] if kind=='q' else []
        return o+[f'v_cvt_pk_bf16_f32 v{dst+i}, v{c+2*i}, v{c+2*i+1}' for i in range(4)]
    def gstore(reg,kind,tl,sub):
        if kind=='q': so,off=sQo,tl*2048+sub*256
        else: so,off=(sKV0,sKV1)[tl],(2048 if kind=='v' else 0)+sub*256
        return f'buffer_store_dwordx4 {vr(reg,4)}, v{vst}, {sr(sWS,4)}, s{so} offen offset:{off} sc1'
    def lstore(reg,kind,tl,sub):
        if kind=='q': return f'ds_write_b128 v{g[1]}, {vr(reg,4)} offset:{tl*2048+sub*256}'
        return f'ds_write_b128 v{g[0]}, {vr(reg,4)} offset:{tl*4096+(2048 if kind=="v" else 0)+sub*256}'
    held=[gstore(hreg[i],*p[1:]) for i,p in enumerate(pieces)]
    def g1_loop(old, extra={}, carry=[], pre=[]):
        TR.mark('B0')
        emit(reads(0,0,0))
        pend=[]
        if old: pend=list(carry)
        rest=[]; fw0=opt.get('fw0',4)
        for s in range(16):
            for j in range(2):
                if j==1 and s<15:
                    assert not pend
                    a(f's_waitcnt vmcnt({(w1 if s==0 else 12) if s<14 else 0}) lgkmcnt(0)' if old else ('s_waitcnt vmcnt(0) lgkmcnt(0)' if s==12 else 's_waitcnt lgkmcnt(0)'))
                    if s==12:
                        Lc=lab('DC'); D=lab('DD')
                        a(f'v_cmp_eq_u32 vcc, 1, v{vtag+1}\ns_cmp_eq_u64 vcc, -1\ns_cbranch_scc0 {Lc}\n{D}:\nv_not_b32 v{vtag+1}, v{vtag}')
                        tail(f'{Lc}:\ns_mov_b32 s{sSpin}, 0\n{Lc}x:\nglobal_load_dwordx2 {vr(vtag,2)}, v{t[4]}, s[{pDbg}:{pDbg+1}] sc1\ns_waitcnt vmcnt(0)')
                        tail(f'v_cmp_eq_u32 vcc, 1, v{vtag+1}\ns_cmp_eq_u64 vcc, -1\ns_cbranch_scc1 {D}')
                        tail(f's_add_u32 s{sSpin}, s{sSpin}, 1\ns_cmp_lt_u32 s{sSpin}, {SPIN}\ns_cbranch_scc1 {Lc}x\ns_branch {D}')
                    a('s_barrier')
                    if s%2==1 or (s<6 and opt.get('g1tr')): TR.mark(f'B{s+1}')
                    sn=s+1
                    if old:
                        if 3*sn+5<48: pend+=dmaW(3*sn+5,0)+dmaW(3*sn+5,1,False)
                        if sn+2<16: pend+=dmaX(sn+2,0,True)+dmaW(3*sn+6,0)+dmaW(3*sn+7,0)+dmaX(sn+2,1,False)+dmaW(3*sn+6,1)+dmaW(3*sn+7,1)+dmaX(sn+2,2,False)+dmaX(sn+2,3,False)
                else:
                    a('s_waitcnt lgkmcnt(0)'); TR.commit()
                R=reads(s,1,1) if j==0 else (reads(s+1,0,0) if s<15 else [])
                M=mfmas(j, s==0 and j==0)
                fill=[[] for _ in M]
                for q,r_ in enumerate(R): fill[q].append(r_)
                step=1 if (s==0 and j==0) else 2
                for sl in range(0,24,step):
                    if pend: fill[sl]+=pend.pop(0)
                    while s==0 and j==0 and len(pend)>23-sl:
                        if len(fill[sl])>0 and 'm0' in fill[sl][-1]: fill[sl].append('s_nop 0')
                        fill[sl]+=pend.pop(0)
                if s>=opt.get('pc0',1):
                    for sl in range(16,24):
                        k_=0
                        while pre and k_<opt.get('pcn',2):
                            gr=pre.pop(0); fill[sl]+=gr; k_+=len(gr)
                if (s,j)==(10,0): assert not pre
                if (s,j) in extra: fill[18]+=extra[(s,j)]
                if (s,j)==(10,0): fill[21]+=[f'global_load_dwordx2 {vr(vtag,2)}, v{t[4]}, s[{pDbg}:{pDbg+1}] sc1']
                if (s,j)==(15,1):
                    qq=[]
                    for i,p in enumerate(pieces):
                        qq+=[(done_at[i],x) for x in packi(hreg[i],p[0],p[1])]
                    pos=[0]*24; cnt=0
                    for sl in range(24):
                        pos[sl]=cnt; cnt+=1
                        n_=0
                        while qq and n_<2 and qq[0][0]<=sl and cnt-pos[qq[0][0]]-1>=8:
                            fill[sl].append(qq.pop(0)[1]); cnt+=1; n_+=1
                    for d,x in qq:
                        gap=cnt-pos[d]-1
                        if gap<8: rest.append(f's_nop {7-gap}'); cnt+=8-gap
                        rest.append(x); cnt+=1
                emit(interleave(M,fill))
        assert not pend
        return rest
    if_young('G1Y')
    a(f'v_lshrrev_b32 v{t[2]}, 3, v{lane}\nv_and_b32 v{t[3]}, 7, v{lane}\nv_lshrrev_b32 v{t[4]}, 4, v{lane}')
    a(f's_lshl_b32 s{sT}, s{sMT}, 8\ns_lshl_b32 s{sT2}, s{sWave}, 6\ns_add_u32 s{sT}, s{sT}, s{sT2}')
    a(f'v_add_u32 v{vdum}, s{sT}, v{t[2]}\nv_lshlrev_b32 v{vdum}, 11, v{vdum}')
    a(f'v_xor_b32 v{t[0]}, v{t[3]}, v{t[4]}\nv_lshl_add_u32 v{t[0]}, v{t[0]}, 4, v{vdum}')
    a(f'v_xor_b32 v{t[1]}, 64, v{t[0]}\nv_add_u32 v{t[1]}, {8*2048-1024}, v{t[1]}')
    a(f's_and_b32 s{sT2}, s{sHP}, 3\ns_mul_i32 s{sT3}, s{sWave}, 24576')
    for jj in range(4):
        a(f's_xor_b32 s{sT}, s{sT2}, {jj}\ns_lshl_b32 s{sXm+jj}, s{sT}, 11\ns_add_u32 s{sXm+jj}, s{sXm+jj}, s{sT3}\ns_lshl_b32 s{sT}, s{sT}, 15')
        a(f'v_add_u32 v{vgx[2*jj]}, s{sT}, v{t[0]}\nv_add_u32 v{vgx[2*jj+1]}, s{sT}, v{t[1]}')
    a(f's_and_b32 s{sT2}, s{sMT}, 1\ns_lshl_b32 s{sT}, s{sWave}, 1\ns_add_u32 s{sT}, s{sT}, s{sT2}')
    a(f's_lshl_b32 s{sWm}, s{sT}, 10\ns_add_u32 s{sWm}, s{sWm}, {96*K}\ns_xor_b32 s{sWm+1}, s{sWm}, 1024')
    a(f's_lshl_b32 s{sT}, s{sT}, 3\nv_add_u32 v{vdum}, s{sT}, v{t[2]}\nv_xor_b32 v{t[0]}, 8, v{vdum}')
    a(f'v_mul_u32_u24 v{vdum}, 6144, v{vdum}\nv_mul_u32_u24 v{t[0]}, 6144, v{t[0]}')
    a(f's_lshl_b32 s{sT2}, s{sT2}, 2\nv_and_b32 v{t[4]}, 1, v{t[4]}\nv_lshl_add_u32 v{t[4]}, v{t[4]}, 1, s{sT2}\nv_xor_b32 v{t[4]}, v{t[4]}, v{t[3]}')
    a(f's_lshl_b32 s{sT}, s{sHP}, 7\nv_lshl_add_u32 v{t[4]}, v{t[4]}, 4, s{sT}')
    a(f'v_add_u32 v{vgw[0]}, v{t[4]}, v{vdum}\nv_xor_b32 v{t[4]}, 64, v{t[4]}\nv_add_u32 v{vgw[1]}, v{t[4]}, v{t[0]}')
    a('s_waitcnt lgkmcnt(0)')
    pt=opt.get('ptr')
    if pt: TR.now('karg')
    order=opt.get('pro','X00 W00 X01 D W01 X02 X03 X10 W10 X11 W11 X12 X13 | W20 X20 W21 X21 X22 X23').split()
    def tok(x):
        s_,q_=int(x[1]),int(x[2])
        if x[0]=='X': return dmaX(s_,q_,True)
        o=[]
        for seg in range(3 if s_<2 else 2): o+=dmaW(3*s_+seg,q_)
        return o
    nld=lambda x: 0 if x in 'D|' else (2 if x[0]=='X' or x[1]=='2' else 3)
    bi=order.index('|')
    for x in order[:bi]:
        if x=='D': g1_dsaddr()
        else: emit(flat(tok(x)))
    assert not any(x[1]=='0' for x in order[bi+1:])
    l0=max(i for i,x in enumerate(order) if len(x)==3 and x[1]=='0'); l1=max(i for i,x in enumerate(order) if len(x)==3 and x[1]=='1')
    carry=[]
    for x in order[bi+1:]: carry+=tok(x)
    w1=sum(nld(x) for x in order[l1+1:])
    a(f'G1O:\ns_waitcnt vmcnt({sum(nld(x) for x in order[l0+1:bi])})\ns_barrier')
    ntr0=TR.n
    rest=g1_loop(True,{},carry,groups(precompute()))
    emit(rest)
    TR.now('mainend')
    a(f's_cmp_eq_u32 s{sBR}, 0\ns_cbranch_scc1 YOLD\ns_branch XOLD')
    urg=[held[i] for i,p in enumerate(pieces) if p[1]!='q']
    heldq=[held[i] for i,p in enumerate(pieces) if p[1]=='q']
    def old_epi(X):
        ls=[lstore(hreg[i],*p[1:]) for i,p in enumerate(pieces)]
        mode=opt.get('xurg','first') if X else opt.get('yurg','mix')
        u_=[when(0,urg)] if X else urg
        if mode=='wait': emit(ls+['s_waitcnt lgkmcnt(0)']+u_)
        elif mode=='first': emit(u_+ls)
        else:
            for i,p in enumerate(pieces):
                if p[1]!='q': a(held[i])
                a(ls[i])
    a('G1Y:')
    ntr1=TR.n; TR.n=ntr0
    g1_dsaddr()
    a('s_waitcnt lgkmcnt(0)')
    if opt.get('xt'):
        nst=opt['xt']
        a(f's_lshl_b32 s{sT}, s{sMT}, 4\ns_add_u32 s{sT}, s{sT}, s{sHP}\ns_lshl_b32 s{sT}, s{sT}, 2\ns_add_u32 s{sT}, s{sT}, s{sW3}\ns_lshl_b32 s{sT}, s{sT}, 13\ns_add_u32 s{sT}, s{sT}, {opt.get("xt0",1)*128}')
        a(f'v_lshrrev_b32 v{t[2]}, 4, v{lane}\nv_and_b32 v{t[3]}, 15, v{lane}\nv_min_u32 v{t[3]}, {2*nst-1}, v{t[3]}\nv_lshlrev_b32 v{t[3]}, 6, v{t[3]}\nv_lshl_add_u32 v{t[2]}, v{t[2]}, 11, v{t[3]}')
        a(f'buffer_load_dword v{vdum}, v{t[2]}, {sr(sX,4)}, s{sT} offen')
    if opt.get('wt'):
        a(f's_min_u32 s{sT}, s{sW3}, {opt["wt"]-1}\ns_add_u32 s{sT}, s{sT}, {opt.get("xt0",1)}\ns_lshl_b32 s{sT}, s{sT}, 3\ns_add_u32 s{sT}, s{sT}, s{sMT}\ns_mul_i32 s{sT}, s{sT}, {8*6144}\ns_lshl_b32 s{sT2}, s{sHP}, 7\ns_add_u32 s{sT}, s{sT}, s{sT2}')
        a(f'v_min_u32 v{t[2]}, 47, v{lane}\nv_and_b32 v{t[3]}, 1, v{t[2]}\nv_lshrrev_b32 v{t[2]}, 1, v{t[2]}\nv_lshlrev_b32 v{t[3]}, 6, v{t[3]}\nv_lshl_add_u32 v{t[2]}, v{t[2]}, 11, v{t[3]}')
        a(f'buffer_load_dword v{vdum}, v{t[2]}, {sr(sW,4)}, s{sT} offen')
    if opt.get('ctouch0',1):
        a(f's_getpc_b64 s[4:5]\nG1PC:\ns_lshr_b32 s{sT}, s2, 3\ns_lshl_b32 s{sT}, s{sT}, 2\ns_add_u32 s{sT}, s{sT}, s{sW3}\ns_mul_i32 s{sT}, s{sT}, 320')
        a(f's_sub_u32 s4, s4, G1PC-G1O\ns_subb_u32 s5, s5, 0')
        for i in range(5): a(f's_load_dword s{sSpin}, s[4:5], s{sT} offset:{i*64}')
    if opt.get('tlbw',1):
        a(f's_lshl_b32 s{sK}, s{sW3}, 20\ns_add_u32 s{sK}, s{sK}, {2<<20}\ns_load_dword s{sSpin}, s[{sW}:{sW+1}], s{sK}')
    a(f's_lshl_b32 s{sT}, s2, 3\ns_add_u32 s{sT}, s{sT}, s{sWave}\ns_cmp_eq_u32 s{sT}, 7\ns_cbranch_scc0 G1Y1')
    a(f's_mov_b64 exec, 1\nv_mov_b32 v{vgx[2]}, {WS_EP}\nv_mov_b32 v{vgx[3]}, 0')
    a(f'global_load_dword v{vgx[0]}, v{vgx[2]}, s[{sWS}:{sWS+1}] sc1\nv_mov_b32 v{vgx[1]}, 1\ns_waitcnt vmcnt(0)')
    a(f'v_add_u32 v{vgx[0]}, 1, v{vgx[0]}')
    a(f'global_store_dword v{vgx[2]}, v{vgx[0]}, s[{sWS}:{sWS+1}] sc1\nglobal_store_dwordx2 v{vgx[3]}, {vr(vgx[0],2)}, s[{pDbg}:{pDbg+1}] sc1')
    a('s_mov_b64 exec, -1\nG1Y1:')
    vpf=vgx[4]
    a(f's_lshl_b32 s{sT}, s{sMT}, 4\ns_add_u32 s{sT}, s{sT}, s{sHP}\ns_and_b32 s{sT2}, s{sT}, 1\ns_lshr_b32 s{sT}, s{sT}, 1\ns_lshl_b32 s{sT3}, s{sW3}, 6\ns_add_u32 s{sT}, s{sT}, s{sT3}')
    a(f's_mul_i32 s{sT}, s{sT}, 6144\ns_lshl_b32 s{sT2}, s{sT2}, 10\ns_add_u32 s{sT}, s{sT}, s{sT2}\ns_add_u32 s{sT}, s{sT}, 384')
    a(f'v_min_u32 v{t[2]}, 5, v{lane}\nv_lshrrev_b32 v{t[3]}, 1, v{t[2]}\nv_and_b32 v{t[2]}, 1, v{t[2]}\nv_lshlrev_b32 v{t[2]}, 6, v{t[2]}\nv_lshl_add_u32 v{t[2]}, v{t[3]}, 11, v{t[2]}\nv_add_u32 v{vpf}, s{sT}, v{t[2]}')
    pc=precompute()
    vfw=vgx[6]
    pc(f'v_bfe_u32 v{t[2]}, v{lane}, 3, 1\nv_and_b32 v{t[3]}, 0x70, v{vl16}\nv_lshl_add_u32 v{vfw}, v{t[2]}, 12, v{t[3]}\nv_lshl_add_u32 v{t[3]}, v{t[2]}, 14, v{t[3]}')
    pc(f'v_xor_b32 v{t[2]}, s{sF2}, v{vfw}\nv_xor_b32 v{vfw}, s{sF1}, v{vfw}\nv_xor_b32 v{t[3]}, s{sF2A}, v{t[3]}\nv_mov_b32 v{t[1]}, v{vfw}')
    pc(f's_mov_b64 exec, 0xffff0000\nv_mov_b32 v{vfw}, v{t[3]}\ns_mov_b32 exec_lo, 0\ns_mov_b32 exec_hi, -1\nv_mov_b32 v{vfw}, v{t[2]}\ns_mov_b32 exec_hi, 0xffff0000\nv_add_u32 v{vfw}, {WS_FQ-WS_FL}, v{t[1]}\ns_mov_b64 exec, -1')
    pc(f'buffer_store_dwordx4 {vr(vtag,4)}, v{vfw}, {sr(sWS,4)}, 0 offen sc1')
    pcy=groups(pc)
    if opt.get('ypre',1):
        for gr in pcy: emit(gr)
        pcy=[]
    ex={}
    for gi,pos in enumerate(opt.get('vp',[0,4,8])):
        ex[(pos,0)]=[f's_mov_b32 s{sK}, {(gi+1)*4*64*6144}', f'buffer_load_dword v{vdum}, v{vpf}, {sr(sW,4)}, s{sK} offen']
    if opt.get('ctouch',1):
        a(f's_getpc_b64 s[4:5]\ns_lshr_b32 s{sT}, s2, 3\ns_lshl_b32 s{sT}, s{sT}, 11\nv_and_b32 v{vgx[5]}, 31, v{lane}\nv_lshl_add_u32 v{vgx[5]}, v{vgx[5]}, 6, s{sT}')
        a(f'v_min_u32 v{vgx[5]}, CODE_END-G1Y1-512, v{vgx[5]}')
        Lc=lab('CT')
        ex[(opt.get('ctpos',13),0)]=[f's_cmp_lg_u32 s{sWave}, 4', f's_cbranch_scc1 {Lc}', f'global_load_dword v{vdum}, v{vgx[5]}, s[4:5]', f'{Lc}:']
    a('s_barrier')
    rest=g1_loop(False,ex,[],pcy)
    emit(rest)
    TR.now('mainend')
    assert TR.n==ntr1
    a(f's_cmp_eq_u32 s{sBR}, 0\ns_cbranch_scc1 YPATH\ns_branch XPATH')
    import fy2
    fy2.rest_of_kernel(locals())
    a('END:\ns_endpgm')
    build.trmap=TR.map
    return '; @launch grid=(256,1,1) block=(512,1,1) lds=163840\n.amdgcn_target "amdgcn-amd-amdhsa--gfx950"\n'+kernel_header(NAME)+a.text()+tail.text()+'CODE_END:\n    s_endpgm\n'+'.section .rodata,"a"\n.p2align 6\n'+kernel_desc(NAME,256)
if __name__=='__main__':
    opt=json.loads(sys.argv[2]) if len(sys.argv)>2 else {}
    ref=open('concat_heads__sliding_block__softmax_full_mha__prompt.s.ref').read().split('\n')
    open(sys.argv[1],'w').write('\n'.join(ref[:10])+'\n'+build(False,opt))
```

```python
from asm import *
from fyb import *
def rest_of_kernel(U):
    a,tail,opt,TR,stamps=U['a'],U['tail'],U['opt'],U['TR'],U['stamps']
    lab,emit,if_young,if_old,old_block,young_block=U['lab'],U['emit'],U['if_young'],U['if_old'],U['old_block'],U['young_block']
    flag_load,flag_test,flag_check,flag_post,zero,held,old_epi=U['flag_load'],U['flag_test'],U['flag_check'],U['flag_post'],U['zero'],U['held'],U['old_epi']
    urg,heldq,when,flag_load64,flag_check64=U['urg'],U['heldq'],U['when'],U['flag_load64'],U['flag_check64']
    post_if,masked=U['post_if'],U['masked']
    cY=f's_cmp_eq_u32 s{sKH}, 1'; cW=lambda k: f's_cmp_eq_u32 s{sWhen}, {k}'
    def ldws(so,c): return f'buffer_load_dwordx4 v{vl16}, {sr(sWS,4)}, s{so} offen offset:{c*1024} sc1 lds'
    def chunkB(s,X):
        if X and 1<=s<=3: su=[f's_and_b32 s{sK}, s{sMT}, 3', f's_cmp_ge_u32 s{sK}, {s}', f's_cselect_b32 s{sK}, {s-1}, {s}', f's_and_b32 s{sT3}, s{sMT}, 4', f's_or_b32 s{sK}, s{sK}, s{sT3}']
        else: su=[f's_and_b32 s{sK}, s{sMT}, 4', f's_xor_b32 s{sK}, s{sK}, {s}']
        return su+[f's_lshl_b32 s{sK}, s{sK}, 15', f's_add_u32 s{sK}, s{sK}, s{sKVB}']
    def chunkA(i):
        su=[f's_max_u32 s{sK}, s{sMT}, 1', f's_sub_u32 s{sK}, s{sK}, 1', f's_lshl_b32 s{sK}, s{sK}, 15'] if i==0 else [f's_lshl_b32 s{sK}, s{sMT}, 15']
        return su+[f's_add_u32 s{sK}, s{sK}, s{sKVA}']
    def dma4(lds,su):
        o=su+[f's_add_u32 s{sK}, s{sK}, s{sM8}']
        for i in range(2):
            o+=[f's_add_u32 m0, s{sM8}, {lds+i*4096}', f's_add_u32 s{sK}, s{sK}, 4096' if i else 's_nop 0']+[ldws(sK,c) for c in range(4)]
        return o
    def dma8(lds,su):
        return [(su+[f's_add_u32 s{sK}, s{sK}, s{sMw}', f's_add_u32 m0, s{sMw}, {lds}'],ldws(sK,0))]+[([],ldws(sK,c)) for c in range(1,4)]
    def ldW(i,off): return f'buffer_load_dwordx4 v{vgo[i]}, {sr(sWo,4)}, s{sK} offen offset:{off}{opt.get("wa","")} lds'
    def outW(s):
        b=OSL[s%5]
        return [([f's_add_u32 m0, s{sM4}, {b+16384}', f's_xor_b32 s{sK}, s{sWb}, {((s>>3)<<16)+(s&7)*128*2048}'],ldW(0,0)),([],ldW(1,1024)),([f's_add_u32 s{sK}, s{sK}, {8*2048-2048}'],ldW(0,2048)),([],ldW(1,3072))]
    def outO(s):
        b=OSL[s%5]
        return [([f's_add_u32 m0, s{sM4}, {b}', f's_xor_b32 s{sK}, s{sSp}, {s*4096}', f's_add_u32 s{sK}, s{sK}, s{sOb}'],ldws(sK,0))]+[([],ldws(sK,c)) for c in range(1,4)]
    def outHalf(s):
        b=OSL[s%5]
        return [([f's_add_u32 m0, s{sPm}, {b+16384}', f's_xor_b32 s{sK}, s{sWb}, {(s&7)*128*2048}', f's_add_u32 s{sK}, s{sK}, s{sPw}'],ldW(0,0)),([],ldW(1,1024)),
                ([f's_add_u32 m0, s{sPm}, {b}', f's_xor_b32 s{sK}, s{sSp}, {s*4096}', f's_add_u32 s{sK}, s{sK}, s{sPo}'],ldws(sK,0)),([],ldws(sK,1))]
    def fl(items):
        o=[]
        for su,v in items: o+=su+[v]
        return o
    def QK(sb,kb,q,c):
        return [f'v_mfma_f32_32x32x16_bf16 {vr(sb,16)}, {vr(kb,4)}, {vr(q,4)}, {c}', f'v_mfma_f32_32x32x16_bf16 {vr(sb,16)}, {vr(kb+4,4)}, {vr(q+4,4)}, {vr(sb,16)}']
    def PV(o,vb,sb,c): return f'v_smfmac_f32_32x32x32_bf16 {vr(o,16)}, {vr(vb+4*c,4)}, {vr(sb+8*c,8)}, v{vidx}'
    def SM(l,sb,c): return f'v_smfmac_f32_16x16x64_bf16 {vr(l,4)}, {vr(SEL,4)}, {vr(sb+8*c,8)}, v{vidx}'
    def maxtree(dst, sb, first):
        o=[]
        if first:
            o.append(f'v_max3_f32 v{dst}, v{sb}, v{sb+1}, v{sb+2}')
            for i in range(3,15,2): o.append(f'v_max3_f32 v{dst}, v{dst}, v{sb+i}, v{sb+i+1}')
            o.append(f'v_max_f32 v{dst}, v{dst}, v{sb+15}')
        else:
            for i in range(0,16,2): o.append(f'v_max3_f32 v{dst}, v{dst}, v{sb+i}, v{sb+i+1}')
        return o
    def finish_max(A,mx,tmp,nm,offs,fill=True):
        A(f'v_mov_b32 v{tmp}, v{mx}\ns_nop 1\nv_permlane32_swap_b32 v{tmp}, v{mx}\ns_nop 1\nv_max_f32 v{mx}, v{mx}, v{tmp}')
        A(f'v_sub_f32 v{nm}, {offs}, v{mx}')
        if fill:
            A(f'v_mov_b32 v{nm+1}, v{nm}')
            for i in range(2,16,2): A(f'v_mov_b64 {vr(nm+i,2)}, {vr(nm,2)}')
    def slot(sc, prev, nxt, cur, F):
        E=[f'v_exp_f32 v{sc+i}, v{sc+i}' for i in range(16)]
        g=lambda k: F.get(k,[])
        seq=E[0:2]
        if prev: seq+=[prev[0]]+g('S1')+E[2:3]+[prev[1]]+g('P1')
        else: seq+=g('S1')+E[2:3]+g('P1')
        seq+=E[3:6]
        if nxt: seq+=[nxt[0]]+g('Q0')+E[6:9]+[nxt[1]]+g('Q1')
        else: seq+=g('Q0')+E[6:9]+g('Q1')
        seq+=E[9:12]+[cur[0]]+g('S0')+E[12:13]+[cur[1]]+g('P0')+E[13:16]
        emit(seq)
    def finalize(o,l,q,dst,isA):
        FB=lab('FB'); RT=lab('RT')
        a(f'v_rcp_f32 v{t[0]}, v{l}\nv_cmp_gt_f32 s[4:5], s{sC2}, v{l}')
        a(f'v_maximum3_f32 v{t[1]}, abs(v{o}), abs(v{o+1}), 0')
        for i in range(2,16,2): a(f'v_maximum3_f32 v{t[1]}, abs(v{o+i}), abs(v{o+i+1}), v{t[1]}')
        a(f'v_cmp_gt_f32 s[6:7], s{sC1}, v{t[1]}\nv_cmp_lt_f32 vcc, s{sC0}, v{t[1]}')
        a(f's_and_b64 s[4:5], s[4:5], s[6:7]\ns_and_b64 s[4:5], s[4:5], vcc\ns_cmp_eq_u64 s[4:5], -1\ns_cbranch_scc0 {FB}\n{RT}:')
        for i in range(16): a(f'v_mul_f32 v{o+i}, v{t[0]}, v{o+i}')
        for i in range(8): a(f'v_cvt_pk_bf16_f32 v{dst+i}, v{o+2*i}, v{o+2*i+1}')
        for c in range(2): a(f'buffer_store_dwordx4 {vr(dst+4*c,4)}, v{vos}, {sr(sWS,4)}, s{sOA if isA else sO} offen offset:{c*512} sc1')
        T=tail; C=NM[0]; nm=t[1]
        T(f'{FB}:')
        if isA: T(f's_min_u32 s{sN}, s{sJQ}, 8\ns_add_u32 s{sN}, s{sN}, 1')
        else: T(f's_mov_b32 s{sN}, 64')
        T(f'v_mov_b32 v{t[4]}, 0xff800000\nv_mov_b32 v{nm}, 0')
        for ps in range(2):
            LP=lab('FL')
            if ps==1:
                finish_max(T,t[4],t[2],nm,'0',fill=False); zero(T,o,16); zero(T,l,4)
            T(f's_mov_b32 s{sCnt}, 0\n{LP}:')
            if isA:
                T(f's_sub_u32 s{sT}, s{sJQ}, s{sCnt}\ns_lshl_b32 s{sT}, s{sT}, 12\ns_add_u32 s{sT}, s{sT}, s{sKVA}')
                T(f's_mov_b32 s{sMa}, 0\ns_mov_b32 s{sMb}, {f2u(2.0**100)}\ns_cmp_eq_u32 s{sCnt}, 0\ns_cselect_b32 s{sMa}, 1.0, s{sMa}\ns_cselect_b32 s{sMb}, 0, s{sMb}')
                T(f's_cmp_eq_u32 s{sCnt}, 8\ns_cselect_b32 s{sMa}, -1.0, s{sMa}\ns_cselect_b32 s{sMb}, 0, s{sMb}')
            else:
                T(f's_lshl_b32 s{sT}, s{sCnt}, 12\ns_add_u32 s{sT}, s{sT}, s{sKVB}\ns_mov_b32 s{sMa}, 0\ns_mov_b32 s{sMb}, {f2u(2.0**100)}')
            for c in range(2): T(f'buffer_load_dwordx4 {vr(KF[0]+4*c,4)}, v{vkp}, {sr(sWS,4)}, s{sT} offen offset:{c*1024} sc1')
            if ps==1:
                for c in range(2): T(f'buffer_load_dwordx4 {vr(VF[0]+4*c,4)}, v{vl16}, {sr(sWS,4)}, s{sT} offen offset:{2048+c*1024} sc1')
            T(f'v_mov_b32 v{t[3]}, s{sMb}')
            for r in range(16): T(f'v_fma_f32 v{C+r}, v{XM+r}, s{sMa}, v{t[3]}\nv_min_f32 v{C+r}, v{C+r}, v{nm}')
            T('s_waitcnt vmcnt(0)\ns_nop 0')
            for x in QK(S[0],KF[0],q,vr(C,16)): T(x)
            T('s_nop 11')
            if ps==0:
                for x in maxtree(t[4],S[0],False): T(x)
            else:
                for i in range(16): T(f'v_exp_f32 v{S[0]+i}, v{S[0]+i}')
                T('s_nop 1')
                for c in range(2): T(SM(l,S[0],c)); T(PV(o,VF[0],S[0],c))
            T(f's_add_u32 s{sCnt}, s{sCnt}, 1\ns_cmp_lt_u32 s{sCnt}, s{sN}\ns_cbranch_scc1 {LP}')
        T(f's_nop 11\nv_rcp_f32 v{t[0]}, v{l}\ns_nop 0')
        T(f's_branch {RT}')
    def o_addr(br_o):
        if br_o: o=[f's_lshl_b32 s{sT}, s{sMT}, 2', f's_add_u32 s{sT}, s{sT}, s{sW3}', f's_lshl_b32 s{sT}, s{sT}, 1', f's_add_u32 s{sT}, s{sT}, s{sKH}', f's_lshl_b32 s{sT}, s{sT}, 5']
        else: o=[f's_lshl_b32 s{sT}, s{sJQ}, 5']
        return o+[f's_add_u32 s{sT}, s{sT}, s{sPi}', f's_lshl_b32 s{sO}, s{sT}, 11', f's_add_u32 s{sO}, s{sO}, {WS_OF+(br_o<<22)}', f's_lshl_b32 s{sF2}, s{sT}, 7', f's_add_u32 s{sF2}, s{sF2}, {WS_F2+(br_o<<18)}']
    W0=['s_waitcnt vmcnt(0)']
    wo_=opt.get('wo',[]); wy_=opt.get('wy',[])
    def standin_local():
        pcs,hreg=U['pieces'],U['hreg']
        reg={(p[1],2*p[2]+p[3]):hreg[i] for i,p in enumerate(pcs) if p[1]!='v'}
        D=[NM[1],NM[0],S[0],S[1]]
        a('s_nop 1')
        for mq in range(4):
            for mk in range(4): a(f'v_mfma_f32_16x16x32_bf16 {vr(D[mq]+4*mk,4)}, {vr(reg[("k",mk)],4)}, {vr(reg[("q",mq)],4)}, 0')
        for mq in range(4): emit(maxtree(t[mq],D[mq],True))
        a(f'v_lshlrev_b32 v{vdum}, 2, v{lane}\nv_permlane16_swap_b32 v{t[0]}, v{t[1]}\nv_permlane16_swap_b32 v{t[2]}, v{t[3]}\ns_nop 0')
        a(f'v_max_f32 v{t[0]}, v{t[0]}, v{t[1]}\nv_max_f32 v{t[2]}, v{t[2]}, v{t[3]}\nv_mov_b32 v{t[1]}, v{t[0]}\nv_mov_b32 v{t[3]}, v{t[2]}\ns_nop 0')
        a(f'v_permlane32_swap_b32 v{t[0]}, v{t[1]}\nv_permlane32_swap_b32 v{t[2]}, v{t[3]}\ns_nop 0')
        a(f'v_max_f32 v{t[0]}, v{t[0]}, v{t[1]}\nv_max_f32 v{t[2]}, v{t[2]}, v{t[3]}\nv_sub_f32 v{t[0]}, s{sOffs}, v{t[0]}\nv_sub_f32 v{t[2]}, s{sOffs}, v{t[2]}')
    otouch=[([f's_and_b32 s{sK2}, s{sMT}, 3', f's_lshl_b32 s{sK2}, s{sK2}, 1', f's_add_u32 s{sK2}, s{sK2}, s{sKH}', f's_lshl_b32 s{sK2}, s{sK2}, 12', f's_add_u32 s{sK2}, s{sK2}, s{sSp}', f's_add_u32 s{sK2}, s{sK2}, s{sOb}', f'v_lshlrev_b32 v{t[0]}, 2, v{vl16}'],
             f'buffer_load_dword v{vdum}, v{t[0]}, {sr(sWS,4)}, s{sK2} offen sc1')]
    def phaseB(X):
        ring=96*K if X else 0
        area=0
        def rdK(buf,T): return [f'ds_read_b128 {vr(KF[buf]+4*c,4)}, v{vka[0]} offset:{((T//4)&1)*32768+(T%4)*4096+c*1024}' for c in range(2)]
        def rdV(buf,T): return [f'ds_read_b128 {vr(VF[buf]+4*c,4)}, v{vva[0]} offset:{((T//4)&1)*32768+(T%4)*4096+2048+c*1024}' for c in range(2)]
        if not X: a(f's_lshl_b32 s{sT}, s{sKH}, 14\nv_add_u32 v{vka[0]}, s{sT}, v{vkp}\nv_add_u32 v{vva[0]}, s{sT}, v{vl16}')
        nmb=32*K if X else 144*K
        a(f's_lshr_b32 s{sT}, s{sPm}, 3\ns_add_u32 s{sT}, s{sT}, {nmb}\nv_lshl_add_u32 v{t[4]}, v{lane}, 2, s{sT}\nv_xor_b32 v{vpoll}, 0x100, v{t[4]}')
        zero(a,O[0],40)
        if X:
            if opt.get('xp0',0)==1: when(0,W0+[flag_post(sF1)])()
            a('s_waitcnt lgkmcnt(0)')
            a('s_barrier'); TR.now('T1')
        else:
            a(f's_add_u32 s{sT}, s{sPm}, {128*K}\nv_add_u32 v{vq[0]}, s{sT}, v{vl16}\nv_xor_b32 v{vq[1]}, 0x800, v{vq[0]}')
            young_block(W0)()
            a('s_barrier'); TR.now('YB0')
        for i in range(2):
            for c in range(2): a(f'ds_read_b128 {vr(Q[i]+4*c,4)}, v{vq[i]} offset:{c*1024}')
        emit(rdK(0,0)+rdV(0,0))
        if X:
            young_block(['s_setprio 3']+W0+heldq+[when(1,urg),standin_local]+[f'buffer_store_dword v{t[2*i]}, v{vdum}, {sr(sWS,4)}, s{sNMo} offen offset:{i*256} sc1' for i in range(2)]+['s_setprio 0'])()
        a(f'ds_read_b32 v{NM[0]}, v{t[4]}\nds_read_b32 v{NM[1]}, v{vpoll}')
        if X and opt.get('xp0',0)==0: when(0,W0+[flag_post(sF1)])()
        a('s_waitcnt lgkmcnt(0)')
        if not X: a(flag_load(sFB,sM1))
        def fillnm(nm): return [f'v_mov_b32 v{nm+1}, v{nm}']+[f'v_mov_b64 {vr(nm+i,2)}, {vr(nm,2)}' for i in range(2,16,2)]
        f1=fillnm(NM[1])
        emit(fillnm(NM[0])+f1[:2]+QK(S[0],KF[0],Q[0],vr(NM[0],16))+f1[2:])
        a('s_nop 5')
        TR.now('standin')
        NT=32
        wot=lambda i: [([f's_mov_b32 s{sK2}, {i*16*2048}'],f'buffer_load_dword v{vdum}, v{vwt}, {sr(sWo,4)}, s{sK2} offen')]
        st=lambda s: dma8(ring+(s&1)*32768,chunkB(s,X))
        sched={n:[] for n in range(64)}
        def put(n,items,tag,pos='P0'):
            for i,(su,v) in enumerate(items): sched[n+i].append((pos,su,v,tag))
        pre={n:[] for n in range(64)}
        d0=opt.get('xd0',3) if X else opt.get('yd0',1)
        for s in range(1,7): put(8*s-2,st(s+1),f'st{s+1}')
        if X:
            put(opt.get('xf1',2),[([],old_block([flag_load(sFB,sM1)]))],'none')
            put(d0,[([],old_block(W0+[flag_check(sFB,sM1)]+dma4(ring+32768,chunkB(1,X))))],'st1')
            put(opt.get('xyf',1),[([],young_block(W0+[flag_post(sFQ),when(1,[flag_post(sF1)])]))],'none','P1')
        else:
            s1=st(1); put(d0,s1[0:1],'st1'); put(d0+1,s1[1:2],'st1','P1'); put(d0+1,s1[2:3],'st1'); put(d0+2,s1[3:4],'st1','P1')
            pre[d0].append((None,W0+[flag_post(sF2A),flag_check(sFB,sM1)]))
        put(opt.get('f2',5) if X else opt.get('yf2',4),[([],flag_load(sFB,sM2))],'f2'); pre[6].append(('f2',([post_if(cW(2),sF1)] if X else [])+[flag_check(sFB,sM2)]))
        put(11,[([],flag_load(sFB,sM3))],'f3'); pre[14].append(('f3',([post_if(cW(3),sF1)] if X else [])+[flag_check(sFB,sM3)]))
        put(20,[([],flag_load(sFB,sOth))],'fo'); pre[22].append(('fo',[flag_check(sFB,sOth)]))
        if opt.get('wot',1): put(26,wot(0),'wt'); put(34,wot(1),'wt')
        if wo_:
            cw=lambda s_: ((s_>>3)<<16)+(s_&7)*128*2048
            it=[]
            for q in range(3):
                su=[f's_mul_i32 s{sT2}, s{sKH}, {(cw((wy_ or wo_)[q])-cw(wo_[q]))&0xffffffff}', f's_add_u32 s{sT2}, s{sT2}, {cw(wo_[q])}', f's_xor_b32 s{sT2}, s{sT2}, s{sWb}']
                for j in range(4):
                    v=f'buffer_load_dwordx4 {vr(H+16*q+4*j,4)}, v{vgo[j&1]}, {sr(sWo,4)}, s{sT2} offen offset:{j*1024}'
                    it.append(([],'\n'.join((su if j==0 else [f's_add_u32 s{sT2}, s{sT2}, {8*2048-2048}'] if j==2 else [])+[v])))
            put(opt.get('wr0',40),it,'wr','P1')
        if opt.get('ct2',1):
            Lc=lab('PC')
            put(35,[([f's_getpc_b64 s[4:5]\n{Lc}:', f's_add_u32 s4, s4, OUTC-{Lc}\ns_addc_u32 s5, s5, 0', f's_andn2_b32 s{sK2}, s2, 7', f's_add_u32 s{sK2}, s{sK2}, s{sWave}', f's_lshl_b32 s{sK2}, s{sK2}, 6', f's_min_u32 s{sK2}, s{sK2}, CODE_END-OUTC-64', f'v_mov_b32 v{t[0]}, s{sK2}'],f'global_load_dword v{vdum}, v{t[0]}, s[4:5]')],'ct')
        yh=opt.get('yh',[10,16,18]); kk=12//len(yh)
        if X:
            put(44,[([],flag_load(sFA,sMskA))],'fa'); pre[46].append(('fa',[flag_check(sFA,sMskA)]))
            put(50,dma8(area,chunkA(0)),'a'); put(54,dma8(area+32768,chunkA(1)),'a')
            put(58,[([],f'buffer_load_dwordx4 {vr(QA+4*c,4)}, v{vl16}, {sr(sWS,4)}, s{sQAo} offen offset:{c*1024} sc1') for c in range(2)],'a')
        else:
            pre[23].append(('fo',[post_if(cY,sF1)]))
            put(36,[([],flag_load(sFO,sME))],'fe'); pre[38].append(('fe',[flag_check(sFO,sME)]))
            put(42,outHalf(0),'o'); put(50,outHalf(1),'o'); put(54,outHalf(2),'o')
            if opt.get('p4',1): put(58,outHalf(3)[:3],'o')
            if opt.get('otouch',1): put(41,[([],'\n'.join(otouch[0][0]+[otouch[0][1]]))],'o','P1')
        ops=[]
        def waitfor(tag):
            last=max(i for i,x in enumerate(ops) if x==tag)
            return sum(x!='none' for x in ops[last+1:])
        for T in range(NT):
            kb=T&1
            for qb in range(2):
                n=2*T+qb
                F={k:[] for k in ('S1','P1','Q0','Q1','S0','P0')}
                if qb==0:
                    prev=(SM(L[1],S[1],1),PV(O[1],VF[kb^1],S[1],1)) if T>0 else None
                    nxt=QK(S[1],KF[kb],Q[1],vr(NM[1],16))
                    R=rdK(kb^1,T+1) if T+1<NT else []
                else:
                    prev=(SM(L[0],S[0],1),PV(O[0],VF[kb],S[0],1))
                    nxt=QK(S[0],KF[kb^1],Q[0],vr(NM[0],16)) if T+1<NT else None
                    R=rdV(kb^1,T+1) if T+1<NT else []
                if n%8==6 and n<62:
                    s=n//8+1
                    F['S1']+=[f's_waitcnt vmcnt({waitfor(f"st{s}")}) lgkmcnt(0)']
                    F['S1']+=['s_barrier',lambda s=s: TR.mark(f'B{s}')]
                elif (not X) and n==62:
                    F['S1']+=['s_waitcnt lgkmcnt(0)','s_barrier']
                else:
                    F['S1']+=['s_waitcnt lgkmcnt(0)',TR.commit]
                F['P1']+=R[0:1]; F['Q0']+=R[1:2]
                for pos,su,v,tg in sched[n]:
                    if pos=='P1': F['P1']+=[v]; ops.append(tg)
                for tg,code in pre[n]:
                    if tg: F['Q0']+=[f's_waitcnt vmcnt({waitfor(tg)})']
                    F['Q0']+=code
                for pos,su,v,tg in sched[n]:
                    if pos=='P0':
                        assert not F['P0']
                        h=(len(su)+1)//2
                        F['Q1']+=su[:h]; F['S0']+=su[h:]; F['P0']+=[v]; ops.append(tg)
                if X and n==opt.get('xc',3): F['P1']+=masked(cW(2),urg) if opt.get('msk') else [when(2,urg)]
                if X and n==opt.get('xdd',10): F['P1']+=masked(cW(3),urg) if opt.get('msk') else [when(3,urg)]
                if (not X) and n in yh:
                    assert n<20
                    hs=held[yh.index(n)*kk:(yh.index(n)+1)*kk]
                    F['P1']+=masked(cY,hs) if opt.get('msk') else [young_block(hs)]
                if opt.get('prio',1) and n%2==0:
                    F['Q1']+=[f's_setprio {3-((n+2)%8)//2}' if n<54 else f's_setprio {max(0,3-(n-54)//3)}']
                for k in ('Q1','S0','P0'):
                    if not F[k]: F[k]=['s_nop 0']
                slot(S[qb],prev,nxt,(SM(L[qb],S[qb],0),PV(O[qb],VF[kb],S[qb],0)),F)
        a(f's_add_u32 s{sT}, s{sMw}, {ring if X else 32*K}\ns_setprio 0')
        a(SM(L[1],S[1],1)); a(PV(O[1],VF[1],S[1],1))
        TR.now('Bmain')
        a(f'v_add_u32 v{t[2]}, s{sT}, v{vl16}\nv_xor_b32 v{t[3]}, 0x4000, v{t[2]}')
        a(f's_add_u32 s{sT}, s{sPm}, {64*K if X else 1024}\ns_nop 0\nv_lshl_add_u32 v{t[4]}, v{lane}, 2, s{sT}\nv_xor_b32 v{t[0]}, 0x800, v{t[4]}')
        if X:
            a(f'v_add_u32 v{vka[0]}, s{sMw}, v{vkp}\nv_add_u32 v{vva[0]}, s{sMw}, v{vl16}')
            for r in range(16): a(f'v_min_f32 v{NM[1]+r}, 0, v{XM+r}')
        else: a('s_nop 5')
        a(f'ds_write_b32 v{t[4]}, v{L[1]}')
        for i in range(4): a(f'ds_write_b128 v{t[2]}, {vr(O[1]+4*i,4)} offset:{i*1024}')
        a('s_waitcnt vmcnt(0) lgkmcnt(0)\ns_barrier')
        a(f'ds_read_b32 v{L[1]}, v{t[0]}')
        for i in range(4): a(f'ds_read_b128 {vr(O[1]+4*i,4)}, v{t[3]} offset:{i*1024}')
        if not X: young_block(['s_setprio 1'])()
        a('s_waitcnt lgkmcnt(0)\ns_barrier')
        a(f'v_add_f32 v{L[0]}, v{L[0]}, v{L[1]}')
        for i in range(16): a(f'v_add_f32 v{O[0]+i}, v{O[0]+i}, v{O[1]+i}')
        finalize(O[0],L[0],Q[0],Q[1],False)
        TR.now('Bend')
    def phaseA(X):
        area=0 if X else 64*K
        def rdKA(buf,tt): return [f'ds_read_b128 {vr(KF[buf]+4*c,4)}, v{vka[0]} offset:{(8-tt)*4096+c*1024}' for c in range(2)]
        def rdVA(buf,tt): return [f'ds_read_b128 {vr(VF[buf]+4*c,4)}, v{vva[0]} offset:{(8-tt)*4096+2048+c*1024}' for c in range(2)]
        CD=NM[1]; NA=NM[0]; OA=O[1]; LA=L[0]
        if not X:
            zero(a,OA,20)
            Ls=lab('YS'); Ls2=lab('YS')
            if opt.get('ypost',1)==0: old_block(W0+[flag_post(sF1)])()
            a('s_waitcnt lgkmcnt(0)\ns_barrier'); TR.now('T1')
            for c in range(2): a(f'ds_read_b128 {vr(QA+4*c,4)}, v{vq[0]} offset:{c*1024}')
        emit(rdKA(0,0)+rdVA(0,0))
        if X:
            if opt.get('aprio',1): a('s_setprio 3')
            emit(rdKA(1,1)); zero(a,OA,20)
        elif opt.get('ypost',1)==1: old_block(W0+[flag_post(sF1)])()
        a('s_waitcnt lgkmcnt(0)')
        emit(QK(S[0],KF[0],QA,vr(CD,16)))
        two=0
        def second(A,qb):
            for j in range(3,qb-1,-1):
                A(f's_mov_b32 m0, {area+j*4096}\ns_add_u32 s{sK2}, s{sK}, {j*4096}')
                for c in range(4): A(ldws(sK2,c))
        def sync(p):
            def f():
                Lk=lab('YK')
                a(f's_cmp_lg_u32 s{sQB}, {p-1}\ns_cbranch_scc1 {Lk}')
                if p<=4: a('s_waitcnt vmcnt(0)')
                a('s_barrier')
                if p>4: a('s_setprio 1')
                n_=TR.n; TR.now('YAsync'); TR.n=n_
                if two: a(f's_cmp_eq_u32 s{sMT}, 0\ns_cbranch_scc1 {Lk}'); second(a,p-1)
                a(f'{Lk}:')
            return f
        if X:
            emit(QK(S[1],KF[1],QA,'0'))
            a('s_nop 9')
            emit(maxtree(t[4],S[0],True))
        else:
            a('s_nop 11')
            emit(maxtree(t[4],S[0],True))
            old_block([f's_cmp_eq_u32 s{sMT}, 0',f's_cbranch_scc1 {Ls2}',flag_load(sFA,sMskA)]+W0+[flag_check(sFA,sMskA),lambda: TR.now('yok')]+(chunkA(0)+[f's_add_u32 s{sK2}, s{sK}, s{sM4}', f's_add_u32 m0, s{sM4}, {area+16384}', f's_add_u32 s{sK2}, s{sK2}, 16384']+[ldws(sK2,c) for c in range(4)] if two else dma4(area,chunkA(0)))+[f'{Ls2}:'])()
            sync(1)()
            emit(rdKA(1,1))
            a('s_waitcnt lgkmcnt(0)')
            emit(QK(S[1],KF[1],QA,'0'))
            a('s_nop 9')
        Lm=lab('AM')
        a(f's_cmp_eq_u32 s{sJQ}, 0\ns_cbranch_scc1 {Lm}')
        emit(maxtree(t[4],S[1],False))
        a(f'{Lm}:')
        finish_max(a,t[4],t[2],NA,f's{sOffs}')
        for r in range(16): a(f'v_add_f32 v{S[0]+r}, v{S[0]+r}, v{NA}')
        def poison(T_):
            T_(f'v_mov_b32 v{NA}, {f2u(-2.0**120)}\nv_mov_b32 v{NA+1}, v{NA}')
            for r in range(2,16,2): T_(f'v_mov_b64 {vr(NA+r,2)}, {vr(NA,2)}')
        if not X:
            Lp=lab('AP'); Lr=lab('AR')
            a(f's_cmp_eq_u32 s{sJQ}, 0\ns_cbranch_scc1 {Lp}\n{Lr}:'); tail(f'{Lp}:'); poison(tail); tail(f's_branch {Lr}')
        yblk=young_block([f's_waitcnt vmcnt({2 if opt.get("ychk",9)==10 else 0})',flag_check64(sFB,sM0)]+dma4(0,chunkB(0,False))+[f's_add_u32 m0, s{sM4}, {128*K}',f's_xor_b32 s{sK}, s{sQBo}, 0x800']+[ldws(sK,c) for c in range(4)]+[f's_lshr_b32 s{sK}, s{sM4}, 3',f's_add_u32 m0, s{sK}, {144*K}','s_mov_b32 exec_hi, 0',ldws(sNMo,0),'s_mov_b32 exec_hi, -1'])
        if X: TR.now('Aprep')
        for tt in range(9):
            b=tt&1
            F={k:[] for k in ('S1','P1','Q0','Q1','S0','P0')}
            prev=(SM(LA,S[b^1],1),PV(OA,VF[b^1],S[b^1],1)) if tt>0 else None
            nxt=None
            F['P1']=['s_waitcnt lgkmcnt(0)']
            if tt<8:
                if X:
                    Lp=lab('AP'); Lr=lab('AR')
                    F['S1']=[f's_cmp_eq_u32 s{sJQ}, {tt}', f's_cbranch_scc1 {Lp}', f'{Lr}:']
                    tail(f'{Lp}:\ns_nop 7'); poison(tail); tail(f's_branch {Lr}')
                if tt==7: F['P1']+=[f'v_min_f32 v{CD+r}, v{NA}, -v{XM+r}' for r in range(16)]
                nxt=QK(S[b^1],KF[b^1],QA,vr(CD if tt==7 else NA,16))
                RV=rdVA(b^1,tt+1); RK=rdKA(b,tt+2) if tt+2<=8 else ['s_nop 0','s_nop 0']
                F['Q0']=RV[0:1]; F['Q1']=RV[1:2]; F['S0']=RK[0:1]; F['P0']=RK[1:2]
            if (not X) and tt<=6:
                Lp=lab('YP'); Lr=lab('YR'); p=tt+2
                F['S1']=[f's_cmp_eq_u32 s{sQB}, {p-1}']
                F['S0']=[f's_cbranch_scc1 {Lp}', f'{Lr}:']+F['S0']
                tail(f'{Lp}:')
                if p<=4: tail('s_waitcnt vmcnt(0)')
                tail('s_barrier')
                if p>4: tail('s_setprio 1')
                if TR.on: tail(f's_memtime s[98:99]\ns_waitcnt lgkmcnt(0)\nv_writelane_b32 v{vtr}, s98, {TR.n}')
                if two and p<=4:
                    Lz=lab('YZ'); tail(f's_cmp_eq_u32 s{sMT}, 0\ns_cbranch_scc1 {Lz}'); second(tail,p-1); tail(f's_branch {Lr}\n{Lz}:')
                else: tail(f's_cmp_lg_u32 s{sMT}, 0\ns_cbranch_scc1 {Lr}')
                poison(tail); tail(f's_branch {Lr}')
                if two and tt==3: F['Q1']+=W0
            if X:
                xp,xf,xc_=opt.get('xa',[0,4,6])
                if tt<3: F['P1']+=fl(outHalf(tt)[0:1]); F['P0']+=fl(outHalf(tt)[1:2])
                if opt.get('xw4',1):
                    if tt==3: F['P1']+=['s_barrier']; F['P0']+=fl(outHalf(4)[0:1])
                    if tt==4: F['P1']+=fl(outHalf(4)[1:2])
                if tt==xp: F['P0']+=[f's_waitcnt vmcnt({2*min(3,tt+1)})',flag_post(sF2)]
                if tt==xf: F['P0']+=[flag_load(sFO,sME)]
                if tt==xc_: F['P1']+=W0+[flag_check(sFO,sME)]
                if xc_<=tt<xc_+3: F['P1']+=fl(outHalf(tt-xc_)[2:3]); F['P0']+=fl(outHalf(tt-xc_)[3:4])
                if tt==xc_+opt.get('xot',9): F['S0' if tt<xc_+2 else 'S0']+=fl(otouch)
                if opt.get('aprio',1) and tt in (0,2,4,6): F['Q1']+=[f's_setprio {max(0,2-tt//2) if opt.get("aprio",1)==1 else 3-tt//2}']
            if not X:
                if tt==opt.get('yfl',7): F['P0']+=[young_block([flag_load64(sFB,sM0)])]
                if tt==opt.get('ychk',9): F['P0']+=[yblk]
            slot(S[b],prev,nxt,(SM(LA,S[b],0),PV(OA,VF[b],S[b],0)),F)
        a('s_nop 1')
        a(SM(LA,S[0],1)); a(PV(OA,VF[0],S[0],1))
        if (not X) and opt.get('ychk',9)==9: yblk()
        a('s_nop 11')
        finalize(OA,LA,QA,S[1],True)
        if (not X) and opt.get('ychk',9)==10: yblk()
        if not X: a('s_setprio 0'); TR.n+=1
        TR.now('Aend')
    n0=TR.n
    TR.path='X'
    a('XOLD:'); old_epi(True); standin_local()
    a(f's_lshr_b32 s{sT}, s{sM4}, 3\nv_add_u32 v{vdum}, s{sT}, v{vdum}\nds_write_b32 v{vdum}, v{t[0]} offset:{32*K}\nds_write_b32 v{vdum}, v{t[2]} offset:{32*K+256}')
    a('XPATH:')
    phaseB(True); phaseA(True)
    a(f's_mov_b32 s{sF2}, s{sF2A}')
    def tag(s,items): return [(s,su,v) for su,v in items]
    def stream(s0,s1,items,per,issued,hooks={},hooks0={}):
        for s in range(s0,s1+1):
            if s>s0:
                need=max([i for i,x in enumerate(issued) if x<=s],default=-1)
                assert not any(x[0]<=s for x in items)
                if need>=0: a(f's_waitcnt vmcnt({min(63,len(issued)-1-need)})')
                a('s_barrier')
            if s in hooks0: hooks0[s](issued)
            k=0; p=per[s] if isinstance(per,dict) else per
            while items and items[0][0]<=s+4 and (k<p or items[0][0]<=s+1):
                st_,su,v=items.pop(0); emit(su+[v]); issued.append(st_); k+=1
            if s in hooks: hooks[s](issued)
        assert not items
    def full(s0,s1):
        o=[]
        for s in range(s0,s1): o+=tag(s,outW(s)+outO(s))
        return o
    inreg=set(wo_)|set(wy_)
    outW_=outW
    outW=lambda s_: [] if s_ in inreg else outW_(s_)
    early=full(3,7)+tag(7,outW(7))+[(7,[],flag_load(sFO,sML))]+tag(7,outO(7))
    def wput(q,s_,vaddr): return [f'v_add_u32 v{vaddr}, {OSL[s_%5]+16384}, v{vdum}']+[f'ds_write_b128 v{vaddr}, {vr(H+16*q+4*j,4)} offset:{j*1024}' for j in range(4)]
    ofl=opt.get('ofl',1)
    def postP(issued):
        a(flag_post(sK2)); issued.append(99)
    a('s_waitcnt vmcnt(6)')
    if_young('OUTC')
    a(f's_xor_b32 s{sK2}, s{sF2}, 16384\ns_barrier\ns_branch OUTL0')
    nX=TR.n; TR.n=n0
    TR.path='Y'
    a('YOLD:'); old_epi(False); a('YPATH:')
    phaseA(False); phaseB(False)
    TR.n=max(TR.n,nX); TR.path='XY'
    def loader():
        def postY(issued):
            a(f's_waitcnt vmcnt({len(issued)-6})'); a(flag_post(sF2)); issued.append(99); postP(issued)
        def estream(items,key):
            ne=len(items); ep=opt.get(key,[6,7,8,8,8,0] if ne==37 else [(ne+4-i)//5 for i in range(5)]+[0])
            stream(0,5,list(items),dict(enumerate(ep)),[1,1,2,2,98,98],{},{ofl:postY})
        a('OUTL0:'); estream(early[:8]+early[12:] if opt.get('xw4',1) else early,'eper'); a('s_branch OUTL')
        a(f'OUTLY:\ns_xor_b32 s{sK2}, s{sF2}, 4096')
        if opt.get('p4',1):
            o3=outO(3); estream([(3,o3[0][0],o3[1][1]),(3,[],o3[3][1])]+early[8:],'epery')
        else: estream(early,'eper')
        a('OUTL:')
        Lv=lab('LV'); Lw=lab('LW')
        emit(['s_waitcnt vmcnt(4)',flag_test(sML),f's_cbranch_scc0 {Lv}'])
        it=full(8,16); stream(5,15,it,opt.get('oper',7),[7]*4)
        a(f's_branch LEND\n{Lv}:')
        n9=len(outW(9))
        emit(fl(outW(8))+[flag_load(sFO,sML)]+fl(outW(9))+['s_barrier',f's_waitcnt vmcnt({n9})',flag_test(sML),f's_cbranch_scc0 {Lw}'])
        it=tag(8,outO(8))+tag(9,outO(9))+full(10,16); stream(6,15,it,(len(it)+7)//8,[9]*n9)
        a(f's_branch LEND\n{Lw}:')
        emit(fl(outW(10))+[flag_load(sFO,sML),'s_barrier']+W0+[flag_check(sFO,sML)])
        it=tag(8,outO(8))+tag(9,outO(9))+tag(10,outO(10))+full(11,16); stream(7,15,it,(len(it)+6)//7,[])
        a('LEND:')
        if stamps: TR.dump(0,sWS,vdum)
        a('s_endpgm')

    if_old('OUTLY')
    a('OUTC:')
    voa=[8,10,vva[1]]; vwa=[[12,13,14,15],[16,17,18,19],[20,21,22,23]]; u=[24,vka[1],25]; vo=26
    V=Alloc(28)
    acc=[[V('',4,4) for f in range(4)] for m in range(4)]
    V.n=96
    OFr=[[V('',4,4) for m in range(4)] for b in range(2)]
    WFr=[[V('',4,4) for f in range(4)] for b in range(2)]
    bases=[64*K,128*K,0]; sel=[(0,0),(0,32768),(1,0),(2,0),(2,32768)]
    a(f'v_add_u32 v{voa[0]}, {bases[0]}, v{voa[2]}')
    for f in range(4): a(f'v_xor_b32 v{vwa[0][f]}, {bases[0]+16384+32*f}, v{u[1]}')
    def reads(s,j,b):
        bi,o0=sel[s%5]
        def wr(f):
            off=o0+j*8192
            return [f'ds_read_b64_tr_b16 {vr(WFr[b][f],2)}, v{vwa[bi][f]} offset:{off}', f'ds_read_b64_tr_b16 {vr(WFr[b][f]+2,2)}, v{vwa[bi][f]} offset:{off+2048}']
        def xr(m): return [f'ds_read_b128 {vr(OFr[b][m],4)}, v{voa[bi]} offset:{o0+(m>>1)*4096+j*2048+(m&1)*1024}']
        return xr(0)+wr(0)+wr(1)+wr(2)+wr(3)+xr(1)+xr(2)+xr(3)
    def mfmas(b,first,last):
        M=[]
        if opt.get('zord',1) and not last: od=[(0,0),(1,0),(1,1),(0,1),(0,2),(1,2),(1,3),(0,3),(2,3),(3,3),(3,2),(2,2),(2,1),(3,1),(3,0),(2,0)]
        else: od=[(m,f) for m in range(4) for f in (range(4) if m%2==0 else range(3,-1,-1))]
        for m,f in od:
            d=vr(acc[m][f],4)
            M.append(f'v_mfma_f32_16x16x32_bf16 {d}, {vr(WFr[b][f],4)}, {vr(OFr[b][m],4)}, {"0" if first else d}')
        return M
    a(f's_cmp_eq_u32 s{sBR}, 1\ns_cbranch_scc1 OUTCX\nOUTC2:')
    tail('OUTCX:\ns_barrier\ns_branch OUTC2')
    TR.mark('OB0')
    emit(reads(0,0,0))
    a(f'v_add_u32 v{voa[1]}, {bases[1]}, v{voa[2]}\nv_add_u32 v{vdum}, s{sM4}, v{vl16}')
    for i in (1,2):
        for f in range(4): a(f'v_xor_b32 v{vwa[i][f]}, {bases[i]+16384+32*f}, v{u[1]}')
    vtw=u[0]; vtr_=u[1]
    epi=[f'v_and_b32 v{u[2]}, 15, v{lane}', f'v_bfe_u32 v{vtw}, v{lane}, 4, 1', f'v_lshrrev_b32 v{vo}, 5, v{lane}', f'v_lshl_add_u32 v{vtw}, v{vtw}, 1, v{vo}',
         f'v_and_b32 v{vo}, 7, v{lane}', f'v_xor_b32 v{vtw}, v{vtw}, v{vo}', f'v_lshlrev_b32 v{vtw}, 4, v{vtw}', f'v_lshl_add_u32 v{vtw}, v{u[2]}, 7, v{vtw}', f'v_add_u32 v{vtw}, s{sM8}, v{vtw}',
         f'v_lshrrev_b32 v{u[2]}, 3, v{lane}', f'v_xor_b32 v{vtr_}, v{vo}, v{u[2]}', f'v_lshlrev_b32 v{vtr_}, 4, v{vtr_}', f'v_lshl_add_u32 v{vtr_}, v{u[2]}, 7, v{vtr_}', f'v_add_u32 v{vtr_}, s{sM8}, v{vtr_}',
         f'v_lshlrev_b32 v{vo}, 4, v{vo}', f'v_lshl_add_u32 v{vo}, v{u[2]}, 12, v{vo}', f'v_xor_b32 v{u[2]}, 64, v{vtw}']
    def packm(m):
        o=[]
        for p in range(2):
            c0=acc[m][2*p]; o+=[f'v_cvt_pk_bf16_f32 v{c0+i}, v{c0+2*i}, v{c0+2*i+1}' for i in range(4)]
        for p in range(2):
            c0=acc[m][2*p]; o+=(['s_nop 0'] if p else [])+[f'v_permlane16_swap_b32 v{c0}, v{c0+2}', f'v_permlane16_swap_b32 v{c0+1}, v{c0+3}']
        for p in range(2): o+=[f'ds_write_b128 v{(vtw,u[2])[p]}, {vr(acc[m][2*p],4)} offset:{m*2048}']
        return o
    for s in range(16):
        for j in range(2):
            a('s_waitcnt lgkmcnt(0)')
            TR.commit()
            if j==1 and s<15:
                if s+1==ofl: a('s_waitcnt vmcnt(0)')
                elif s<2: a(f's_waitcnt vmcnt({4-2*s})')
                a('s_barrier')
                if s%2==1: TR.mark(f'OB{s+1}')
            R=reads(s,1,1) if j==0 else (reads(s+1,0,0) if s<15 else [])
            M=mfmas(j,s==0 and j==0,s==15 and j==1)
            fill=[[r] for r in R]+[[] for _ in range(16-len(R))]
            if j==1 and s+5 in wy_:
                wp=wput(wy_.index(s+5),s+5,92)
                fill[11]+=wp[0:1]
                for q in range(4): fill[12+q]+=wp[1+q:2+q]
            if s>=5 and epi:
                for q in (12,13,14,15):
                    if epi: fill[q].append(epi.pop(0))
            if s==15 and j==1:
                pm=packm(0)
                for q in range(11,16): fill[q]+=pm[(q-11)*3:(q-10)*3]
            emit(interleave(M,fill))
    TR.now('omain')
    ost=opt.get('k3st',' sc1')
    D=OFr[0][0]
    def rd(m): return [f'ds_read_b128 {vr(D+8*m+4*i,4)}, v{vtr_} offset:{m*2048+i*1024}' for i in range(2)]
    def stq(m):
        o=[]
        for i in range(2): o+=[f's_add_u32 s{sT}, s{sOc}, {(m*16+i*8)*4096}', f'buffer_store_dwordx4 {vr(D+8*m+4*i,4)}, v{vo}, {sr(sOut,4)}, s{sT} offen{ost}']
        return o
    emit(rd(0)+packm(1)+rd(1)+['s_waitcnt lgkmcnt(4)']+stq(0)+packm(2)+rd(2)+['s_waitcnt lgkmcnt(4)']+stq(1)+packm(3)+rd(3)+['s_waitcnt lgkmcnt(4)']+stq(2)+['s_waitcnt lgkmcnt(0)']+stq(3))
    if opt.get('amp'):
        role,k0,k1,mult=opt['amp']
        a('s_waitcnt vmcnt(0)'); TR.now('end')
        f=lambda k: [i for i in TR.map[role] if TR.map[role][i]==k][-1]
        a(f's_cmp_lg_u32 s{sBR}, {1 if role=="X" else 0}\ns_cbranch_scc1 END')
        a(f's_nop 1\nv_readlane_b32 s4, v{vtr}, {f(k0)}\nv_readlane_b32 s5, v{vtr}, {f(k1)}\ns_nop 3\ns_sub_u32 s4, s5, s4\ns_min_u32 s4, s4, 200000\ns_mul_i32 s4, s4, {mult}\ns_lshr_b32 s4, s4, 1')
        a('s_memrealtime s[6:7]\ns_waitcnt lgkmcnt(0)\nAMPL:\ns_memrealtime s[46:47]\ns_waitcnt lgkmcnt(0)\ns_sub_u32 s46, s46, s6\ns_cmp_lt_u32 s46, s4\ns_cbranch_scc1 AMPL')
    if stamps:
        a('s_waitcnt vmcnt(0)'); TR.now('end'); TR.dump(0,sWS,vdum)
        a('s_memrealtime s[4:5]\ns_memtime s[6:7]\ns_waitcnt lgkmcnt(0)\ns_sub_u32 s6, s6, s92')
        a(f'v_mov_b32 v28, s90\nv_mov_b32 v29, s4\nv_mov_b32 v30, s6\nv_mov_b32 v31, 0\ns_lshl_b32 s4, s2, 5\ns_add_u32 s4, s4, {WS_STAMP}\nv_mov_b32 v32, s4')
        a(f'global_store_dwordx4 v32, v[28:31], s[{sWS}:{sWS+1}]')
    a('s_endpgm')
    loader()
```

```python
import sys, json, struct, math
from asm import *
from k1 import WS_STAMP, WS_TRACE, Trace
NAME='concat_heads__sliding_block__softmax_full_mha__prompt_kernel'
WS_QF=0; WS_KV=8<<20; WS_OF=24<<20; WS_FL=32<<20; WS_F2=WS_FL+(256<<10); WS_FQ=WS_F2+(512<<10); WS_NM=WS_FQ+(256<<10); WS_EP=WS_NM+(512<<10); WS_SIZE=WS_EP+128
def f2u(x): return struct.unpack('<I',struct.pack('<f',x))[0]
QSCALE=f2u((32**-0.5)*math.log2(math.e))
OFFS=88.0
SPIN=1<<20
K=1024
pDbg=6; sX=8; sW=12; sWS=16; sWo=36; sOut=40
sWave=20; sMT=21; sHP=22; sBR=23; sHD=24; sT=25; sT2=26; sT3=27; sW3=28; sKH=29; sSpin=30; sK=31
sQS=32
sQo=34; sKV0=35; sKV1=44; sF1=45
sXm=46; sWm=50; sKX=52; sKW=53
sCnt=46; sN=47; sMa=48; sMb=49; sF2b=50; sK2=51
_S=Alloc(54)
sKVB,sKVA,sM8,sMw,sFB,sFA,sMsk,sOth,sMskA,sJQ,sQB,sO,sF2,sPi,sOffs,sOb,sFO,sME,sML,sWb,sM4,sSp,sC0,sC1,sC2,sQBo,sQAo,sPm,sPw,sPo,sOc,sOA,sF2A,sWhen,sM1,sM2=[_S(str(i)) for i in range(36)]
sM3=3; sFQ=33; sM0=94; sNMo=96
assert _S.n<=90
vtr=1; lane=2; vl16=3; vst=4; vfl=5; vtag=6
vka=[8,9]; vva=[10,11]; vq=[12,13]; vpoll=14; vkp=16; vidx=17; vos=18; vgo=[19,20]; vwt=21; t=[22,23,24,25,26]; vdum=27
SEL=28; XM=32
NM=[64,48]; Q=[80,88]; O=[96,112]; L=[128,132]; S=[136,152]; KF=[168,176]; VF=[184,192]; QA=200
H=208
OSL=[64*K,96*K,128*K,0,32*K]

def build(stamps=False,opt={}):
    a=Asm(); tail=Asm()
    TR=Trace(a,(stamps and opt.get('trace') is not None) or opt.get('amp'),vtr)
    uid=[0]
    def lab(p):
        uid[0]+=1; return f'{p}{uid[0]}'
    def emit(lst):
        for x in lst:
            if callable(x): x()
            else: a(x)
    def if_young(name): a(f's_cmp_ge_u32 s{sWave}, 4\ns_cbranch_scc1 {name}')
    def if_old(name): a(f's_cmp_lt_u32 s{sWave}, 4\ns_cbranch_scc1 {name}')
    def old_block(lst):
        def f():
            Lb=lab('OB'); if_young(Lb); emit(lst); a(f'{Lb}:')
        return f
    def young_block(lst):
        def f():
            Lb=lab('YB'); if_old(Lb); emit(lst); a(f'{Lb}:')
        return f
    def flag_load(soff,smask):
        return f's_mov_b32 exec_lo, s{smask}\ns_mov_b32 exec_hi, 0\nbuffer_load_dwordx2 {vr(vpoll,2)}, v{vfl}, {sr(sWS,4)}, s{soff} offen sc1\ns_mov_b64 exec, -1'
    def flag_test(smask):
        return f'v_cmp_eq_u64 vcc, {vr(vtag,2)}, {vr(vpoll,2)}\ns_and_b32 s{sT3}, vcc_lo, s{smask}\ns_cmp_eq_u32 s{sT3}, s{smask}'
    def flag_check(soff,smask):
        def f():
            Lc=lab('FC'); D=lab('FD')
            a(flag_test(smask)); a(f's_cbranch_scc0 {Lc}\n{D}:')
            tail(f'{Lc}:\ns_mov_b32 s{sSpin}, 0\n{Lc}x:\ns_andn2_b32 s{sT3}, s{smask}, s{sT3}')
            if opt.get('slp'): tail(f's_sleep {opt["slp"]}')
            tail(flag_load(soff,sT3)); tail('s_waitcnt vmcnt(0)')
            tail(flag_test(smask)); tail(f's_cbranch_scc1 {D}')
            tail(f's_add_u32 s{sSpin}, s{sSpin}, 1\ns_cmp_lt_u32 s{sSpin}, {SPIN}\ns_cbranch_scc1 {Lc}x\ns_branch {D}')
        return f
    def flag_post(soff):
        return f's_mov_b64 exec, 0xff\nbuffer_store_dwordx4 {vr(vtag,4)}, v{vl16}, {sr(sWS,4)}, s{soff} offen sc1\ns_mov_b64 exec, -1'
    def post_if(cmp,soff):
        return f'{cmp}\ns_cselect_b64 exec, 0xff, 0\nbuffer_store_dwordx4 {vr(vtag,4)}, v{vl16}, {sr(sWS,4)}, s{soff} offen sc1\ns_mov_b64 exec, -1'
    def masked(cmp,lst): return [cmp,'s_cselect_b64 exec, -1, 0']+lst+['s_mov_b64 exec, -1']
    def when(k,lst):
        def f():
            Lb=lab('WH'); a(f's_cmp_lg_u32 s{sWhen}, {k}\ns_cbranch_scc1 {Lb}'); emit(lst); a(f'{Lb}:')
        return f
    def flag_load64(soff,sm): return f's_mov_b64 exec, s[{sm}:{sm+1}]\nbuffer_load_dwordx2 {vr(vpoll,2)}, v{vfl}, {sr(sWS,4)}, s{soff} offen sc1\ns_mov_b64 exec, -1'
    def flag_check64(soff,sm):
        def f():
            Lc=lab('FC'); D=lab('FD')
            tst=f'v_cmp_eq_u64 vcc, {vr(vtag,2)}, {vr(vpoll,2)}\ns_and_b64 vcc, vcc, s[{sm}:{sm+1}]\ns_cmp_eq_u64 vcc, s[{sm}:{sm+1}]'
            a(tst); a(f's_cbranch_scc0 {Lc}\n{D}:')
            tail(f'{Lc}:\ns_mov_b32 s{sSpin}, 0\n{Lc}x:'); tail(flag_load64(soff,sm)); tail('s_waitcnt vmcnt(0)'); tail(tst); tail(f's_cbranch_scc1 {D}')
            tail(f's_add_u32 s{sSpin}, s{sSpin}, 1\ns_cmp_lt_u32 s{sSpin}, {SPIN}\ns_cbranch_scc1 {Lc}x\ns_branch {D}')
        return f
    def zero(A,r,n):
        for i in range(0,n,2): A(f'v_mov_b64 {vr(r+i,2)}, 0')
    a('s_cmp_ge_u32 s2, 256\ns_cbranch_scc1 END')
    if stamps: a('s_memrealtime s[90:91]\ns_memtime s[92:93]')
    TR.now('start')
    a(f's_bfe_u32 s{sBR}, s2, 0x10003\ns_mul_i32 s{sT}, s{sBR}, 24\ns_add_u32 s4, s0, s{sT}\ns_addc_u32 s5, s1, 0')
    a(f's_load_dwordx2 s[{sX}:{sX+1}], s[4:5], 0\ns_load_dwordx2 s[{sW}:{sW+1}], s[4:5], 8\ns_load_dwordx2 s[{sWo}:{sWo+1}], s[4:5], 16')
    a(f's_load_dwordx2 s[{sOut}:{sOut+1}], s[0:1], 48\ns_load_dwordx2 s[{pDbg}:{pDbg+1}], s[0:1], 56\ns_load_dwordx2 s[{sWS}:{sWS+1}], s[0:1], 64')
    a(f'v_lshrrev_b32 v{vdum}, 6, v0\nv_and_b32 v{lane}, 63, v0')
    a(f'v_readfirstlane_b32 s{sWave}, v{vdum}')
    a(f's_bfe_u32 s{sMT}, s2, 0x20004\ns_and_b32 s{sT}, s2, 1\ns_lshl_b32 s{sT}, s{sT}, 2\ns_add_u32 s{sMT}, s{sMT}, s{sT}')
    a(f's_lshr_b32 s{sHP}, s2, 6\ns_and_b32 s{sT}, s2, 6\ns_lshl_b32 s{sT}, s{sT}, 1\ns_add_u32 s{sHP}, s{sHP}, s{sT}')
    a(f's_and_b32 s{sW3}, s{sWave}, 3\ns_lshr_b32 s{sKH}, s{sWave}, 2')
    a(f's_mov_b32 s{sX+2}, 0x400000\ns_mov_b32 s{sX+3}, 0x20000\ns_mov_b32 s{sW+2}, 0x600000\ns_mov_b32 s{sW+3}, 0x20000')
    vxa=[64,65]; vwa=[66,67]; vgx=list(range(68,76)); vgw=[76,77]; g=[78,79]
    V=Alloc(80)
    acc=[[[None]*2 for s in range(3)] for m in range(4)]
    for m in range(4):
        for s in range(2):
            for fb in range(2): acc[m][s][fb]=V('',4,4)
    for tl in range(2):
        for fb in range(2):
            for mm in range(2): acc[2*tl+mm][2][fb]=V('',4,4)
    XF=[None,None]; WF=[None,None]
    for b in (1,0):
        XF[b]=[V('',4,4) for m in range(4)]; WF[b]=[[V('',4,4) for fb in range(2)] for s in range(3)]
    assert V.n==256
    def g1_dsaddr():
        a(f's_mul_i32 s{sT}, s{sW3}, 24576')
        a(f'v_and_b32 v{t[2]}, 15, v{lane}\nv_lshrrev_b32 v{t[3]}, 4, v{lane}\nv_bfe_u32 v{t[4]}, v{lane}, 1, 3')
        a(f'v_xor_b32 v{t[4]}, v{t[4]}, v{t[3]}\nv_lshlrev_b32 v{t[4]}, 4, v{t[4]}\nv_lshl_add_u32 v{t[4]}, v{t[2]}, 7, v{t[4]}')
        a(f'v_add_u32 v{vxa[0]}, s{sT}, v{t[4]}\nv_xor_b32 v{vxa[1]}, 64, v{vxa[0]}')
        a(f'v_lshlrev_b32 v{vst}, 4, v{t[2]}\nv_lshl_add_u32 v{vst}, v{t[3]}, 9, v{vst}')
        a(f'v_bfe_u32 v{t[2]}, v{lane}, 2, 2\nv_lshl_add_u32 v{t[4]}, v{t[3]}, 3, v{t[2]}\nv_lshlrev_b32 v{t[4]}, 7, v{t[4]}')
        a(f'v_and_b32 v{t[1]}, 3, v{lane}\nv_lshl_add_u32 v{t[4]}, v{t[1]}, 3, v{t[4]}')
        a(f'v_lshrrev_b32 v{t[2]}, 1, v{t[2]}\nv_lshl_add_u32 v{t[4]}, v{t[2]}, 5, v{t[4]}')
        a(f's_xor_b32 s{sT}, s{sKH}, s{sBR}\ns_xor_b32 s{sT}, s{sT}, 1')
        a(f'v_and_b32 v{t[3]}, 1, v{t[3]}\nv_xor_b32 v{t[3]}, s{sT}, v{t[3]}\nv_lshl_add_u32 v{t[4]}, v{t[3]}, 6, v{t[4]}')
        a(f'v_add_u32 v{vwa[0]}, {96*K}, v{t[4]}\nv_xor_b32 v{vwa[1]}, 32, v{vwa[0]}')
    def precompute():
        a=Asm()
        a(f'v_lshlrev_b32 v{vl16}, 4, v{lane}\nv_and_b32 v{vfl}, 31, v{lane}\nv_lshlrev_b32 v{vfl}, 7, v{vfl}\nv_lshrrev_b32 v{t[0]}, 5, v{lane}\nv_mul_u32_u24 v{t[0]}, {WS_FQ-WS_FL}, v{t[0]}\nv_add_u32 v{vfl}, v{vfl}, v{t[0]}')
        a(f's_lshl_b32 s{sHD}, s{sHP}, 1\ns_add_u32 s{sHD}, s{sHD}, 1\ns_sub_u32 s{sHD}, s{sHD}, s{sBR}')
        a(f's_mov_b32 s{sWS+2}, {WS_SIZE}\ns_mov_b32 s{sWS+3}, 0x20000\ns_mov_b32 s{sWo+2}, 0x200000\ns_mov_b32 s{sWo+3}, 0x20000\ns_mov_b32 s{sOut+2}, 0x800000\ns_mov_b32 s{sOut+3}, 0x20000')
        a(f's_mov_b32 s{sQS}, {QSCALE}')
        a(f's_xor_b32 s{sT}, s{sHD}, s{sKH}\ns_lshl_b32 s{sT2}, s{sBR}, 5\ns_add_u32 s{sT}, s{sT}, s{sT2}')
        a(f's_lshl_b32 s{sT2}, s{sMT}, 2\ns_add_u32 s{sT2}, s{sT2}, s{sW3}')
        a(f's_lshl_b32 s{sF1}, s{sT}, 5\ns_add_u32 s{sF1}, s{sF1}, s{sT2}')
        a(f's_lshl_b32 s{sQo}, s{sF1}, 12\ns_lshl_b32 s{sKV0}, s{sF1}, 13\ns_add_u32 s{sKV0}, s{sKV0}, {WS_KV}\ns_add_u32 s{sKV1}, s{sKV0}, 4096')
        a(f's_lshl_b32 s{sF1}, s{sF1}, 7\ns_add_u32 s{sF1}, s{sF1}, {WS_FL}')
        a(f's_lshl_b32 s{sM8}, s{sW3}, 13\ns_lshl_b32 s{sM4}, s{sW3}, 12\ns_lshl_b32 s{sMw}, s{sWave}, 12')
        a(f's_add_u32 s{sT}, s{sM8}, {96*K}\nv_add_u32 v{g[0]}, s{sT}, v{vst}\ns_add_u32 s{sT}, s{sM4}, 8192\nv_add_u32 v{g[1]}, s{sT}, v{vst}')
        a(f's_sub_u32 s{sT3}, s{sT2}, 4\ns_lshl_b32 s{sT3}, 1, s{sT3}\ns_lshl_b32 s{sT}, s{sMT}, 2\ns_lshl_b32 s{sMskA}, 15, s{sT}\ns_lshr_b32 s{sT}, s{sMskA}, 4\ns_or_b32 s{sMskA}, s{sMskA}, s{sT}')
        a(f's_cmp_eq_u32 s{sBR}, 0\ns_cselect_b32 s{sMskA}, s{sT3}, s{sMskA}')
        a(f'v_mov_b32 v{vidx}, 0xdddddddd')
        if opt.get('sel1',1):
            a(f'v_and_b32 v{t[3]}, 7, v{lane}\nv_lshrrev_b32 v{t[4]}, v{t[3]}, 1\nv_mul_u32_u24 v{t[4]}, 0x3f80, v{t[4]}\nv_lshl_or_b32 v{SEL}, v{t[4]}, 16, v{t[4]}\nv_mov_b32 v{SEL+1}, v{SEL}')
            a(f'v_xor_b32 v{t[3]}, 4, v{t[3]}\nv_lshrrev_b32 v{t[4]}, v{t[3]}, 1\nv_mul_u32_u24 v{t[4]}, 0x3f80, v{t[4]}\nv_lshl_or_b32 v{SEL+2}, v{t[4]}, 16, v{t[4]}\nv_mov_b32 v{SEL+3}, v{SEL+2}')
            a(f'v_bfe_u32 v{t[2]}, v{lane}, 2, 1')
        else:
            a(f'v_bfe_u32 v{t[2]}, v{lane}, 2, 1\nv_mul_u32_u24 v{t[3]}, 0x3f80, v{t[2]}\nv_lshl_or_b32 v{SEL+2}, v{t[3]}, 16, v{t[3]}')
            a(f'v_mov_b32 v{SEL+3}, v{SEL+2}\nv_xor_b32 v{SEL}, 0x3f803f80, v{SEL+2}\nv_xor_b32 v{SEL+1}, 0x3f803f80, v{SEL+2}')
        a(f'v_bfe_u32 v{t[3]}, v{lane}, 3, 2\nv_and_b32 v{t[4]}, 35, v{lane}\nv_lshl_add_u32 v{t[4]}, v{t[3]}, 2, v{t[4]}\nv_lshl_add_u32 v{t[4]}, v{t[2]}, 4, v{t[4]}\nv_lshlrev_b32 v{vkp}, 4, v{t[4]}')
        a(f's_lshl_b32 s{sT}, s{sHD}, 18\ns_add_u32 s{sKVA}, s{sT}, {WS_KV}\ns_add_u32 s{sKVB}, s{sT}, {WS_KV+(32<<18)}')
        a(f's_lshl_b32 s{sT}, s{sHD}, 12\ns_add_u32 s{sFA}, s{sT}, {WS_FL}\ns_add_u32 s{sFB}, s{sT}, {WS_FL+32*4096}')
        a(f's_lshr_b32 s{sT}, s{sMT}, 2\ns_lshl_b32 s{sT}, s{sT}, 4\ns_lshl_b32 s{sMsk}, 0xffff, s{sT}\ns_not_b32 s{sOth}, s{sMsk}')
        a(f's_and_b32 s{sT}, s{sHD}, 1\ns_lshl_b32 s{sWb}, s{sT}, 16\ns_lshl_b32 s{sSp}, s{sT}, 15\ns_lshl_b32 s{sT}, s{sT}, 4\ns_add_u32 s{sPi}, s{sT}, s{sHP}')
        a(f's_lshl_b32 s{sME}, 0xffff, s{sT}\ns_not_b32 s{sML}, s{sME}')
        a(f's_mov_b32 s{sC0}, {f2u(2.0**-112)}\ns_mov_b32 s{sC1}, 0x7f800000\ns_mov_b32 s{sC2}, {f2u(2.0**120)}\ns_mov_b32 s{sOffs}, {f2u(-float(opt.get("offs",100)))}')
        a(f's_sub_u32 s{sT}, 11, s{sWave}\ns_cmp_gt_u32 s{sKH}, s{sBR}\ns_cselect_b32 s{sQB}, s{sT}, s{sWave}\ns_lshl_b32 s{sJQ}, s{sMT}, 3\ns_add_u32 s{sJQ}, s{sJQ}, s{sQB}')
        a(f's_lshl_b32 s{sT}, s{sHD}, 6\ns_add_u32 s{sQAo}, s{sT}, s{sJQ}\ns_lshl_b32 s{sQAo}, s{sQAo}, 11')
        a(f's_lshl_b32 s{sT2}, s{sW3}, 1\ns_add_u32 s{sT2}, s{sT2}, s{sKH}\ns_lshl_b32 s{sT3}, s{sMT}, 3\ns_add_u32 s{sT}, s{sT}, s{sT3}\ns_add_u32 s{sT}, s{sT}, s{sT2}\ns_lshl_b32 s{sQBo}, s{sT}, 11\ns_add_u32 s{sQBo}, s{sQBo}, {WS_QF+(32<<17)}')
        a(f's_cmp_eq_u32 s{sBR}, 0\ns_cselect_b32 s{sT2}, s{sQB}, s{sT2}\ns_lshl_b32 s{sT2}, s{sT2}, 11\ns_add_u32 s{sT2}, s{sT2}, 8192\nv_add_u32 v{vq[0]}, s{sT2}, v{vl16}\nv_xor_b32 v{vq[1]}, 0x800, v{vq[0]}')
        a(f's_lshl_b32 s{sT}, s{sKH}, 14\ns_add_u32 s{sT}, s{sT}, {96*K}\ns_lshl_b32 s{sT2}, s{sQB}, 12\ns_add_u32 s{sT2}, s{sT2}, {64*K}\ns_cmp_eq_u32 s{sBR}, 0\ns_cselect_b32 s{sT}, s{sT2}, s{sT}')
        a(f'v_add_u32 v{vka[0]}, s{sT}, v{vkp}\nv_add_u32 v{vva[0]}, s{sT}, v{vl16}')
        a(f'v_bfe_u32 v{t[2]}, v{lane}, 4, 1\nv_lshrrev_b32 v{t[3]}, 5, v{lane}\nv_and_b32 v{vos}, 15, v{lane}\nv_lshlrev_b32 v{vos}, 4, v{vos}\nv_lshl_add_u32 v{vos}, v{t[2]}, 10, v{vos}\nv_lshl_add_u32 v{vos}, v{t[3]}, 8, v{vos}')
        a(f'v_and_b32 v{t[2]}, 31, v{lane}\nv_lshlrev_b32 v{t[3]}, 4, v{t[3]}\nv_sub_u32 v{t[2]}, v{t[2]}, v{t[3]}\nv_cvt_f32_i32 v{t[2]}, v{t[2]}\nv_mul_f32 v{t[2]}, {f2u(2.0**100)}, v{t[2]}')
        for r in range(16): a(f'v_add_f32 v{XM+r}, {f2u((0.5-r)*2.0**100)}, v{t[2]}')
        for r in range(16): a(f'v_min_f32 v{NM[1]+r}, 0, v{XM+r}')
        a(f's_lshl_b32 s{sT}, s{sBR}, 6\ns_lshl_b32 s{sT2}, s{sHP}, 2\ns_add_u32 s{sT}, s{sT}, s{sT2}\ns_add_u32 s{sT}, s{sT}, s{sW3}')
        a(f's_lshl_b32 s{sOb}, s{sT}, 16\ns_add_u32 s{sOb}, s{sOb}, {WS_OF}\ns_lshl_b32 s{sFO}, s{sT}, 12\ns_add_u32 s{sFO}, s{sFO}, {WS_F2}')
        a(f'v_lshrrev_b32 v{t[2]}, 4, v{lane}\nv_and_b32 v{t[3]}, 15, v{lane}\nv_lshlrev_b32 v{t[4]}, 1, v{t[2]}\nv_xor_b32 v{t[3]}, v{t[3]}, v{t[4]}')
        a(f's_lshr_b32 s{sT}, s{sW3}, 1\ns_lshl_b32 s{sT}, s{sT}, 6\ns_and_b32 s{sT2}, s{sW3}, 1\ns_lshl_b32 s{sT2}, s{sT2}, 4\ns_add_u32 s{sT}, s{sT}, s{sT2}')
        a(f'v_add_u32 v{t[2]}, s{sT}, v{t[2]}\nv_lshlrev_b32 v{t[2]}, 11, v{t[2]}\nv_lshl_add_u32 v{vgo[0]}, v{t[3]}, 4, v{t[2]}')
        a(f's_lshl_b32 s{sT}, s{sMT}, 8\nv_add_u32 v{vgo[0]}, s{sT}, v{vgo[0]}')
        a(f'v_xor_b32 v{vgo[1]}, 128, v{vgo[0]}\nv_add_u32 v{vgo[1]}, {4*2048-1024}, v{vgo[1]}')
        a(f's_and_b32 s{sT2}, s{sHP}, 3\ns_lshl_b32 s{sT2}, s{sT2}, 3\ns_add_u32 s{sT2}, s{sT2}, s{sWave}\ns_lshl_b32 s{sT2}, s{sT2}, 16\ns_add_u32 s{sT}, s{sT}, s{sT2}')
        a(f'v_lshrrev_b32 v{t[2]}, 2, v{lane}\nv_and_b32 v{t[3]}, 3, v{lane}\nv_lshlrev_b32 v{t[3]}, 6, v{t[3]}\nv_lshl_add_u32 v{t[2]}, v{t[2]}, 11, v{t[3]}\nv_add_u32 v{vwt}, s{sT}, v{t[2]}')
        a(f's_lshl_b32 s{sT}, s{sKH}, 11\ns_add_u32 s{sPm}, s{sM4}, s{sT}\ns_add_u32 s{sPo}, s{sOb}, s{sT}\ns_lshl_b32 s{sPw}, s{sKH}, 14')
        a(f's_and_b32 s{sT}, s{sW3}, 1\ns_lshl_b32 s{sT}, s{sT}, 13\nv_add_u32 v{vva[1]}, s{sT}, v{vl16}')
        a(f'v_bfe_u32 v{t[0]}, v{lane}, 2, 3\nv_lshrrev_b32 v{t[1]}, 5, v{lane}\nv_lshl_add_u32 v{t[1]}, v{t[1]}, 4, v{t[0]}\nv_lshlrev_b32 v{t[1]}, 8, v{t[1]}')
        a(f'v_and_b32 v{t[2]}, 3, v{lane}\nv_lshl_add_u32 v{t[1]}, v{t[2]}, 3, v{t[1]}')
        a(f's_lshr_b32 s{sT}, s{sW3}, 1\ns_lshl_b32 s{sT}, s{sT}, 2\nv_xor_b32 v{t[0]}, s{sT}, v{t[0]}\nv_lshl_add_u32 v{vka[1]}, v{t[0]}, 5, v{t[1]}')
        a(f's_lshl_b32 s{sT}, s{sJQ}, 5\ns_add_u32 s{sT}, s{sT}, s{sPi}\ns_lshl_b32 s{sOA}, s{sT}, 11\ns_add_u32 s{sOA}, s{sOA}, {WS_OF}\ns_lshl_b32 s{sF2A}, s{sT}, 7\ns_add_u32 s{sF2A}, s{sF2A}, {WS_F2}')
        a(f's_lshl_b32 s{sT}, s{sMT}, 2\ns_add_u32 s{sT}, s{sT}, s{sW3}\ns_lshl_b32 s{sT}, s{sT}, 1\ns_add_u32 s{sT}, s{sT}, s{sKH}\ns_lshl_b32 s{sT}, s{sT}, 5\ns_add_u32 s{sT}, s{sT}, s{sPi}')
        a(f's_lshl_b32 s{sO}, s{sT}, 11\ns_add_u32 s{sO}, s{sO}, {WS_OF+(1<<22)}\ns_lshl_b32 s{sF2}, s{sT}, 7\ns_add_u32 s{sF2}, s{sF2}, {WS_F2+(1<<18)}')
        a(f'v_mov_b64 {vr(vtag,2)}, 0')
        a(f's_or_b32 s{sT}, s{sHD}, 1\ns_lshl_b32 s{sT}, s{sT}, 3\ns_add_u32 s{sT}, s{sT}, s{sMT}\ns_lshl_b32 s{sT}, s{sT}, 2\ns_add_u32 s{sT}, s{sT}, s{sW3}\ns_lshl_b32 s{sNMo}, s{sT}, 9\ns_add_u32 s{sNMo}, s{sNMo}, {WS_NM}')
        a(f's_add_u32 s{sFQ}, s{sF1}, {WS_FQ-WS_FL}\ns_and_b32 s{sT}, s{sMT}, 4\ns_lshl_b32 s{sT}, s{sT}, 2\ns_lshl_b32 s{sM0}, 15, s{sT}')
        a(f's_lshl_b32 s{sT}, s{sMT}, 2\ns_add_u32 s{sT}, s{sT}, s{sW3}\ns_lshl_b32 s{sM0+1}, 1, s{sT}')
        a(f's_and_b32 s{sT}, s{sMT}, 3\ns_mul_i32 s{sT2}, s{sT}, s{sBR}')
        for i,r in ((1,sM1),(2,sM2),(3,sM3)):
            a(f's_cmp_ge_u32 s{sT2}, {i}\ns_cselect_b32 s{sT3}, {4*(i-1)}, {4*i}\ns_lshl_b32 s{r}, s{sM0}, s{sT3}')
        wt=opt.get('when',[0,0,0,2,1,2,3,3]); assert 1 not in wt[:4] and 0 not in wt[4:]
        a(f's_lshl_b32 s{sT2}, s{sKH}, 2\ns_add_u32 s{sT}, s{sT}, s{sT2}\ns_lshl_b32 s{sT}, s{sT}, 1\ns_lshr_b32 s{sWhen}, {sum(w<<(2*i) for i,w in enumerate(wt))}, s{sT}\ns_and_b32 s{sWhen}, s{sWhen}, 3')
        a(f's_lshl_b32 s{sOc}, s{sHP}, 1\ns_and_b32 s{sT}, s{sW3}, 1\ns_add_u32 s{sOc}, s{sOc}, s{sT}\ns_lshl_b32 s{sOc}, s{sOc}, 18')
        a(f's_lshl_b32 s{sT}, s{sBR}, 11\ns_add_u32 s{sOc}, s{sOc}, s{sT}\ns_lshl_b32 s{sT}, s{sMT}, 8\ns_add_u32 s{sOc}, s{sOc}, s{sT}\ns_lshr_b32 s{sT}, s{sW3}, 1\ns_lshl_b32 s{sT}, s{sT}, 7\ns_add_u32 s{sOc}, s{sOc}, s{sT}')
        a(f'v_mov_b32 v{t[4]}, 0')
        return a
    def groups(a_):
        G=[]
        for x in a_.L:
            x=x.strip()
            if G and (x.startswith('s_cselect') or 'exec' in x or (G[-1][-1].startswith('s_mov_b') and 'exec' in G[-1][-1] and not G[-1][-1].endswith('exec, -1'))): G[-1].append(x)
            else: G.append([x])
        return G
    g1a=opt.get('g1a','')
    def dmaX(s,jj,first):
        o=[[f's_add_u32 m0, s{sXm+jj}, {(s%3)*8192}']+([f's_movk_i32 s{sKX}, {s*128}'] if first else [])]
        o+=[[f'buffer_load_dwordx4 v{vgx[2*jj]}, {sr(sX,4)}, s{sKX} offen{g1a} lds'],[f'buffer_load_dwordx4 v{vgx[2*jj+1]}, {sr(sX,4)}, s{sKX} offen offset:1024{g1a} lds']]
        return o
    def dmaW(n,i,setk=True):
        s,seg=divmod(n,3)
        return [[f's_add_u32 m0, s{sWm+i}, {(n%8)*8192}']+([f's_mov_b32 s{sKW}, {s*64*6144+seg*2048}'] if setk else []),[f'buffer_load_dwordx4 v{vgw[i]}, {sr(sW,4)}, s{sKW} offen{g1a} lds']]
    def flat(groups):
        o=[]
        for gr in groups:
            o+=gr
            if len(gr)==1 and 'm0' in gr[0]: o.append('s_nop 0')
        return o
    cols=[(s,fb) for s in range(3) for fb in range(2)]
    def reads(s,j,b):
        def wr(seg,fb):
            off=((3*s+seg)%8)*8192+j*4096
            return [f'ds_read_b64_tr_b16 {vr(WF[b][seg][fb],2)}, v{vwa[fb]} offset:{off}', f'ds_read_b64_tr_b16 {vr(WF[b][seg][fb]+2,2)}, v{vwa[fb]} offset:{off+512}']
        def xr(m): return [f'ds_read_b128 {vr(XF[b][m],4)}, v{vxa[j]} offset:{(s%3)*8192+m*2048}']
        R=xr(0)
        for c in cols: R+=wr(*c)
        return R+xr(1)+xr(2)+xr(3)
    if opt.get('zord',1):
        mord=[]
        for mb in range(2):
            for seg in (range(3) if mb==0 else range(2,-1,-1)): mord+=[(2*mb,seg,0),(2*mb+1,seg,0),(2*mb+1,seg,1),(2*mb,seg,1)]
    else: mord=[(m,seg,fb) for m in range(4) for seg,fb in (cols if m%2==0 else cols[::-1])]
    def mfmas(b, first):
        M=[]
        for m,seg,fb in mord:
            A_,B_=(WF[b][seg][fb],XF[b][m]) if seg<2 else (XF[b][m],WF[b][seg][fb])
            d=vr(acc[m][seg][fb],4)
            M.append(f'v_mfma_f32_16x16x32_bf16 {d}, {vr(A_,4)}, {vr(B_,4)}, {"0" if first else d}')
        return M
    def stage_full(s):
        return dmaX(s,0,True)+dmaW(3*s,0)+dmaW(3*s+1,0)+dmaW(3*s+2,0)+dmaX(s,1,False)+dmaW(3*s,1)+dmaW(3*s+1,1)+dmaW(3*s+2,1)+dmaX(s,2,False)+dmaX(s,3,False)
    pieces=[(acc[0][1][0],'k',0,0),(acc[0][0][0],'q',0,0),(acc[0][2][1],'v',0,1),(acc[0][2][0],'v',0,0),(acc[1][1][0],'k',0,1),(acc[1][0][0],'q',0,1),
            (acc[2][0][0],'q',1,0),(acc[2][1][0],'k',1,0),(acc[2][2][1],'v',1,1),(acc[2][2][0],'v',1,0),(acc[3][1][0],'k',1,1),(acc[3][0][0],'q',1,1)]
    def done(p): return max(i for i,(m,seg,fb) in enumerate(mord) if p[0]<=acc[m][seg][fb]<p[0]+8)
    pieces.sort(key=done)
    done_at=[done(p) for p in pieces]
    assert min(done_at[10:])>=max(i for i,(m,seg,fb) in enumerate(mord) if seg==2)
    hreg=[H+8+4*i for i in range(10)]+[H,H+4]
    def packi(dst,c,kind):
        o=[f'v_mul_f32 v{c+i}, s{sQS}, v{c+i}' for i in range(8)] if kind=='q' else []
        return o+[f'v_cvt_pk_bf16_f32 v{dst+i}, v{c+2*i}, v{c+2*i+1}' for i in range(4)]
    def gstore(reg,kind,tl,sub):
        if kind=='q': so,off=sQo,tl*2048+sub*256
        else: so,off=(sKV0,sKV1)[tl],(2048 if kind=='v' else 0)+sub*256
        return f'buffer_store_dwordx4 {vr(reg,4)}, v{vst}, {sr(sWS,4)}, s{so} offen offset:{off} sc1'
    def lstore(reg,kind,tl,sub):
        if kind=='q': return f'ds_write_b128 v{g[1]}, {vr(reg,4)} offset:{tl*2048+sub*256}'
        return f'ds_write_b128 v{g[0]}, {vr(reg,4)} offset:{tl*4096+(2048 if kind=="v" else 0)+sub*256}'
    held=[gstore(hreg[i],*p[1:]) for i,p in enumerate(pieces)]
    def g1_loop(old, extra={}, carry=[], pre=[]):
        TR.mark('B0')
        emit(reads(0,0,0))
        pend=[]
        if old: pend=list(carry)
        rest=[]; fw0=opt.get('fw0',4)
        for s in range(16):
            for j in range(2):
                if j==1 and s<15:
                    assert not pend
                    a(f's_waitcnt vmcnt({(w1 if s==0 else 12) if s<14 else 0}) lgkmcnt(0)' if old else ('s_waitcnt vmcnt(0) lgkmcnt(0)' if s==12 else 's_waitcnt lgkmcnt(0)'))
                    if s==12:
                        Lc=lab('DC'); D=lab('DD')
                        a(f'v_cmp_eq_u32 vcc, 1, v{vtag+1}\ns_cmp_eq_u64 vcc, -1\ns_cbranch_scc0 {Lc}\n{D}:\nv_not_b32 v{vtag+1}, v{vtag}')
                        tail(f'{Lc}:\ns_mov_b32 s{sSpin}, 0\n{Lc}x:\nglobal_load_dwordx2 {vr(vtag,2)}, v{t[4]}, s[{pDbg}:{pDbg+1}] sc1\ns_waitcnt vmcnt(0)')
                        tail(f'v_cmp_eq_u32 vcc, 1, v{vtag+1}\ns_cmp_eq_u64 vcc, -1\ns_cbranch_scc1 {D}')
                        tail(f's_add_u32 s{sSpin}, s{sSpin}, 1\ns_cmp_lt_u32 s{sSpin}, {SPIN}\ns_cbranch_scc1 {Lc}x\ns_branch {D}')
                    a('s_barrier')
                    if s%2==1 or (s<6 and opt.get('g1tr')): TR.mark(f'B{s+1}')
                    sn=s+1
                    if old:
                        if 3*sn+5<48: pend+=dmaW(3*sn+5,0)+dmaW(3*sn+5,1,False)
                        if sn+2<16: pend+=dmaX(sn+2,0,True)+dmaW(3*sn+6,0)+dmaW(3*sn+7,0)+dmaX(sn+2,1,False)+dmaW(3*sn+6,1)+dmaW(3*sn+7,1)+dmaX(sn+2,2,False)+dmaX(sn+2,3,False)
                else:
                    a('s_waitcnt lgkmcnt(0)'); TR.commit()
                R=reads(s,1,1) if j==0 else (reads(s+1,0,0) if s<15 else [])
                M=mfmas(j, s==0 and j==0)
                fill=[[] for _ in M]
                for q,r_ in enumerate(R): fill[q].append(r_)
                step=1 if (s==0 and j==0) else 2
                for sl in range(0,24,step):
                    if pend: fill[sl]+=pend.pop(0)
                    while s==0 and j==0 and len(pend)>23-sl:
                        if len(fill[sl])>0 and 'm0' in fill[sl][-1]: fill[sl].append('s_nop 0')
                        fill[sl]+=pend.pop(0)
                if s>=opt.get('pc0',1):
                    for sl in range(16,24):
                        k_=0
                        while pre and k_<opt.get('pcn',2):
                            gr=pre.pop(0); fill[sl]+=gr; k_+=len(gr)
                if (s,j)==(10,0): assert not pre
                if (s,j) in extra: fill[18]+=extra[(s,j)]
                if (s,j)==(10,0): fill[21]+=[f'global_load_dwordx2 {vr(vtag,2)}, v{t[4]}, s[{pDbg}:{pDbg+1}] sc1']
                if (s,j)==(15,1):
                    qq=[]
                    for i,p in enumerate(pieces):
                        qq+=[(done_at[i],x) for x in packi(hreg[i],p[0],p[1])]
                    pos=[0]*24; cnt=0
                    for sl in range(24):
                        pos[sl]=cnt; cnt+=1
                        n_=0
                        while qq and n_<2 and qq[0][0]<=sl and cnt-pos[qq[0][0]]-1>=8:
                            fill[sl].append(qq.pop(0)[1]); cnt+=1; n_+=1
                    for d,x in qq:
                        gap=cnt-pos[d]-1
                        if gap<8: rest.append(f's_nop {7-gap}'); cnt+=8-gap
                        rest.append(x); cnt+=1
                emit(interleave(M,fill))
        assert not pend
        return rest
    if_young('G1Y')
    a(f'v_lshrrev_b32 v{t[2]}, 3, v{lane}\nv_and_b32 v{t[3]}, 7, v{lane}\nv_lshrrev_b32 v{t[4]}, 4, v{lane}')
    a(f's_lshl_b32 s{sT}, s{sMT}, 8\ns_lshl_b32 s{sT2}, s{sWave}, 6\ns_add_u32 s{sT}, s{sT}, s{sT2}')
    a(f'v_add_u32 v{vdum}, s{sT}, v{t[2]}\nv_lshlrev_b32 v{vdum}, 11, v{vdum}')
    a(f'v_xor_b32 v{t[0]}, v{t[3]}, v{t[4]}\nv_lshl_add_u32 v{t[0]}, v{t[0]}, 4, v{vdum}')
    a(f'v_xor_b32 v{t[1]}, 64, v{t[0]}\nv_add_u32 v{t[1]}, {8*2048-1024}, v{t[1]}')
    a(f's_and_b32 s{sT2}, s{sHP}, 3\ns_mul_i32 s{sT3}, s{sWave}, 24576')
    for jj in range(4):
        a(f's_xor_b32 s{sT}, s{sT2}, {jj}\ns_lshl_b32 s{sXm+jj}, s{sT}, 11\ns_add_u32 s{sXm+jj}, s{sXm+jj}, s{sT3}\ns_lshl_b32 s{sT}, s{sT}, 15')
        a(f'v_add_u32 v{vgx[2*jj]}, s{sT}, v{t[0]}\nv_add_u32 v{vgx[2*jj+1]}, s{sT}, v{t[1]}')
    a(f's_and_b32 s{sT2}, s{sMT}, 1\ns_lshl_b32 s{sT}, s{sWave}, 1\ns_add_u32 s{sT}, s{sT}, s{sT2}')
    a(f's_lshl_b32 s{sWm}, s{sT}, 10\ns_add_u32 s{sWm}, s{sWm}, {96*K}\ns_xor_b32 s{sWm+1}, s{sWm}, 1024')
    a(f's_lshl_b32 s{sT}, s{sT}, 3\nv_add_u32 v{vdum}, s{sT}, v{t[2]}\nv_xor_b32 v{t[0]}, 8, v{vdum}')
    a(f'v_mul_u32_u24 v{vdum}, 6144, v{vdum}\nv_mul_u32_u24 v{t[0]}, 6144, v{t[0]}')
    a(f's_lshl_b32 s{sT2}, s{sT2}, 2\nv_and_b32 v{t[4]}, 1, v{t[4]}\nv_lshl_add_u32 v{t[4]}, v{t[4]}, 1, s{sT2}\nv_xor_b32 v{t[4]}, v{t[4]}, v{t[3]}')
    a(f's_lshl_b32 s{sT}, s{sHP}, 7\nv_lshl_add_u32 v{t[4]}, v{t[4]}, 4, s{sT}')
    a(f'v_add_u32 v{vgw[0]}, v{t[4]}, v{vdum}\nv_xor_b32 v{t[4]}, 64, v{t[4]}\nv_add_u32 v{vgw[1]}, v{t[4]}, v{t[0]}')
    a('s_waitcnt lgkmcnt(0)')
    pt=opt.get('ptr')
    if pt: TR.now('karg')
    order=opt.get('pro','X00 W00 X01 D W01 X02 X03 X10 W10 X11 W11 X12 X13 | W20 X20 W21 X21 X22 X23').split()
    def tok(x):
        s_,q_=int(x[1]),int(x[2])
        if x[0]=='X': return dmaX(s_,q_,True)
        o=[]
        for seg in range(3 if s_<2 else 2): o+=dmaW(3*s_+seg,q_)
        return o
    nld=lambda x: 0 if x in 'D|' else (2 if x[0]=='X' or x[1]=='2' else 3)
    bi=order.index('|')
    for x in order[:bi]:
        if x=='D': g1_dsaddr()
        else: emit(flat(tok(x)))
    assert not any(x[1]=='0' for x in order[bi+1:])
    l0=max(i for i,x in enumerate(order) if len(x)==3 and x[1]=='0'); l1=max(i for i,x in enumerate(order) if len(x)==3 and x[1]=='1')
    carry=[]
    for x in order[bi+1:]: carry+=tok(x)
    w1=sum(nld(x) for x in order[l1+1:])
    a(f'G1O:\ns_waitcnt vmcnt({sum(nld(x) for x in order[l0+1:bi])})\ns_barrier')
    ntr0=TR.n
    rest=g1_loop(True,{},carry,groups(precompute()))
    emit(rest)
    TR.now('mainend')
    a(f's_cmp_eq_u32 s{sBR}, 0\ns_cbranch_scc1 YOLD\ns_branch XOLD')
    urg=[held[i] for i,p in enumerate(pieces) if p[1]!='q']
    heldq=[held[i] for i,p in enumerate(pieces) if p[1]=='q']
    def old_epi(X):
        ls=[lstore(hreg[i],*p[1:]) for i,p in enumerate(pieces)]
        mode=opt.get('xurg','first') if X else opt.get('yurg','mix')
        u_=[when(0,urg)] if X else urg
        if mode=='wait': emit(ls+['s_waitcnt lgkmcnt(0)']+u_)
        elif mode=='first': emit(u_+ls)
        else:
            for i,p in enumerate(pieces):
                if p[1]!='q': a(held[i])
                a(ls[i])
    a('G1Y:')
    ntr1=TR.n; TR.n=ntr0
    g1_dsaddr()
    a('s_waitcnt lgkmcnt(0)')
    if opt.get('xt'):
        nst=opt['xt']
        a(f's_lshl_b32 s{sT}, s{sMT}, 4\ns_add_u32 s{sT}, s{sT}, s{sHP}\ns_lshl_b32 s{sT}, s{sT}, 2\ns_add_u32 s{sT}, s{sT}, s{sW3}\ns_lshl_b32 s{sT}, s{sT}, 13\ns_add_u32 s{sT}, s{sT}, {opt.get("xt0",1)*128}')
        a(f'v_lshrrev_b32 v{t[2]}, 4, v{lane}\nv_and_b32 v{t[3]}, 15, v{lane}\nv_min_u32 v{t[3]}, {2*nst-1}, v{t[3]}\nv_lshlrev_b32 v{t[3]}, 6, v{t[3]}\nv_lshl_add_u32 v{t[2]}, v{t[2]}, 11, v{t[3]}')
        a(f'buffer_load_dword v{vdum}, v{t[2]}, {sr(sX,4)}, s{sT} offen')
    if opt.get('wt'):
        a(f's_min_u32 s{sT}, s{sW3}, {opt["wt"]-1}\ns_add_u32 s{sT}, s{sT}, {opt.get("xt0",1)}\ns_lshl_b32 s{sT}, s{sT}, 3\ns_add_u32 s{sT}, s{sT}, s{sMT}\ns_mul_i32 s{sT}, s{sT}, {8*6144}\ns_lshl_b32 s{sT2}, s{sHP}, 7\ns_add_u32 s{sT}, s{sT}, s{sT2}')
        a(f'v_min_u32 v{t[2]}, 47, v{lane}\nv_and_b32 v{t[3]}, 1, v{t[2]}\nv_lshrrev_b32 v{t[2]}, 1, v{t[2]}\nv_lshlrev_b32 v{t[3]}, 6, v{t[3]}\nv_lshl_add_u32 v{t[2]}, v{t[2]}, 11, v{t[3]}')
        a(f'buffer_load_dword v{vdum}, v{t[2]}, {sr(sW,4)}, s{sT} offen')
    sp_=opt.get('spf',[])
    if sp_:
        a(f's_lshl_b32 s{sXm}, s{sMT}, 4\ns_add_u32 s{sXm}, s{sXm}, s{sHP}\ns_lshl_b32 s{sXm}, s{sXm}, 2\ns_add_u32 s{sXm}, s{sXm}, s{sW3}\ns_lshl_b32 s{sXm}, s{sXm}, 13')
        a(f's_lshl_b32 s{sXm+1}, s{sMT}, 2\ns_add_u32 s{sXm+1}, s{sXm+1}, s{sW3}\ns_mul_i32 s{sXm+1}, s{sXm+1}, 12288\ns_lshl_b32 s{sT}, s{sHP}, 7\ns_add_u32 s{sXm+1}, s{sXm+1}, s{sT}')
    def spf(s_,what='xw'):
        o=[]
        if 'w' in what: o+=[f's_add_u32 s{sXm+4}, s{sXm+1}, {s_*64*6144}']+[f's_load_dwordx2 s[{sXm+2}:{sXm+3}], s[{sW}:{sW+1}], s{sXm+4} offset:{i*2048+60}' for i in range(6)]
        if 'x' in what: o+=[f's_load_dwordx2 s[{sXm+2}:{sXm+3}], s[{sX}:{sX+1}], s{sXm} offset:{i*2048+s_*128+60}' for i in range(4)]
        return o
    if sp_: emit(spf(sp_[0],opt.get('spw','xw')))
    if opt.get('ctouch0',1):
        a(f's_getpc_b64 s[4:5]\nG1PC:\ns_lshr_b32 s{sT}, s2, 3\ns_lshl_b32 s{sT}, s{sT}, 2\ns_add_u32 s{sT}, s{sT}, s{sW3}\ns_mul_i32 s{sT}, s{sT}, 320')
        a(f's_sub_u32 s4, s4, G1PC-G1O\ns_subb_u32 s5, s5, 0')
        for i in range(5): a(f's_load_dword s{sSpin}, s[4:5], s{sT} offset:{i*64}')
    if opt.get('tlbw',1):
        a(f's_lshl_b32 s{sK}, s{sW3}, 20\ns_add_u32 s{sK}, s{sK}, {2<<20}\ns_load_dword s{sSpin}, s[{sW}:{sW+1}], s{sK}')
    if opt.get('tlb',0)>=1:
        a(f's_bfe_u32 s{sK}, s2, 0x30003\ns_lshl_b32 s{sK}, s{sK}, 2\ns_add_u32 s{sK}, s{sK}, s{sW3}\ns_min_u32 s{sK}, s{sK}, 16\ns_lshl_b32 s{sK}, s{sK}, 21\ns_load_dword s{sSpin}, s[{sWS}:{sWS+1}], s{sK}')
    if opt.get('tlb',0)>=2:
        a(f's_lshl_b32 s{sK}, s{sW3}, 21\ns_load_dword s{sSpin}, s[{sOut}:{sOut+1}], s{sK}\ns_load_dword s{sSpin}, s[{sWo}:{sWo+1}], 0')
    a(f's_lshl_b32 s{sT}, s2, 3\ns_add_u32 s{sT}, s{sT}, s{sWave}\ns_cmp_eq_u32 s{sT}, 7\ns_cbranch_scc0 G1Y1')
    a(f's_mov_b64 exec, 1\nv_mov_b32 v{vgx[2]}, {WS_EP}\nv_mov_b32 v{vgx[3]}, 0')
    a(f'global_load_dword v{vgx[0]}, v{vgx[2]}, s[{sWS}:{sWS+1}] sc1\nv_mov_b32 v{vgx[1]}, 1\ns_waitcnt vmcnt(0)')
    a(f'v_add_u32 v{vgx[0]}, 1, v{vgx[0]}')
    a(f'global_store_dword v{vgx[2]}, v{vgx[0]}, s[{sWS}:{sWS+1}] sc1\nglobal_store_dwordx2 v{vgx[3]}, {vr(vgx[0],2)}, s[{pDbg}:{pDbg+1}] sc1')
    a('s_mov_b64 exec, -1\nG1Y1:')
    vpf=vgx[4]
    a(f's_lshl_b32 s{sT}, s{sMT}, 4\ns_add_u32 s{sT}, s{sT}, s{sHP}\ns_and_b32 s{sT2}, s{sT}, 1\ns_lshr_b32 s{sT}, s{sT}, 1\ns_lshl_b32 s{sT3}, s{sW3}, 6\ns_add_u32 s{sT}, s{sT}, s{sT3}')
    a(f's_mul_i32 s{sT}, s{sT}, 6144\ns_lshl_b32 s{sT2}, s{sT2}, 10\ns_add_u32 s{sT}, s{sT}, s{sT2}\ns_add_u32 s{sT}, s{sT}, 384')
    a(f'v_min_u32 v{t[2]}, 5, v{lane}\nv_lshrrev_b32 v{t[3]}, 1, v{t[2]}\nv_and_b32 v{t[2]}, 1, v{t[2]}\nv_lshlrev_b32 v{t[2]}, 6, v{t[2]}\nv_lshl_add_u32 v{t[2]}, v{t[3]}, 11, v{t[2]}\nv_add_u32 v{vpf}, s{sT}, v{t[2]}')
    pc=precompute()
    vfw=vgx[6]
    pc(f'v_bfe_u32 v{t[2]}, v{lane}, 3, 1\nv_and_b32 v{t[3]}, 0x70, v{vl16}\nv_lshl_add_u32 v{vfw}, v{t[2]}, 12, v{t[3]}\nv_lshl_add_u32 v{t[3]}, v{t[2]}, 14, v{t[3]}')
    pc(f'v_xor_b32 v{t[2]}, s{sF2}, v{vfw}\nv_xor_b32 v{vfw}, s{sF1}, v{vfw}\nv_xor_b32 v{t[3]}, s{sF2A}, v{t[3]}\nv_mov_b32 v{t[1]}, v{vfw}')
    pc(f's_mov_b64 exec, 0xffff0000\nv_mov_b32 v{vfw}, v{t[3]}\ns_mov_b32 exec_lo, 0\ns_mov_b32 exec_hi, -1\nv_mov_b32 v{vfw}, v{t[2]}\ns_mov_b32 exec_hi, 0xffff0000\nv_add_u32 v{vfw}, {WS_FQ-WS_FL}, v{t[1]}\ns_mov_b64 exec, -1')
    if opt.get('fwarm',1): pc(f'buffer_store_dwordx4 {vr(vtag,4)}, v{vfw}, {sr(sWS,4)}, 0 offen sc1')
    pcy=groups(pc)
    if not opt.get('ypre',1):
        for s_ in sp_[1:]: emit(spf(s_,opt.get('spw','xw')))
    if opt.get('ypre',1):
        for i,gr in enumerate(pcy):
            emit(gr)
            for q,s_ in enumerate(sp_[1:]):
                if i==(q+1)*len(pcy)//len(sp_): emit(spf(s_,opt.get('spw','xw')))
        pcy=[]
    ex={}
    for gi,pos in enumerate(opt.get('vp',[0,4,8])):
        ex[(pos,0)]=[f's_mov_b32 s{sK}, {(gi+1)*4*64*6144}', f'buffer_load_dword v{vdum}, v{vpf}, {sr(sW,4)}, s{sK} offen']
    if opt.get('ctouch',1):
        a(f's_getpc_b64 s[4:5]\ns_lshr_b32 s{sT}, s2, 3\ns_lshl_b32 s{sT}, s{sT}, 11\nv_and_b32 v{vgx[5]}, 31, v{lane}\nv_lshl_add_u32 v{vgx[5]}, v{vgx[5]}, 6, s{sT}')
        a(f'v_min_u32 v{vgx[5]}, CODE_END-G1Y1-512, v{vgx[5]}')
        Lc=lab('CT')
        ex[(opt.get('ctpos',13),0)]=[f's_cmp_lg_u32 s{sWave}, 4', f's_cbranch_scc1 {Lc}', f'global_load_dword v{vdum}, v{vgx[5]}, s[4:5]', f'{Lc}:']
    a('s_barrier')
    rest=g1_loop(False,ex,[],pcy)
    emit(rest)
    TR.now('mainend')
    assert TR.n==ntr1
    a(f's_cmp_eq_u32 s{sBR}, 0\ns_cbranch_scc1 YPATH\ns_branch XPATH')
    import fyb2 as fy2
    fy2.rest_of_kernel(locals())
    a('END:\ns_endpgm')
    build.trmap=TR.map
    return '; @launch grid=(256,1,1) block=(512,1,1) lds=163840\n.amdgcn_target "amdgcn-amd-amdhsa--gfx950"\n'+kernel_header(NAME)+a.text()+tail.text()+'CODE_END:\n    s_endpgm\n'+'.section .rodata,"a"\n.p2align 6\n'+kernel_desc(NAME,256)
if __name__=='__main__':
    opt=json.loads(sys.argv[2]) if len(sys.argv)>2 else {}
    ref=open('concat_heads__sliding_block__softmax_full_mha__prompt.s.ref').read().split('\n')
    open(sys.argv[1],'w').write('\n'.join(ref[:10])+'\n'+build(False,opt))
```

```python
from asm import *
from fy import *
def rest_of_kernel(U):
    a,tail,opt,TR,stamps=U['a'],U['tail'],U['opt'],U['TR'],U['stamps']
    lab,emit,if_young,if_old,old_block,young_block=U['lab'],U['emit'],U['if_young'],U['if_old'],U['old_block'],U['young_block']
    flag_load,flag_test,flag_check,flag_post,zero,held,old_epi=U['flag_load'],U['flag_test'],U['flag_check'],U['flag_post'],U['zero'],U['held'],U['old_epi']
    urg,heldq,when,flag_load64,flag_check64=U['urg'],U['heldq'],U['when'],U['flag_load64'],U['flag_check64']
    post_if,masked=U['post_if'],U['masked']
    cY=f's_cmp_eq_u32 s{sKH}, 1'; cW=lambda k: f's_cmp_eq_u32 s{sWhen}, {k}'
    visit,entry,hot=U['visit'],U['entry'],U['hot']
    def ldws(so,c): return f'buffer_load_dwordx4 v{vl16}, {sr(sWS,4)}, s{so} offen offset:{c*1024} sc1 lds'
    def chunkB(s,X):
        if X and 1<=s<=3: su=[f's_and_b32 s{sK}, s{sMT}, 3', f's_cmp_ge_u32 s{sK}, {s}', f's_cselect_b32 s{sK}, {s-1}, {s}', f's_and_b32 s{sT3}, s{sMT}, 4', f's_or_b32 s{sK}, s{sK}, s{sT3}']
        else: su=[f's_and_b32 s{sK}, s{sMT}, 4', f's_xor_b32 s{sK}, s{sK}, {s}']
        return su+[f's_lshl_b32 s{sK}, s{sK}, 15', f's_add_u32 s{sK}, s{sK}, s{sKVB}']
    def chunkA(i):
        su=[f's_max_u32 s{sK}, s{sMT}, 1', f's_sub_u32 s{sK}, s{sK}, 1', f's_lshl_b32 s{sK}, s{sK}, 15'] if i==0 else [f's_lshl_b32 s{sK}, s{sMT}, 15']
        return su+[f's_add_u32 s{sK}, s{sK}, s{sKVA}']
    def dma4(lds,su):
        o=su+[f's_add_u32 s{sK}, s{sK}, s{sM8}']
        for i in range(2):
            o+=[f's_add_u32 m0, s{sM8}, {lds+i*4096}', f's_add_u32 s{sK}, s{sK}, 4096' if i else 's_nop 0']+[ldws(sK,c) for c in range(4)]
        return o
    def dma8(lds,su):
        return [(su+[f's_add_u32 s{sK}, s{sK}, s{sMw}', f's_add_u32 m0, s{sMw}, {lds}'],ldws(sK,0))]+[([],ldws(sK,c)) for c in range(1,4)]
    def ldW(i,off): return f'buffer_load_dwordx4 v{vgo[i]}, {sr(sWo,4)}, s{sK} offen offset:{off}{opt.get("wa","")} lds'
    def outW(s):
        b=OSL[s%5]
        return [([f's_add_u32 m0, s{sM4}, {b+16384}', f's_xor_b32 s{sK}, s{sWb}, {((s>>3)<<16)+(s&7)*128*2048}'],ldW(0,0)),([],ldW(1,1024)),([f's_add_u32 s{sK}, s{sK}, {8*2048-2048}'],ldW(0,2048)),([],ldW(1,3072))]
    def outO(s):
        b=OSL[s%5]
        return [([f's_add_u32 m0, s{sM4}, {b}', f's_xor_b32 s{sK}, s{sSp}, {s*4096}', f's_add_u32 s{sK}, s{sK}, s{sOb}'],ldws(sK,0))]+[([],ldws(sK,c)) for c in range(1,4)]
    def outHalf(s):
        b=OSL[s%5]
        return [([f's_add_u32 m0, s{sPm}, {b+16384}', f's_xor_b32 s{sK}, s{sWb}, {(s&7)*128*2048}', f's_add_u32 s{sK}, s{sK}, s{sPw}'],ldW(0,0)),([],ldW(1,1024)),
                ([f's_add_u32 m0, s{sPm}, {b}', f's_xor_b32 s{sK}, s{sSp}, {s*4096}', f's_add_u32 s{sK}, s{sK}, s{sPo}'],ldws(sK,0)),([],ldws(sK,1))]
    def fl(items):
        o=[]
        for su,v in items: o+=su+[v]
        return o
    def QK(sb,kb,q,c):
        return [f'v_mfma_f32_32x32x16_bf16 {vr(sb,16)}, {vr(kb,4)}, {vr(q,4)}, {c}', f'v_mfma_f32_32x32x16_bf16 {vr(sb,16)}, {vr(kb+4,4)}, {vr(q+4,4)}, {vr(sb,16)}']
    def PV(o,vb,sb,c): return f'v_smfmac_f32_32x32x32_bf16 {vr(o,16)}, {vr(vb+4*c,4)}, {vr(sb+8*c,8)}, v{vidx}'
    def SM(l,sb,c): return f'v_smfmac_f32_16x16x64_bf16 {vr(l,4)}, {vr(SEL,4)}, {vr(sb+8*c,8)}, v{vidx}'
    def maxtree(dst, sb, first):
        o=[]
        if first:
            o.append(f'v_max3_f32 v{dst}, v{sb}, v{sb+1}, v{sb+2}')
            for i in range(3,15,2): o.append(f'v_max3_f32 v{dst}, v{dst}, v{sb+i}, v{sb+i+1}')
            o.append(f'v_max_f32 v{dst}, v{dst}, v{sb+15}')
        else:
            for i in range(0,16,2): o.append(f'v_max3_f32 v{dst}, v{dst}, v{sb+i}, v{sb+i+1}')
        return o
    def finish_max(A,mx,tmp,nm,offs,fill=True):
        A(f'v_mov_b32 v{tmp}, v{mx}\ns_nop 1\nv_permlane32_swap_b32 v{tmp}, v{mx}\ns_nop 1\nv_max_f32 v{mx}, v{mx}, v{tmp}')
        A(f'v_sub_f32 v{nm}, {offs}, v{mx}')
        if fill:
            A(f'v_mov_b32 v{nm+1}, v{nm}')
            for i in range(2,16,2): A(f'v_mov_b64 {vr(nm+i,2)}, {vr(nm,2)}')
    def slot(sc, prev, nxt, cur, F):
        E=[f'v_exp_f32 v{sc+i}, v{sc+i}' for i in range(16)]
        g=lambda k: F.get(k,[])
        seq=E[0:2]
        if prev: seq+=[prev[0]]+g('S1')+E[2:3]+[prev[1]]+g('P1')
        else: seq+=g('S1')+E[2:3]+g('P1')
        seq+=E[3:6]
        if nxt: seq+=[nxt[0]]+g('Q0')+E[6:9]+[nxt[1]]+g('Q1')
        else: seq+=g('Q0')+E[6:9]+g('Q1')
        seq+=E[9:12]+[cur[0]]+g('S0')+E[12:13]+[cur[1]]+g('P0')+E[13:16]
        emit(seq)
    def finalize(o,l,q,dst,isA):
        FB=lab('FB'); RT=lab('RT')
        a(f'v_rcp_f32 v{t[0]}, v{l}\nv_cmp_gt_f32 s[4:5], s{sC2}, v{l}')
        a(f'v_maximum3_f32 v{t[1]}, abs(v{o}), abs(v{o+1}), 0')
        for i in range(2,16,2): a(f'v_maximum3_f32 v{t[1]}, abs(v{o+i}), abs(v{o+i+1}), v{t[1]}')
        a(f'v_cmp_gt_f32 s[6:7], s{sC1}, v{t[1]}\nv_cmp_lt_f32 vcc, s{sC0}, v{t[1]}')
        a(f's_and_b64 s[4:5], s[4:5], s[6:7]\ns_and_b64 s[4:5], s[4:5], vcc\ns_cmp_eq_u64 s[4:5], -1\ns_cbranch_scc0 {FB}\n{RT}:')
        for i in range(16): a(f'v_mul_f32 v{o+i}, v{t[0]}, v{o+i}')
        for i in range(8): a(f'v_cvt_pk_bf16_f32 v{dst+i}, v{o+2*i}, v{o+2*i+1}')
        for c in range(2): a(f'buffer_store_dwordx4 {vr(dst+4*c,4)}, v{vos}, {sr(sWS,4)}, s{sOA if isA else sO} offen offset:{c*512} sc1')
        T=tail; C=NM[0]; nm=t[1]
        T(f'{FB}:')
        if isA: T(f's_min_u32 s{sN}, s{sJQ}, 8\ns_add_u32 s{sN}, s{sN}, 1')
        else: T(f's_mov_b32 s{sN}, 64')
        T(f'v_mov_b32 v{t[4]}, 0xff800000\nv_mov_b32 v{nm}, 0')
        for ps in range(2):
            LP=lab('FL')
            if ps==1:
                finish_max(T,t[4],t[2],nm,'0',fill=False); zero(T,o,16); zero(T,l,4)
            T(f's_mov_b32 s{sCnt}, 0\n{LP}:')
            if isA:
                T(f's_sub_u32 s{sT}, s{sJQ}, s{sCnt}\ns_lshl_b32 s{sT}, s{sT}, 12\ns_add_u32 s{sT}, s{sT}, s{sKVA}')
                T(f's_mov_b32 s{sMa}, 0\ns_mov_b32 s{sMb}, {f2u(2.0**100)}\ns_cmp_eq_u32 s{sCnt}, 0\ns_cselect_b32 s{sMa}, 1.0, s{sMa}\ns_cselect_b32 s{sMb}, 0, s{sMb}')
                T(f's_cmp_eq_u32 s{sCnt}, 8\ns_cselect_b32 s{sMa}, -1.0, s{sMa}\ns_cselect_b32 s{sMb}, 0, s{sMb}')
            else:
                T(f's_lshl_b32 s{sT}, s{sCnt}, 12\ns_add_u32 s{sT}, s{sT}, s{sKVB}\ns_mov_b32 s{sMa}, 0\ns_mov_b32 s{sMb}, {f2u(2.0**100)}')
            for c in range(2): T(f'buffer_load_dwordx4 {vr(KF[0]+4*c,4)}, v{vkp}, {sr(sWS,4)}, s{sT} offen offset:{c*1024} sc1')
            if ps==1:
                for c in range(2): T(f'buffer_load_dwordx4 {vr(VF[0]+4*c,4)}, v{vl16}, {sr(sWS,4)}, s{sT} offen offset:{2048+c*1024} sc1')
            T(f'v_mov_b32 v{t[3]}, s{sMb}')
            for r in range(16): T(f'v_fma_f32 v{C+r}, v{XM+r}, s{sMa}, v{t[3]}\nv_min_f32 v{C+r}, v{C+r}, v{nm}')
            T('s_waitcnt vmcnt(0)\ns_nop 0')
            for x in QK(S[0],KF[0],q,vr(C,16)): T(x)
            T('s_nop 11')
            if ps==0:
                for x in maxtree(t[4],S[0],False): T(x)
            else:
                for i in range(16): T(f'v_exp_f32 v{S[0]+i}, v{S[0]+i}')
                T('s_nop 1')
                for c in range(2): T(SM(l,S[0],c)); T(PV(o,VF[0],S[0],c))
            T(f's_add_u32 s{sCnt}, s{sCnt}, 1\ns_cmp_lt_u32 s{sCnt}, s{sN}\ns_cbranch_scc1 {LP}')
        T(f's_nop 11\nv_rcp_f32 v{t[0]}, v{l}\ns_nop 0')
        T(f's_branch {RT}')
    def o_addr(br_o):
        if br_o: o=[f's_lshl_b32 s{sT}, s{sMT}, 2', f's_add_u32 s{sT}, s{sT}, s{sW3}', f's_lshl_b32 s{sT}, s{sT}, 1', f's_add_u32 s{sT}, s{sT}, s{sKH}', f's_lshl_b32 s{sT}, s{sT}, 5']
        else: o=[f's_lshl_b32 s{sT}, s{sJQ}, 5']
        return o+[f's_add_u32 s{sT}, s{sT}, s{sPi}', f's_lshl_b32 s{sO}, s{sT}, 11', f's_add_u32 s{sO}, s{sO}, {WS_OF+(br_o<<22)}', f's_lshl_b32 s{sF2}, s{sT}, 7', f's_add_u32 s{sF2}, s{sF2}, {WS_F2+(br_o<<18)}']
    W0=['s_waitcnt vmcnt(0)']
    wo_=opt.get('wo',[]); wy_=opt.get('wy',[])
    def standin_local():
        pcs,hreg=U['pieces'],U['hreg']
        reg={(p[1],2*p[2]+p[3]):hreg[i] for i,p in enumerate(pcs) if p[1]!='v'}
        D=[NM[1],NM[0],S[0],S[1]]
        a('s_nop 1')
        for mq in range(4):
            for mk in range(4): a(f'v_mfma_f32_16x16x32_bf16 {vr(D[mq]+4*mk,4)}, {vr(reg[("k",mk)],4)}, {vr(reg[("q",mq)],4)}, 0')
        for mq in range(4): emit(maxtree(t[mq],D[mq],True))
        a(f'v_lshlrev_b32 v{vdum}, 2, v{lane}\nv_permlane16_swap_b32 v{t[0]}, v{t[1]}\nv_permlane16_swap_b32 v{t[2]}, v{t[3]}\ns_nop 0')
        a(f'v_max_f32 v{t[0]}, v{t[0]}, v{t[1]}\nv_max_f32 v{t[2]}, v{t[2]}, v{t[3]}\nv_mov_b32 v{t[1]}, v{t[0]}\nv_mov_b32 v{t[3]}, v{t[2]}\ns_nop 0')
        a(f'v_permlane32_swap_b32 v{t[0]}, v{t[1]}\nv_permlane32_swap_b32 v{t[2]}, v{t[3]}\ns_nop 0')
        a(f'v_max_f32 v{t[0]}, v{t[0]}, v{t[1]}\nv_max_f32 v{t[2]}, v{t[2]}, v{t[3]}\nv_sub_f32 v{t[0]}, s{sOffs}, v{t[0]}\nv_sub_f32 v{t[2]}, s{sOffs}, v{t[2]}')
    otouch=[([f's_and_b32 s{sK2}, s{sMT}, 3', f's_lshl_b32 s{sK2}, s{sK2}, 1', f's_add_u32 s{sK2}, s{sK2}, s{sKH}', f's_lshl_b32 s{sK2}, s{sK2}, 12', f's_add_u32 s{sK2}, s{sK2}, s{sSp}', f's_add_u32 s{sK2}, s{sK2}, s{sOb}', f'v_lshlrev_b32 v{t[0]}, 2, v{vl16}'],
             f'buffer_load_dword v{vdum}, v{t[0]}, {sr(sWS,4)}, s{sK2} offen sc1')]
    def phaseB(X):
        ring=96*K if X else 0
        area=0
        def rdK(buf,T): return [f'ds_read_b128 {vr(KF[buf]+4*c,4)}, v{vka[0]} offset:{((T//4)&1)*32768+(T%4)*4096+c*1024}' for c in range(2)]
        def rdV(buf,T): return [f'ds_read_b128 {vr(VF[buf]+4*c,4)}, v{vva[0]} offset:{((T//4)&1)*32768+(T%4)*4096+2048+c*1024}' for c in range(2)]
        if not X: a(f's_lshl_b32 s{sT}, s{sKH}, 14\nv_add_u32 v{vka[0]}, s{sT}, v{vkp}\nv_add_u32 v{vva[0]}, s{sT}, v{vl16}')
        nmb=32*K if X else 144*K
        a(f's_lshr_b32 s{sT}, s{sPm}, 3\ns_add_u32 s{sT}, s{sT}, {nmb}\nv_lshl_add_u32 v{t[4]}, v{lane}, 2, s{sT}\nv_xor_b32 v{vpoll}, 0x100, v{t[4]}')
        zero(a,O[0],40)
        if X:
            if opt.get('xp0',0)==1: when(0,W0+[flag_post(sF1)])()
            a('s_waitcnt lgkmcnt(0)')
            a('s_barrier'); TR.now('T1')
        else:
            a(f's_add_u32 s{sT}, s{sPm}, {128*K}\nv_add_u32 v{vq[0]}, s{sT}, v{vl16}\nv_xor_b32 v{vq[1]}, 0x800, v{vq[0]}')
            young_block(W0)()
            a('s_barrier'); TR.now('YB0')
        for i in range(2):
            for c in range(2): a(f'ds_read_b128 {vr(Q[i]+4*c,4)}, v{vq[i]} offset:{c*1024}')
        emit(rdK(0,0)+rdV(0,0))
        if X:
            nms=[f'buffer_store_dword v{t[2*i]}, v{vdum}, {sr(sWS,4)}, s{sNMo} offen offset:{i*256} sc1' for i in range(2)]
            xo=opt.get('xo',2)
            seq=[heldq+[when(1,urg),standin_local]+nms, [standin_local]+nms+heldq+[when(1,urg)], heldq+[standin_local]+nms+[when(1,urg)]][xo]
            young_block(['s_setprio 3']+W0+seq+['s_setprio 0'])()
        a(f'ds_read_b32 v{NM[0]}, v{t[4]}\nds_read_b32 v{NM[1]}, v{vpoll}')
        if X and opt.get('xp0',0)==0: when(0,W0+[flag_post(sF1)])()
        xlate=X and opt.get('xp0',0)==2
        a('s_waitcnt lgkmcnt(0)')
        if not X: a(flag_load(sFB,sM1))
        def fillnm(nm): return [f'v_mov_b32 v{nm+1}, v{nm}']+[f'v_mov_b64 {vr(nm+i,2)}, {vr(nm,2)}' for i in range(2,16,2)]
        f1=fillnm(NM[1])
        emit(fillnm(NM[0])+f1[:2]+QK(S[0],KF[0],Q[0],vr(NM[0],16))+f1[2:])
        a('s_nop 5')
        TR.now('standin')
        NT=32
        wot=lambda i: [([f's_mov_b32 s{sK2}, {i*16*2048}'],f'buffer_load_dword v{vdum}, v{vwt}, {sr(sWo,4)}, s{sK2} offen')]
        st=lambda s: dma8(ring+(s&1)*32768,chunkB(s,X))
        sched={n:[] for n in range(64)}
        def put(n,items,tag,pos='P0'):
            for i,(su,v) in enumerate(items): sched[n+i].append((pos,su,v,tag))
        pre={n:[] for n in range(64)}
        d0=opt.get('xd0',3) if X else opt.get('yd0',1)
        for s in range(1,7): put(8*s-2,st(s+1),f'st{s+1}')
        if X:
            if xlate: put(0,[([],when(0,W0+[flag_post(sF1)]))],'none')
            put(opt.get('xf1',2),[([],old_block([flag_load(sFB,sM1)]))],'none')
            put(d0,[([],old_block(W0+[flag_check(sFB,sM1)]+dma4(ring+32768,chunkB(1,X))))],'st1')
            put(opt.get('xyf',1),[([],young_block(W0+[flag_post(sFQ),when(1,[flag_post(sF1)])]))],'none','P1')
        else:
            s1=st(1); put(d0,s1[0:1],'st1'); put(d0+1,s1[1:2],'st1','P1'); put(d0+1,s1[2:3],'st1'); put(d0+2,s1[3:4],'st1','P1')
            pre[d0].append((None,W0+[flag_post(sF2A),flag_check(sFB,sM1)]))
        put(opt.get('f2',5) if X else opt.get('yf2',4),[([],flag_load(sFB,sM2))],'f2'); pre[6].append(('f2',([post_if(cW(2),sF1)] if X else [])+[flag_check(sFB,sM2)]))
        put(11,[([],flag_load(sFB,sM3))],'f3'); pre[14].append(('f3',([post_if(cW(3),sF1)] if X else [])+[flag_check(sFB,sM3)]))
        put(20,[([],flag_load(sFB,sOth))],'fo'); pre[22].append(('fo',[flag_check(sFB,sOth)]))
        if opt.get('wot',1): put(26,wot(0),'wt'); put(34,wot(1),'wt')
        if wo_:
            cw=lambda s_: ((s_>>3)<<16)+(s_&7)*128*2048
            it=[]
            for q in range(3):
                su=[f's_mul_i32 s{sT2}, s{sKH}, {(cw((wy_ or wo_)[q])-cw(wo_[q]))&0xffffffff}', f's_add_u32 s{sT2}, s{sT2}, {cw(wo_[q])}', f's_xor_b32 s{sT2}, s{sT2}, s{sWb}']
                for j in range(4):
                    v=f'buffer_load_dwordx4 {vr(H+16*q+4*j,4)}, v{vgo[j&1]}, {sr(sWo,4)}, s{sT2} offen offset:{j*1024}'
                    it.append(([],'\n'.join((su if j==0 else [f's_add_u32 s{sT2}, s{sT2}, {8*2048-2048}'] if j==2 else [])+[v])))
            put(opt.get('wr0',40),it,'wr','P1')
        if opt.get('ct2',1):
            Lc=lab('PC')
            put(35,[([f's_getpc_b64 s[4:5]\n{Lc}:', f's_add_u32 s4, s4, OUTC-{Lc}\ns_addc_u32 s5, s5, 0', f's_andn2_b32 s{sK2}, s2, 7', f's_add_u32 s{sK2}, s{sK2}, s{sWave}', f's_lshl_b32 s{sK2}, s{sK2}, 6', f's_min_u32 s{sK2}, s{sK2}, CODE_END-OUTC-64', f'v_mov_b32 v{t[0]}, s{sK2}'],f'global_load_dword v{vdum}, v{t[0]}, s[4:5]')],'ct')
        yh=opt.get('yh',[10,16,18]); kk=12//len(yh)
        if X:
            put(44,[([],flag_load(sFA,sMskA))],'fa'); pre[46].append(('fa',[flag_check(sFA,sMskA)]))
            put(50,dma8(area,chunkA(0)),'a'); put(54,dma8(area+32768,chunkA(1)),'a')
            put(58,[([],f'buffer_load_dwordx4 {vr(QA+4*c,4)}, v{vl16}, {sr(sWS,4)}, s{sQAo} offen offset:{c*1024} sc1') for c in range(2)],'a')
        else:
            pre[23].append(('fo',[post_if(cY,sF1)]))
            put(36,[([],flag_load(sFO,sME))],'fe'); pre[38].append(('fe',[flag_check(sFO,sME)]))
            put(42,outHalf(0),'o'); put(50,outHalf(1),'o'); put(54,outHalf(2),'o')
            if opt.get('p4',1): put(58,outHalf(3)[:3],'o')
            if opt.get('otouch',1): put(41,[([],'\n'.join(otouch[0][0]+[otouch[0][1]]))],'o','P1')
        ops=[]
        def waitfor(tag):
            last=max(i for i,x in enumerate(ops) if x==tag)
            return sum(x!='none' for x in ops[last+1:])
        for T in range(NT):
            kb=T&1
            for qb in range(2):
                n=2*T+qb
                F={k:[] for k in ('S1','P1','Q0','Q1','S0','P0')}
                if qb==0:
                    prev=(SM(L[1],S[1],1),PV(O[1],VF[kb^1],S[1],1)) if T>0 else None
                    nxt=QK(S[1],KF[kb],Q[1],vr(NM[1],16))
                    R=rdK(kb^1,T+1) if T+1<NT else []
                else:
                    prev=(SM(L[0],S[0],1),PV(O[0],VF[kb],S[0],1))
                    nxt=QK(S[0],KF[kb^1],Q[0],vr(NM[0],16)) if T+1<NT else None
                    R=rdV(kb^1,T+1) if T+1<NT else []
                if n%8==6 and n<62:
                    s=n//8+1
                    F['S1']+=[f's_waitcnt vmcnt({waitfor(f"st{s}")}) lgkmcnt(0)']
                    F['S1']+=['s_barrier',lambda s=s: TR.mark(f'B{s}')]
                elif (not X) and n==62:
                    F['S1']+=['s_waitcnt lgkmcnt(0)','s_barrier']
                else:
                    F['S1']+=['s_waitcnt lgkmcnt(0)',TR.commit]
                F['P1']+=R[0:1]; F['Q0']+=R[1:2]
                for pos,su,v,tg in sched[n]:
                    if pos=='P1': F['P1']+=[v]; ops.append(tg)
                for tg,code in pre[n]:
                    if tg: F['Q0']+=[f's_waitcnt vmcnt({waitfor(tg)})']
                    F['Q0']+=code
                for pos,su,v,tg in sched[n]:
                    if pos=='P0':
                        assert not F['P0']
                        h=(len(su)+1)//2
                        F['Q1']+=su[:h]; F['S0']+=su[h:]; F['P0']+=[v]; ops.append(tg)
                if X and n==opt.get('xc',3): F['P1']+=masked(cW(2),urg) if opt.get('msk') else [when(2,urg)]
                if X and n==opt.get('xdd',10): F['P1']+=masked(cW(3),urg) if opt.get('msk') else [when(3,urg)]
                if (not X) and n in yh:
                    assert n<20
                    hs=held[yh.index(n)*kk:(yh.index(n)+1)*kk]
                    F['P1']+=masked(cY,hs) if opt.get('msk') else [young_block(hs)]
                if opt.get('prio',1) and n%2==0:
                    F['Q1']+=[f's_setprio {3-((n+2)%8)//2}' if n<54 else f's_setprio {max(0,3-(n-54)//3)}']
                for k in ('Q1','S0','P0'):
                    if not F[k]: F[k]=['s_nop 0']
                a(f'{"X" if X else "Y"}S{n}:')
                slot(S[qb],prev,nxt,(SM(L[qb],S[qb],0),PV(O[qb],VF[kb],S[qb],0)),F)
        a(f'{"X" if X else "Y"}S64:\ns_add_u32 s{sT}, s{sMw}, {ring if X else 32*K}\ns_setprio 0')
        a(SM(L[1],S[1],1)); a(PV(O[1],VF[1],S[1],1))
        TR.now('Bmain')
        a(f'v_add_u32 v{t[2]}, s{sT}, v{vl16}\nv_xor_b32 v{t[3]}, 0x4000, v{t[2]}')
        a(f's_add_u32 s{sT}, s{sPm}, {64*K if X else 1024}\ns_nop 0\nv_lshl_add_u32 v{t[4]}, v{lane}, 2, s{sT}\nv_xor_b32 v{t[0]}, 0x800, v{t[4]}')
        if X:
            a(f'v_add_u32 v{vka[0]}, s{sMw}, v{vkp}\nv_add_u32 v{vva[0]}, s{sMw}, v{vl16}')
            for r in range(16): a(f'v_min_f32 v{NM[1]+r}, 0, v{XM+r}')
        else: a('s_nop 5')
        a(f'ds_write_b32 v{t[4]}, v{L[1]}')
        for i in range(4): a(f'ds_write_b128 v{t[2]}, {vr(O[1]+4*i,4)} offset:{i*1024}')
        if opt.get('visit',1): old_block(visit('OUTC')+visit('OUTL0' if X else 'OUTLY'))()
        a('s_waitcnt vmcnt(0) lgkmcnt(0)\ns_barrier')
        a(f'ds_read_b32 v{L[1]}, v{t[0]}')
        for i in range(4): a(f'ds_read_b128 {vr(O[1]+4*i,4)}, v{t[3]} offset:{i*1024}')
        if not X: young_block(['s_setprio 1'])()
        a('s_waitcnt lgkmcnt(0)\ns_barrier')
        a(f'v_add_f32 v{L[0]}, v{L[0]}, v{L[1]}')
        for i in range(16): a(f'v_add_f32 v{O[0]+i}, v{O[0]+i}, v{O[1]+i}')
        finalize(O[0],L[0],Q[0],Q[1],False)
        TR.now('Bend')
    def phaseA(X):
        area=0 if X else 64*K
        def rdKA(buf,tt): return [f'ds_read_b128 {vr(KF[buf]+4*c,4)}, v{vka[0]} offset:{(8-tt)*4096+c*1024}' for c in range(2)]
        def rdVA(buf,tt): return [f'ds_read_b128 {vr(VF[buf]+4*c,4)}, v{vva[0]} offset:{(8-tt)*4096+2048+c*1024}' for c in range(2)]
        CD=NM[1]; NA=NM[0]; OA=O[1]; LA=L[0]
        if not X:
            zero(a,OA,20)
            Ls=lab('YN'); Ls2=lab('YN')
            if opt.get('ypost',1)==0: old_block(W0+[flag_post(sF1)])()
            a('s_waitcnt lgkmcnt(0)\ns_barrier'); TR.now('T1')
            for c in range(2): a(f'ds_read_b128 {vr(QA+4*c,4)}, v{vq[0]} offset:{c*1024}')
        emit(rdKA(0,0)+rdVA(0,0))
        if X:
            if opt.get('aprio',1): a('s_setprio 3')
            emit(rdKA(1,1)); zero(a,OA,20)
        elif opt.get('ypost',1)==1: old_block(W0+[flag_post(sF1)])()
        a('s_waitcnt lgkmcnt(0)')
        emit(QK(S[0],KF[0],QA,vr(CD,16)))
        two=0
        def second(A,qb):
            for j in range(3,qb-1,-1):
                A(f's_mov_b32 m0, {area+j*4096}\ns_add_u32 s{sK2}, s{sK}, {j*4096}')
                for c in range(4): A(ldws(sK2,c))
        def sync(p):
            def f():
                Lk=lab('YK')
                a(f's_cmp_lg_u32 s{sQB}, {p-1}\ns_cbranch_scc1 {Lk}')
                if p<=4: a('s_waitcnt vmcnt(0)')
                a('s_barrier')
                if p>4: a('s_setprio 1')
                n_=TR.n; TR.now('YAsync'); TR.n=n_
                if two: a(f's_cmp_eq_u32 s{sMT}, 0\ns_cbranch_scc1 {Lk}'); second(a,p-1)
                a(f'{Lk}:')
            return f
        if X:
            emit(QK(S[1],KF[1],QA,'0'))
            a('s_nop 9')
            emit(maxtree(t[4],S[0],True))
        else:
            a('s_nop 11')
            emit(maxtree(t[4],S[0],True))
            old_block([f's_cmp_eq_u32 s{sMT}, 0',f's_cbranch_scc1 {Ls2}',flag_load(sFA,sMskA)]+W0+[flag_check(sFA,sMskA,hot),lambda: TR.now('yok')]+(chunkA(0)+[f's_add_u32 s{sK2}, s{sK}, s{sM4}', f's_add_u32 m0, s{sM4}, {area+16384}', f's_add_u32 s{sK2}, s{sK2}, 16384']+[ldws(sK2,c) for c in range(4)] if two else dma4(area,chunkA(0)))+[f'{Ls2}:'])()
            sync(1)()
            emit(rdKA(1,1))
            a('s_waitcnt lgkmcnt(0)')
            emit(QK(S[1],KF[1],QA,'0'))
            a('s_nop 9')
        Lm=lab('AM')
        a(f's_cmp_eq_u32 s{sJQ}, 0\ns_cbranch_scc1 {Lm}')
        emit(maxtree(t[4],S[1],False))
        a(f'{Lm}:')
        finish_max(a,t[4],t[2],NA,f's{sOffs}')
        for r in range(16): a(f'v_add_f32 v{S[0]+r}, v{S[0]+r}, v{NA}')
        def poison(T_):
            T_(f'v_mov_b32 v{NA}, {f2u(-2.0**120)}\nv_mov_b32 v{NA+1}, v{NA}')
            for r in range(2,16,2): T_(f'v_mov_b64 {vr(NA+r,2)}, {vr(NA,2)}')
        if not X:
            Lp=lab('AP'); Lr=lab('AR')
            a(f's_cmp_eq_u32 s{sJQ}, 0\ns_cbranch_scc1 {Lp}\n{Lr}:'); tail(f'{Lp}:'); poison(tail); tail(f's_branch {Lr}')
        yblk=young_block([f's_waitcnt vmcnt({2 if opt.get("ychk",9)==10 else 0})',flag_check64(sFB,sM0,hot)]+dma4(0,chunkB(0,False))+[f's_add_u32 m0, s{sM4}, {128*K}',f's_xor_b32 s{sK}, s{sQBo}, 0x800']+[ldws(sK,c) for c in range(4)]+[f's_lshr_b32 s{sK}, s{sM4}, 3',f's_add_u32 m0, s{sK}, {144*K}','s_mov_b32 exec_hi, 0',ldws(sNMo,0),'s_mov_b32 exec_hi, -1'])
        if X: TR.now('Aprep')
        for tt in range(9):
            b=tt&1
            F={k:[] for k in ('S1','P1','Q0','Q1','S0','P0')}
            prev=(SM(LA,S[b^1],1),PV(OA,VF[b^1],S[b^1],1)) if tt>0 else None
            nxt=None
            F['P1']=['s_waitcnt lgkmcnt(0)']
            if tt<8:
                if X:
                    Lp=lab('AP'); Lr=lab('AR')
                    F['S1']=[f's_cmp_eq_u32 s{sJQ}, {tt}', f's_cbranch_scc1 {Lp}', f'{Lr}:']
                    tail(f'{Lp}:\ns_nop 7'); poison(tail); tail(f's_branch {Lr}')
                if tt==7: F['P1']+=[f'v_min_f32 v{CD+r}, v{NA}, -v{XM+r}' for r in range(16)]
                nxt=QK(S[b^1],KF[b^1],QA,vr(CD if tt==7 else NA,16))
                RV=rdVA(b^1,tt+1); RK=rdKA(b,tt+2) if tt+2<=8 else ['s_nop 0','s_nop 0']
                F['Q0']=RV[0:1]; F['Q1']=RV[1:2]; F['S0']=RK[0:1]; F['P0']=RK[1:2]
            if (not X) and tt<=6:
                Lp=lab('YP'); Lr=lab('YR'); p=tt+2
                F['S1']=[f's_cmp_eq_u32 s{sQB}, {p-1}']
                F['S0']=[f's_cbranch_scc1 {Lp}', f'{Lr}:']+F['S0']
                Lz=lab('YZ')
                hot(f'{Lp}:')
                if p<=4: hot('s_waitcnt vmcnt(0)')
                hot('s_barrier')
                if p>4: hot('s_setprio 1')
                if TR.on: hot(f's_memtime s[98:99]\ns_waitcnt lgkmcnt(0)\nv_writelane_b32 v{vtr}, s98, {TR.n}')
                hot(f's_cmp_lg_u32 s{sMT}, 0\ns_cbranch_scc1 {Lr}\ns_branch {Lz}')
                tail(f'{Lz}:'); poison(tail); tail(f's_branch {Lr}')
                if two and tt==3: F['Q1']+=W0
            if X:
                xp,xf,xc_=opt.get('xa',[0,4,6])
                if tt<3: F['P1']+=fl(outHalf(tt)[0:1]); F['P0']+=fl(outHalf(tt)[1:2])
                if opt.get('xw4',1):
                    if tt==3: F['P1']+=['s_barrier']; F['P0']+=fl(outHalf(4)[0:1])
                    if tt==4: F['P1']+=fl(outHalf(4)[1:2])
                if tt==xp: F['P0']+=[f's_waitcnt vmcnt({2*min(3,tt+1)})',flag_post(sF2)]
                if tt==xf: F['P0']+=[flag_load(sFO,sME)]
                if tt==xc_: F['P1']+=W0+[flag_check(sFO,sME)]
                if xc_<=tt<xc_+3: F['P1']+=fl(outHalf(tt-xc_)[2:3]); F['P0']+=fl(outHalf(tt-xc_)[3:4])
                if tt==xc_+opt.get('xot',9): F['S0' if tt<xc_+2 else 'S0']+=fl(otouch)
                if opt.get('aprio',1) and tt in (0,2,4,6): F['Q1']+=[f's_setprio {max(0,2-tt//2) if opt.get("aprio",1)==1 else 3-tt//2}']
            if not X:
                if tt==opt.get('yfl',7): F['P0']+=[young_block([flag_load64(sFB,sM0)])]
                if tt==opt.get('ychk',9): F['P0']+=[yblk]
            slot(S[b],prev,nxt,(SM(LA,S[b],0),PV(OA,VF[b],S[b],0)),F)
        a('s_nop 1')
        a(SM(LA,S[0],1)); a(PV(OA,VF[0],S[0],1))
        if (not X) and opt.get('ychk',9)==9: yblk()
        a('s_nop 11')
        finalize(OA,LA,QA,S[1],True)
        if (not X) and opt.get('ychk',9)==10: yblk()
        if not X: a('s_setprio 0'); TR.n+=1
        TR.now('Aend')
    n0=TR.n
    TR.path='X'
    entry('XOLD',12,opt.get('dx',0)); old_epi(True); standin_local()
    a(f's_lshr_b32 s{sT}, s{sM4}, 3\nv_add_u32 v{vdum}, s{sT}, v{vdum}\nds_write_b32 v{vdum}, v{t[0]} offset:{32*K}\nds_write_b32 v{vdum}, v{t[2]} offset:{32*K+256}')
    a('XPATH:')
    phaseB(True); phaseA(True)
    a(f's_mov_b32 s{sF2}, s{sF2A}')
    def tag(s,items): return [(s,su,v) for su,v in items]
    def stream(s0,s1,items,per,issued,hooks={},hooks0={}):
        for s in range(s0,s1+1):
            if s>s0:
                need=max([i for i,x in enumerate(issued) if x<=s],default=-1)
                assert not any(x[0]<=s for x in items)
                if need>=0: a(f's_waitcnt vmcnt({min(63,len(issued)-1-need)})')
                a('s_barrier')
            if s in hooks0: hooks0[s](issued)
            k=0; p=per[s] if isinstance(per,dict) else per
            while items and items[0][0]<=s+4 and (k<p or items[0][0]<=s+1):
                st_,su,v=items.pop(0); emit(su+[v]); issued.append(st_); k+=1
            if s in hooks: hooks[s](issued)
        assert not items
    def full(s0,s1):
        o=[]
        for s in range(s0,s1): o+=tag(s,outW(s)+outO(s))
        return o
    inreg=set(wo_)|set(wy_)
    outW_=outW
    outW=lambda s_: [] if s_ in inreg else outW_(s_)
    early=full(3,7)+tag(7,outW(7))+[(7,[],flag_load(sFO,sML))]+tag(7,outO(7))
    def wput(q,s_,vaddr): return [f'v_add_u32 v{vaddr}, {OSL[s_%5]+16384}, v{vdum}']+[f'ds_write_b128 v{vaddr}, {vr(H+16*q+4*j,4)} offset:{j*1024}' for j in range(4)]
    ofl=opt.get('ofl',1)
    def postP(issued):
        a(flag_post(sK2)); issued.append(99)
    a('s_waitcnt vmcnt(6)\ns_barrier')
    if_young('OUTC')
    a(f's_xor_b32 s{sK2}, s{sF2}, 16384\ns_branch OUTL0\nXEND:')
    nX=TR.n; TR.n=n0
    TR.path='Y'
    entry('YOLD',12,opt.get('dy',0)); old_epi(False); emit(visit('YHOT') if opt.get('vhot',1) else []); a('YPATH:')
    phaseA(False); phaseB(False)
    TR.n=max(TR.n,nX); TR.path='XY'
    def loader():
        def postY(issued):
            a(f's_waitcnt vmcnt({len(issued)-6})'); a(flag_post(sF2)); issued.append(99); postP(issued)
        def estream(items,key):
            ne=len(items); ep=opt.get(key,[6,7,8,8,8,0] if ne==37 else [(ne+4-i)//5 for i in range(5)]+[0])
            stream(0,5,list(items),dict(enumerate(ep)),[1,1,2,2,98,98],{},{ofl:postY})
        entry('OUTL0',12); estream(early[:8]+early[12:] if opt.get('xw4',1) else early,'eper'); a('s_branch OUTL')
        entry('OUTLY'); a(f's_xor_b32 s{sK2}, s{sF2}, 4096')
        if opt.get('p4',1):
            o3=outO(3); estream([(3,o3[0][0],o3[1][1]),(3,[],o3[3][1])]+early[8:],'epery')
        else: estream(early,'eper')
        a('OUTL:')
        Lv=lab('LV'); Lw=lab('LW')
        emit(['s_waitcnt vmcnt(4)',flag_test(sML),f's_cbranch_scc0 {Lv}'])
        it=full(8,16); stream(5,15,it,opt.get('oper',7),[7]*4)
        a(f's_branch LEND\n{Lv}:')
        n9=len(outW(9))
        emit(fl(outW(8))+[flag_load(sFO,sML)]+fl(outW(9))+['s_barrier',f's_waitcnt vmcnt({n9})',flag_test(sML),f's_cbranch_scc0 {Lw}'])
        it=tag(8,outO(8))+tag(9,outO(9))+full(10,16); stream(6,15,it,(len(it)+7)//8,[9]*n9)
        a(f's_branch LEND\n{Lw}:')
        emit(fl(outW(10))+[flag_load(sFO,sML),'s_barrier']+W0+[flag_check(sFO,sML)])
        it=tag(8,outO(8))+tag(9,outO(9))+tag(10,outO(10))+full(11,16); stream(7,15,it,(len(it)+6)//7,[])
        a('LEND:')
        if stamps: TR.dump(0,sWS,vdum)
        a('s_endpgm')

    if_young('OUTC')
    a('s_branch OUTLY\nYEND:')
    entry('OUTC',12)
    voa=[8,10,vva[1]]; vwa=[[12,13,14,15],[16,17,18,19],[20,21,22,23]]; u=[24,vka[1],25]; vo=26
    V=Alloc(28)
    acc=[[V('',4,4) for f in range(4)] for m in range(4)]
    V.n=96
    OFr=[[V('',4,4) for m in range(4)] for b in range(2)]
    WFr=[[V('',4,4) for f in range(4)] for b in range(2)]
    bases=[64*K,128*K,0]; sel=[(0,0),(0,32768),(1,0),(2,0),(2,32768)]
    a(f'v_add_u32 v{voa[0]}, {bases[0]}, v{voa[2]}')
    for f in range(4): a(f'v_xor_b32 v{vwa[0][f]}, {bases[0]+16384+32*f}, v{u[1]}')
    def reads(s,j,b):
        bi,o0=sel[s%5]
        def wr(f):
            off=o0+j*8192
            return [f'ds_read_b64_tr_b16 {vr(WFr[b][f],2)}, v{vwa[bi][f]} offset:{off}', f'ds_read_b64_tr_b16 {vr(WFr[b][f]+2,2)}, v{vwa[bi][f]} offset:{off+2048}']
        def xr(m): return [f'ds_read_b128 {vr(OFr[b][m],4)}, v{voa[bi]} offset:{o0+(m>>1)*4096+j*2048+(m&1)*1024}']
        return xr(0)+wr(0)+wr(1)+wr(2)+wr(3)+xr(1)+xr(2)+xr(3)
    def mfmas(b,first,last):
        M=[]
        if opt.get('zord',1) and not last: od=[(0,0),(1,0),(1,1),(0,1),(0,2),(1,2),(1,3),(0,3),(2,3),(3,3),(3,2),(2,2),(2,1),(3,1),(3,0),(2,0)]
        else: od=[(m,f) for m in range(4) for f in (range(4) if m%2==0 else range(3,-1,-1))]
        for m,f in od:
            d=vr(acc[m][f],4)
            M.append(f'v_mfma_f32_16x16x32_bf16 {d}, {vr(WFr[b][f],4)}, {vr(OFr[b][m],4)}, {"0" if first else d}')
        return M
    TR.mark('OB0')
    emit(reads(0,0,0))
    a(f'v_add_u32 v{voa[1]}, {bases[1]}, v{voa[2]}\nv_add_u32 v{vdum}, s{sM4}, v{vl16}')
    for i in (1,2):
        for f in range(4): a(f'v_xor_b32 v{vwa[i][f]}, {bases[i]+16384+32*f}, v{u[1]}')
    vtw=u[0]; vtr_=u[1]
    epi=[f'v_and_b32 v{u[2]}, 15, v{lane}', f'v_bfe_u32 v{vtw}, v{lane}, 4, 1', f'v_lshrrev_b32 v{vo}, 5, v{lane}', f'v_lshl_add_u32 v{vtw}, v{vtw}, 1, v{vo}',
         f'v_and_b32 v{vo}, 7, v{lane}', f'v_xor_b32 v{vtw}, v{vtw}, v{vo}', f'v_lshlrev_b32 v{vtw}, 4, v{vtw}', f'v_lshl_add_u32 v{vtw}, v{u[2]}, 7, v{vtw}', f'v_add_u32 v{vtw}, s{sM8}, v{vtw}',
         f'v_lshrrev_b32 v{u[2]}, 3, v{lane}', f'v_xor_b32 v{vtr_}, v{vo}, v{u[2]}', f'v_lshlrev_b32 v{vtr_}, 4, v{vtr_}', f'v_lshl_add_u32 v{vtr_}, v{u[2]}, 7, v{vtr_}', f'v_add_u32 v{vtr_}, s{sM8}, v{vtr_}',
         f'v_lshlrev_b32 v{vo}, 4, v{vo}', f'v_lshl_add_u32 v{vo}, v{u[2]}, 12, v{vo}', f'v_xor_b32 v{u[2]}, 64, v{vtw}']
    def packm(m):
        o=[]
        for p in range(2):
            c0=acc[m][2*p]; o+=[f'v_cvt_pk_bf16_f32 v{c0+i}, v{c0+2*i}, v{c0+2*i+1}' for i in range(4)]
        for p in range(2):
            c0=acc[m][2*p]; o+=(['s_nop 0'] if p else [])+[f'v_permlane16_swap_b32 v{c0}, v{c0+2}', f'v_permlane16_swap_b32 v{c0+1}, v{c0+3}']
        for p in range(2): o+=[f'ds_write_b128 v{(vtw,u[2])[p]}, {vr(acc[m][2*p],4)} offset:{m*2048}']
        return o
    oloop=opt.get('oloop',1) and not TR.on
    def ostep(s,j):
        a('s_waitcnt lgkmcnt(0)')
        TR.commit()
        if j==1 and s<15:
            if s+1==ofl: a('s_waitcnt vmcnt(0)')
            elif s<2: a(f's_waitcnt vmcnt({4-2*s})')
            a('s_barrier')
            if s%2==1: TR.mark(f'OB{s+1}')
        R=reads(s,1,1) if j==0 else (reads(s+1,0,0) if s<15 else [])
        M=mfmas(j,s==0 and j==0,s==15 and j==1)
        fill=[[r] for r in R]+[[] for _ in range(16-len(R))]
        if s==0:
            for q in range(7,16):
                if epi: fill[q].append(epi.pop(0))
        if oloop and (s,j)==(5,0): fill[13]+=[f's_sub_u32 s{sT2}, s{sT2}, 1']; fill[15]+=['s_cbranch_scc1 OFIN']
        if oloop and (s,j)==(5,1): fill[15]+=['s_branch OLOOP']
        if s==15 and j==1:
            pm=packm(0)
            for q in range(11,16): fill[q]+=pm[(q-11)*3:(q-10)*3]
        emit(interleave(M,fill))
    assert not wy_
    if oloop:
        a(f's_mov_b32 s{sT2}, 2')
        ostep(0,0); ostep(0,1); a('OLOOP:')
        for s in range(1,6): ostep(s,0); ostep(s,1)
        a('OFIN:'); ostep(15,1)
    else:
        for s in range(16): ostep(s,0); ostep(s,1)
    assert not epi
    TR.now('omain')
    ost=opt.get('k3st',' sc1')
    D=OFr[0][0]
    def rd(m): return [f'ds_read_b128 {vr(D+8*m+4*i,4)}, v{vtr_} offset:{m*2048+i*1024}' for i in range(2)]
    def stq(m):
        o=[]
        for i in range(2): o+=[f's_add_u32 s{sT}, s{sOc}, {(m*16+i*8)*4096}', f'buffer_store_dwordx4 {vr(D+8*m+4*i,4)}, v{vo}, {sr(sOut,4)}, s{sT} offen{ost}']
        return o
    emit(rd(0)+packm(1)+rd(1)+['s_waitcnt lgkmcnt(4)']+stq(0)+packm(2)+rd(2)+['s_waitcnt lgkmcnt(4)']+stq(1)+packm(3)+rd(3)+['s_waitcnt lgkmcnt(4)']+stq(2)+['s_waitcnt lgkmcnt(0)']+stq(3))
    if opt.get('amp'):
        role,k0,k1,mult=opt['amp']
        a('s_waitcnt vmcnt(0)'); TR.now('end')
        f=lambda k: [i for i in TR.map[role] if TR.map[role][i]==k][-1]
        a(f's_cmp_lg_u32 s{sBR}, {1 if role=="X" else 0}\ns_cbranch_scc1 END')
        a(f's_nop 1\nv_readlane_b32 s4, v{vtr}, {f(k0)}\nv_readlane_b32 s5, v{vtr}, {f(k1)}\ns_nop 3\ns_sub_u32 s4, s5, s4\ns_min_u32 s4, s4, 200000\ns_mul_i32 s4, s4, {mult}\ns_lshr_b32 s4, s4, 1')
        a('s_memrealtime s[6:7]\ns_waitcnt lgkmcnt(0)\nAMPL:\ns_memrealtime s[46:47]\ns_waitcnt lgkmcnt(0)\ns_sub_u32 s46, s46, s6\ns_cmp_lt_u32 s46, s4\ns_cbranch_scc1 AMPL')
    if stamps:
        a('s_waitcnt vmcnt(0)'); TR.now('end'); TR.dump(0,sWS,vdum)
        a('s_memrealtime s[4:5]\ns_memtime s[6:7]\ns_waitcnt lgkmcnt(0)\ns_sub_u32 s6, s6, s92')
        a(f'v_mov_b32 v28, s90\nv_mov_b32 v29, s4\nv_mov_b32 v30, s6\nv_mov_b32 v31, 0\ns_lshl_b32 s4, s2, 5\ns_add_u32 s4, s4, {WS_STAMP}\nv_mov_b32 v32, s4')
        a(f'global_store_dwordx4 v32, v[28:31], s[{sWS}:{sWS+1}]')
    a('s_endpgm')
    loader()
```

```python
from asm import *
WS_QF=0; WS_KV=8<<20; WS_OF=24<<20; WS_STAMP=128<<20; WS_TRACE=132<<20
QSCALE=0x3e82947d
import struct, math
QSCALE=struct.unpack('<I',struct.pack('<f',(32**-0.5)*math.log2(math.e)))[0]

def stamp_begin(a):
    a('s_memrealtime s[84:85]\ns_memtime s[86:87]')
def stamp_mid(a, idx):
    a(f's_memtime s[88:89]\ns_waitcnt lgkmcnt(0)\ns_sub_u32 s{92+idx}, s88, s86')
def stamp_end(a, kidx, ws_lo, vtmp):
    a('s_waitcnt vmcnt(0)\ns_memrealtime s[88:89]\ns_memtime s[90:91]\ns_waitcnt lgkmcnt(0)')
    a('s_sub_u32 s90, s90, s86')
    for i,s in enumerate((84,88,90,92,93,94,95,96)): a(f'v_mov_b32 v{vtmp+i}, s{s}')
    a(f's_lshl_b32 s88, s2, 5\ns_add_u32 s88, s88, {WS_STAMP+kidx*65536}\nv_mov_b32 v{vtmp+8}, s88')
    a(f'global_store_dwordx4 v{vtmp+8}, {vr(vtmp,4)}, s[{ws_lo}:{ws_lo+1}]')
    a(f'global_store_dwordx4 v{vtmp+8}, {vr(vtmp+4,4)}, s[{ws_lo}:{ws_lo+1}] offset:16')

class Trace:
    def __init__(self,a,on,vreg,stmp=98):
        self.a=a; self.on=on; self.v=vreg; self.s=stmp; self.n=0; self.pending=False; self.names=[]; self.path='XY'; self.map={'X':{},'Y':{}}
    def mark(self,name=''):
        if not self.on or (getattr(self,'wl',None) and name not in self.wl): return
        assert not self.pending
        self.a(f's_memtime s[{self.s}:{self.s+1}]'); self.pending=True
        if getattr(self,'rt',0): self.a('s_memrealtime s[100:101]')
        pass; self.names.append(name)
        for p in self.path: self.map[p][self.n]=name
    def commit(self):
        if not self.on or not self.pending: return
        self.a(f'v_writelane_b32 v{self.v}, s{self.s}, {self.n}')
        if getattr(self,'rt',0)==2: self.a(f'v_writelane_b32 v0, s100, {self.n}')
        self.n+=1; self.pending=False
    def now(self,name=''):
        if not self.on or (getattr(self,'wl',None) and name not in self.wl): return
        self.mark(name); self.a('s_waitcnt lgkmcnt(0)'); self.commit()
    def dump(self,kidx,ws_lo,vtmp):
        if not self.on: return
        if getattr(self,'rt',0):
            self.a(f's_lshl_b32 s{self.s}, s2, 3\ns_add_u32 s{self.s}, s{self.s}, s20\ns_lshl_b32 s{self.s}, s{self.s}, 8\ns_add_u32 s{self.s}, s{self.s}, {WS_TRACE}\nv_lshl_add_u32 v{vtmp}, v2, 2, s{self.s}')
            self.a(f'global_store_dword v{vtmp}, v{self.v}, s[{ws_lo}:{ws_lo+1}]\nv_add_u32 v{vtmp}, {1<<20}, v{vtmp}\nglobal_store_dword v{vtmp}, v0, s[{ws_lo}:{ws_lo+1}]')
            return
        self.a(f's_lshl_b32 s{self.s}, s2, 11\ns_add_u32 s{self.s}, s{self.s}, {WS_TRACE+kidx*(1<<20)}\nv_lshl_add_u32 v{vtmp}, v0, 2, s{self.s}')
        self.a(f'global_store_dword v{vtmp}, v{self.v}, s[{ws_lo}:{ws_lo+1}]')
def gen_k1(name='qkv_kernel', stamps=False, opt={}):
    a=Asm()
    V=Alloc(1)
    acc=[[[None]*2 for s in range(3)] for m in range(4)]
    for m in range(4):
        for s in range(2):
            for fb in range(2): acc[m][s][fb]=V(f'acc{m}{s}{fb}',4,4)
    for tl in range(2):
        for fb in range(2):
            for mm in range(2): acc[2*tl+mm][2][fb]=V(f'accv{tl}{fb}{mm}',4,4)
    XF=[[V(f'xf{b}{m}',4,4) for m in range(4)] for b in range(2)]
    WF=[[[V(f'wf{b}{s}{fb}',4,4) for fb in range(2)] for s in range(3)] for b in range(2)]
    vxa=[V(f'vxa{j}') for j in range(2)]
    vwa=[V(f'vwa{j}') for j in range(2)]
    vgx=[V(f'vgx{j}') for j in range(4)]
    vgw=V('vgw')
    t=[V(f't{i}') for i in range(6)]
    vst=V('vst'); vpf=V('vpf'); vdum=V('vdum'); vtr=V('vtr')
    TR=Trace(a,stamps and opt.get('trace'),vtr)
    sX=8; sW=12; sWS=16
    sWave=20; sMT=21; sHP=22; sBR=23; sM0X=24; sM0W=25; sKX=26; sKW=27; sT=28; sT2=29
    a('s_cmp_ge_u32 s2, 256\ns_cbranch_scc1 K1_END')
    if stamps: stamp_begin(a)
    TR.now('start')
    a('s_and_b32 s3, s2, 7')
    mp=opt.get('map',0)
    if mp==0: a(f's_lshr_b32 s{sBR}, s3, 2')
    else: a(f's_bfe_u32 s{sBR}, s2, 0x10003')
    a(f's_mul_i32 s{sT}, s{sBR}, 24')
    a(f's_add_u32 s4, s0, s{sT}\ns_addc_u32 s5, s1, 0')
    a(f's_load_dwordx4 s[32:35], s[4:5], 0')
    a(f's_load_dwordx2 s[36:37], s[0:1], 64')
    a(f'v_lshrrev_b32 v{t[0]}, 6, v0')
    a(f's_lshr_b32 s{sT}, s2, 3')
    a(f'v_readfirstlane_b32 s{sWave}, v{t[0]}')
    if mp==0:
        a(f's_and_b32 s{sMT}, s{sT}, 3\ns_and_b32 s{sT2}, s3, 1\ns_lshl_b32 s{sT2}, s{sT2}, 2\ns_add_u32 s{sMT}, s{sMT}, s{sT2}')
        a(f's_lshr_b32 s{sHP}, s{sT}, 2\ns_and_b32 s{sT2}, s3, 2\ns_lshl_b32 s{sT2}, s{sT2}, 2\ns_add_u32 s{sHP}, s{sHP}, s{sT2}')
    elif mp==1:
        a(f's_bfe_u32 s{sMT}, s2, 0x20004\ns_and_b32 s{sT2}, s3, 1\ns_lshl_b32 s{sT2}, s{sT2}, 2\ns_add_u32 s{sMT}, s{sMT}, s{sT2}')
        a(f's_lshr_b32 s{sHP}, s2, 6\ns_and_b32 s{sT2}, s3, 6\ns_lshl_b32 s{sT2}, s{sT2}, 1\ns_add_u32 s{sHP}, s{sHP}, s{sT2}')
    elif mp==2:
        a(f's_bfe_u32 s{sMT}, s2, 0x30004')
        a(f's_lshr_b32 s{sHP}, s2, 7\ns_lshl_b32 s{sT2}, s3, 1\ns_add_u32 s{sHP}, s{sHP}, s{sT2}')
    lane=t[1]
    sWX=54; sWW=55
    rot=opt.get('rot',0)
    if rot==0: a(f's_mov_b32 s{sWX}, s{sWave}\ns_mov_b32 s{sWW}, s{sWave}')
    else:
        m,sh=((1,2),(3,1),(7,0))[rot-1]
        a(f's_and_b32 s{sT}, s{sHP}, {m}\ns_lshl_b32 s{sT}, s{sT}, {sh}\ns_xor_b32 s{sWX}, s{sWave}, s{sT}')
        m,sh=((1,2),(3,1),(3,1))[rot-1]
        a(f's_and_b32 s{sT}, s{sMT}, {m}\ns_lshl_b32 s{sT}, s{sT}, {sh}\ns_xor_b32 s{sWW}, s{sWave}, s{sT}')
    a(f'v_and_b32 v{lane}, 63, v0')
    a(f'v_lshrrev_b32 v{t[2]}, 3, v{lane}')
    a(f'v_and_b32 v{t[3]}, 7, v{lane}')
    a(f'v_lshrrev_b32 v{t[4]}, 4, v{lane}')
    a(f's_lshl_b32 s{sT}, s{sMT}, 8\ns_lshl_b32 s{sT2}, s{sWX}, 5\ns_add_u32 s{sT}, s{sT}, s{sT2}')
    a(f'v_add_u32 v{t[5]}, s{sT}, v{t[2]}')
    a(f'v_lshlrev_b32 v{t[5]}, 11, v{t[5]}')
    a(f'v_xor_b32 v{vgx[0]}, v{t[3]}, v{t[4]}')
    a(f'v_lshl_add_u32 v{vgx[0]}, v{vgx[0]}, 4, v{t[5]}')
    a(f'v_xor_b32 v{vgx[1]}, 64, v{vgx[0]}')
    a(f'v_add_u32 v{vgx[1]}, {8*2048}, v{vgx[1]}')
    a(f'v_add_u32 v{vgx[2]}, {16*2048}, v{vgx[0]}')
    a(f'v_add_u32 v{vgx[3]}, {16*2048}, v{vgx[1]}')
    a(f's_lshl_b32 s{sT}, s{sWW}, 3')
    a(f'v_add_u32 v{t[5]}, s{sT}, v{t[2]}')
    a(f'v_mul_u32_u24 v{t[5]}, 6144, v{t[5]}')
    a(f's_and_b32 s{sT}, s{sWW}, 1\ns_lshl_b32 s{sT}, s{sT}, 2')
    a(f'v_and_b32 v{t[4]}, 1, v{t[4]}\nv_lshl_add_u32 v{t[4]}, v{t[4]}, 1, s{sT}\nv_xor_b32 v{t[4]}, v{t[4]}, v{t[3]}')
    a(f'v_lshl_add_u32 v{vgw}, v{t[4]}, 4, v{t[5]}')
    a(f's_lshl_b32 s{sT}, s{sHP}, 7')
    a(f'v_add_u32 v{vgw}, s{sT}, v{vgw}')
    a(f's_lshr_b32 s{sT}, s{sWX}, 1\ns_mul_i32 s{sM0X}, s{sT}, 24576\ns_and_b32 s{sT}, s{sWX}, 1\ns_lshl_b32 s{sT}, s{sT}, 12\ns_add_u32 s{sM0X}, s{sM0X}, s{sT}')
    a(f's_lshl_b32 s{sM0W}, s{sWW}, 10\ns_add_u32 s{sM0W}, s{sM0W}, {96*1024}')
    a(f's_mov_b32 s{sX+2}, 0x400000\ns_mov_b32 s{sX+3}, 0x20000\ns_mov_b32 s{sW+2}, 0x600000\ns_mov_b32 s{sW+3}, 0x20000')
    a('s_waitcnt lgkmcnt(0)')
    a(f's_mov_b32 s{sX}, s32\ns_mov_b32 s{sX+1}, s33\ns_mov_b32 s{sW}, s34\ns_mov_b32 s{sW+1}, s35')
    pf=opt.get('pf',0)
    pfw=opt.get('pfw',1)
    pfd=opt.get('pfd',5)
    sPX=40; sPW=42; sPD=44
    if pf:
        nx,nw=(2,1) if pf==1 else (8,2)
        if pf==1:
            a(f's_lshl_b32 s{sT}, s{sMT}, 8\ns_lshl_b32 s{sT2}, s{sHP}, 4\ns_add_u32 s{sT}, s{sT}, s{sT2}\ns_lshl_b32 s{sT2}, s{sWave}, 1\ns_add_u32 s{sT}, s{sT}, s{sT2}')
        else:
            a(f's_lshl_b32 s{sT}, s{sMT}, 8\ns_and_b32 s{sT2}, s{sHP}, 3\ns_lshl_b32 s{sT2}, s{sT2}, 6\ns_add_u32 s{sT}, s{sT}, s{sT2}\ns_lshl_b32 s{sT2}, s{sWave}, 3\ns_add_u32 s{sT}, s{sT}, s{sT2}')
        a(f's_lshl_b32 s{sT}, s{sT}, 11\ns_add_u32 s{sPX}, s32, s{sT}\ns_addc_u32 s{sPX+1}, s33, 0')
        if pf==1:
            a(f's_lshl_b32 s{sT}, s{sMT}, 3\ns_add_u32 s{sT}, s{sT}, s{sWave}')
        else:
            a(f's_and_b32 s{sT}, s{sMT}, 3\ns_lshl_b32 s{sT}, s{sT}, 4\ns_lshl_b32 s{sT2}, s{sWave}, 1\ns_add_u32 s{sT}, s{sT}, s{sT2}')
        a(f's_mul_i32 s{sT}, s{sT}, 6144\ns_lshl_b32 s{sT2}, s{sHP}, 7\ns_add_u32 s{sT}, s{sT}, s{sT2}\ns_add_u32 s{sPW}, s34, s{sT}\ns_addc_u32 s{sPW+1}, s35, 0')
    def pref(s):
        if not pf or s>15: return []
        op,dst,o=('s_load_dword',f's{sPD}',0) if pfw==1 else ('s_load_dwordx2',f's[{sPD}:{sPD+1}]',60)
        R=[[f'{op} {dst}, s[{sPX}:{sPX+1}], {r*2048+s*128+o}'] for r in range(nx)]
        W_=[[f'{op} {dst}, s[{sPW}:{sPW+1}], s{sPD+2} offset:{r*6144+seg*2048+o}'] for r in range(nw) for seg in range(3)]
        W_[0]=[f's_mov_b32 s{sPD+2}, {s*64*6144}']+W_[0]
        return W_+R
    vp=opt.get('vp')
    sP=48; sPS=52; sPO=53
    if vp:
        a(f's_cmp_eq_u32 s{sWave}, 3')
        a(f's_cselect_b32 s{sP}, s32, s34\ns_cselect_b32 s{sP+1}, s33, s35\ns_cselect_b32 s{sP+2}, s{sX+2}, s{sW+2}\ns_mov_b32 s{sP+3}, 0x20000')
        a(f's_movk_i32 s{sT}, 6144\ns_cselect_b32 s{sPS}, 2048, s{sT}\ns_cselect_b32 s{sPO}, 4, 3\ns_cselect_b32 s{sKX}, 15, 7')
        a(f's_lshl_b32 s{sT}, s{sMT}, 4\ns_add_u32 s{sT}, s{sT}, s{sHP}\ns_lshl_b32 s{sT}, s{sT}, s{sPO}')
        a(f'v_lshrrev_b32 v{t[4]}, 2, v{lane}\nv_and_b32 v{t[4]}, s{sKX}, v{t[4]}\nv_add_u32 v{t[4]}, s{sT}, v{t[4]}\nv_mul_u32_u24 v{t[4]}, s{sPS}, v{t[4]}')
        a(f'v_and_b32 v{t[5]}, 1, v{lane}\nv_lshl_add_u32 v{t[4]}, v{t[5]}, 6, v{t[4]}\nv_bfe_u32 v{t[5]}, v{lane}, 1, 1\nv_lshl_add_u32 v{vpf}, v{t[5]}, 10, v{t[4]}')
        a(f's_lshl_b32 s{sPO}, s{sWave}, 11\ns_cmp_eq_u32 s{sWave}, 3\ns_cselect_b32 s{sPO}, 0, s{sPO}\ns_add_u32 s{sPO}, s{sPO}, 384')
        a(f's_cmp_ge_u32 s{sWave}, {opt.get("vpn",4)}\ns_cselect_b32 s{sT}, 0x10000000, 0\nv_add_u32 v{vpf}, s{sT}, v{vpf}')
    def vtouch(pos):
        if not vp: return []
        o=[]
        for g,p_ in enumerate(vp):
            if p_==pos: o+=['s_nop 0', f'buffer_load_dword v{vdum}, v{vpf}, {sr(sP,4)}, s{sPO} offen']
        return o
    if opt.get('ptrace'): TR.now('karg')
    for x in vtouch('a'): a(x)
    aux=opt.get('k1aux','')
    krot=opt.get('krot',0)
    sKT=60
    if krot:
        if krot==1: a(f's_lshl_b32 s{sT}, s3, 8')
        elif krot==2: a(f's_lshr_b32 s{sT}, s3, 1\ns_lshl_b32 s{sT}, s{sT}, 9')
        elif krot==3: a(f's_lshl_b32 s{sT}, s3, 8\ns_lshl_b32 s{sT2}, s{sBR}, 7\ns_add_u32 s{sT}, s{sT}, s{sT2}')
        elif krot==4: a(f's_lshl_b32 s{sT}, s{sBR}, 10')
        for i_ in range(16): a(f's_add_u32 s{sKT+i_}, s{sT}, {i_*128}\ns_and_b32 s{sKT+i_}, s{sKT+i_}, 2047')
    def dmaX(s,j):
        if krot: return [f's_add_u32 m0, s{sM0X}, {(s%3)*8192+j*1024}', 's_nop 0', f'buffer_load_dwordx4 v{vgx[j]}, {sr(sX,4)}, s{sKT+s} offen{aux} lds']
        return [f's_add_u32 m0, s{sM0X}, {(s%3)*8192+j*1024}', f's_movk_i32 s{sKX}, {s*128}', f'buffer_load_dwordx4 v{vgx[j]}, {sr(sX,4)}, s{sKX} offen{aux} lds']
    def dmaW(n):
        s,seg=divmod(n,3)
        if krot: return [f's_add_u32 m0, s{sM0W}, {(n%8)*8192}', f's_mul_i32 s{sKW}, s{sKT+s}, 3072', f's_add_u32 s{sKW}, s{sKW}, {seg*2048}', f'buffer_load_dwordx4 v{vgw}, {sr(sW,4)}, s{sKW} offen{aux} lds']
        return [f's_add_u32 m0, s{sM0W}, {(n%8)*8192}', f's_mov_b32 s{sKW}, {s*64*6144+seg*2048}', f'buffer_load_dwordx4 v{vgw}, {sr(sW,4)}, s{sKW} offen{aux} lds']
    lead=opt.get('lead',0)
    if lead:
        a(f's_cmp_lt_u32 s{sWave}, {lead}\ns_cbranch_scc1 K1_LD0\ns_barrier\nK1_LD0:')
    for d in [dmaX(0,0),dmaW(0),dmaX(0,1),dmaW(1),dmaX(0,2),dmaW(2),dmaX(0,3)]:
        for x in d: a(x)
    if lead:
        a(f's_cmp_lt_u32 s{sWave}, {lead}\ns_cbranch_scc0 K1_LD1')
        for d in [dmaX(1,0),dmaW(3),dmaX(1,1),dmaW(4),dmaX(1,2),dmaW(5),dmaX(1,3)]:
            for x in d: a(x)
        a('s_barrier\nK1_LD1:')
    if opt.get('ptrace'):
        TR.now('issued')
        for n_ in (6,5,4,3,2,1,0):
            a(f's_waitcnt vmcnt({n_})'); TR.now(f'vm{n_}')
    for s_ in range(opt.get('pf0',3),pfd):
        for d in pref(s_):
            for x in d: a(x)
    a(f's_and_b32 s{sT}, s{sWave}, 3\ns_mul_i32 s{sT}, s{sT}, 24576')
    a(f'v_and_b32 v{t[2]}, 15, v{lane}')
    a(f'v_lshrrev_b32 v{t[3]}, 4, v{lane}')
    a(f'v_bfe_u32 v{t[4]}, v{lane}, 1, 3')
    a(f'v_xor_b32 v{t[4]}, v{t[4]}, v{t[3]}')
    a(f'v_lshlrev_b32 v{t[4]}, 4, v{t[4]}')
    a(f'v_lshl_add_u32 v{t[4]}, v{t[2]}, 7, v{t[4]}')
    a(f'v_add_u32 v{vxa[0]}, s{sT}, v{t[4]}')
    a(f'v_xor_b32 v{vxa[1]}, 64, v{vxa[0]}')
    a(f'v_lshlrev_b32 v{vst}, 4, v{t[2]}\nv_lshl_add_u32 v{vst}, v{t[3]}, 9, v{vst}')
    a(f'v_bfe_u32 v{t[2]}, v{lane}, 2, 2')
    a(f'v_lshl_add_u32 v{t[4]}, v{t[3]}, 3, v{t[2]}')
    a(f'v_lshlrev_b32 v{t[4]}, 7, v{t[4]}')
    a(f'v_and_b32 v{t[5]}, 3, v{lane}')
    a(f'v_lshl_add_u32 v{t[4]}, v{t[5]}, 3, v{t[4]}')
    a(f'v_lshrrev_b32 v{t[2]}, 1, v{t[2]}')
    a(f'v_lshl_add_u32 v{t[4]}, v{t[2]}, 5, v{t[4]}')
    a(f's_lshr_b32 s{sT}, s{sWave}, 2')
    a(f'v_and_b32 v{t[3]}, 1, v{t[3]}\nv_xor_b32 v{t[3]}, s{sT}, v{t[3]}')
    a(f'v_lshl_add_u32 v{t[4]}, v{t[3]}, 6, v{t[4]}')
    a(f'v_add_u32 v{vwa[0]}, {96*1024}, v{t[4]}')
    a(f'v_xor_b32 v{vwa[1]}, 32, v{vwa[0]}')
    a('s_barrier')
    if lead: a(f's_cmp_lt_u32 s{sWave}, {lead}\ns_cbranch_scc1 K1_LD2')
    for d in [dmaX(1,0),dmaW(3),dmaX(1,1),dmaW(4),dmaX(1,2),dmaW(5),dmaX(1,3)]:
        for x in d: a(x)
    if lead: a('K1_LD2:')
    nb=len(vtouch('b'))//2
    for x in vtouch('b'): a(x)
    cols=[(s,fb) for s in range(3) for fb in range(2)]
    def reads(s,j,b):
        def wr(seg,fb):
            off=((3*s+seg)%8)*8192+j*4096
            return [f'ds_read_b64_tr_b16 {vr(WF[b][seg][fb],2)}, v{vwa[fb]} offset:{off}', f'ds_read_b64_tr_b16 {vr(WF[b][seg][fb]+2,2)}, v{vwa[fb]} offset:{off+512}']
        def xr(m): return [f'ds_read_b128 {vr(XF[b][m],4)}, v{vxa[j]} offset:{(s%3)*8192+m*2048}']
        R=xr(0)
        for c in cols: R+=wr(*c)
        return R+xr(1)+xr(2)+xr(3)
    def mfmas(b, first):
        M=[]
        for m in range(4):
            for seg,fb in (cols if m%2==0 else cols[::-1]):
                A_,B_=(WF[b][seg][fb],XF[b][m]) if seg<2 else (XF[b][m],WF[b][seg][fb])
                d=vr(acc[m][seg][fb],4)
                M.append(f'v_mfma_f32_16x16x32_bf16 {d}, {vr(A_,4)}, {vr(B_,4)}, {"0" if first else d}')
        return M
    a(f's_waitcnt vmcnt({7+nb})\ns_barrier')
    if stamps: stamp_mid(a,0)
    TR.mark('B0')
    for x in reads(0,0,0): a(x)
    pend=[dmaW(6),dmaW(7)]+[dmaX(2,jj) for jj in range(4)]
    rslots=opt.get('k1_rslots',list(range(16)))
    dslots=opt.get('k1_dslots',[[1,5,9],[1,5,9,13]])
    for s in range(16):
        for j in range(2):
            b=j
            if j==1 and s<15:
                assert not pend
                a(f's_waitcnt vmcnt({(6 if s<14 else 0)+len(vtouch(s-1))//2}) lgkmcnt(0)\ns_barrier')
                TR.mark(f'B{s+1}')
                sn=s+1
                if 3*sn+5<48: pend.append(dmaW(3*sn+5))
                if sn+2<16: pend+= [dmaW(3*sn+6),dmaW(3*sn+7)]+[dmaX(sn+2,jj) for jj in range(4)]
            else:
                a('s_waitcnt lgkmcnt(0)')
                TR.commit()
            if j==0: R=reads(s,1,1)
            elif s<15: R=reads(s+1,0,0)
            else: R=[]
            M=mfmas(b, s==0 and j==0)
            fill=[[] for _ in M]
            PF=pref(s+pfd)
            if pf==1: PF=PF if j==opt.get('pfj',0) else []
            else: PF=PF[7*j:7*j+7]
            for q,d in enumerate(PF): fill[q]+=d
            for r_,sl in zip(R,rslots): fill[sl].append(r_)
            ds=dslots[j]
            if s==0 and j==0: ds=[2,5,8,11,14,17]
            for sl in ds:
                if pend: fill[sl]+=pend.pop(0)
            if j==1: fill[opt.get('vpslot',3)]+=vtouch(s)
            for x in interleave(M,fill): a(x)
    assert not pend
    if stamps: stamp_mid(a,1)
    TR.now('mainend')
    a(f's_add_u32 s{sWS}, s36, {opt.get("wsbase",0)<<20}\ns_addc_u32 s{sWS+1}, s37, 0\ns_mov_b32 s{sWS+2}, 0x2000000\ns_mov_b32 s{sWS+3}, 0x20000')
    a(f's_lshr_b32 s{sT}, s{sWave}, 2\ns_lshl_b32 s{sT2}, s{sHP}, 1\ns_add_u32 s{sT}, s{sT}, s{sT2}\ns_lshl_b32 s{sT2}, s{sBR}, 5\ns_add_u32 s{sT}, s{sT}, s{sT2}')
    a(f's_lshl_b32 s{sT}, s{sT}, 6')
    a(f's_lshl_b32 s{sT2}, s{sMT}, 3\ns_add_u32 s{sT}, s{sT}, s{sT2}\ns_and_b32 s{sT2}, s{sWave}, 3\ns_lshl_b32 s{sT2}, s{sT2}, 1\ns_add_u32 s{sT}, s{sT}, s{sT2}')
    a(f's_lshl_b32 s{sKX}, s{sT}, 11')
    a(f's_lshl_b32 s{sKW}, s{sT}, 12\ns_add_u32 s{sKW}, s{sKW}, {WS_KV}')
    a(f's_add_u32 s{sT2}, s{sKW}, 4096')
    a(f's_mov_b32 s{sT}, {QSCALE}')
    if opt.get('k1skip')=='xcd': a(f's_cmp_eq_u32 s{sBR}, 0\ns_cbranch_scc1 K1_SKIP')
    if opt.get('k1skip')=='half': a(f's_bitcmp1_b32 s2, 3\ns_cbranch_scc1 K1_SKIP')
    staux=opt.get('k1st','')
    def st(c,so,off): a(f'buffer_store_dwordx4 {vr(c,4)}, v{vst}, {sr(sWS,4)}, s{so} offen offset:{off}{staux}')
    def pack(c):
        for i in range(4): a(f'v_cvt_pk_bf16_f32 v{c+i}, v{c+2*i}, v{c+2*i+1}')
    for tl in range(2):
        so=sKW if tl==0 else sT2
        for mm in range(2):
            c=acc[2*tl+mm][1][0]; pack(c); st(c,so,mm*256)
        for fb in range(2):
            c=acc[2*tl][2][fb]; pack(c); st(c,so,2048+fb*256)
        for mm in range(2):
            c=acc[2*tl+mm][0][0]
            for i in range(8): a(f'v_mul_f32 v{c+i}, s{sT}, v{c+i}')
            pack(c); st(c,sKX,tl*2048+mm*256)
    a('K1_SKIP:')
    TR.dump(0,36,vdum)
    if stamps: stamp_end(a,0,36,XF[0][0])
    a('K1_END:\ns_endpgm')
    return kernel_header(name)+a.text(), V.n
```

```python
import sys, json, struct, math
from asm import *
from k1 import WS_STAMP, WS_TRACE, Trace
NAME='concat_heads__sliding_block__softmax_full_mha__prompt_kernel'
WS_QF=0; WS_KV=8<<20; WS_OF=24<<20; WS_FL=32<<20; WS_F2=WS_FL+(256<<10); WS_FQ=WS_F2+(512<<10); WS_NM=WS_FQ+(256<<10); WS_EP=WS_NM+(512<<10); WS_SIZE=WS_EP+128
def f2u(x): return struct.unpack('<I',struct.pack('<f',x))[0]
QSCALE=f2u((32**-0.5)*math.log2(math.e))
OFFS=88.0
SPIN=1<<20
K=1024
pDbg=6; sX=8; sW=12; sWS=16; sWo=36; sOut=40
sWave=20; sMT=21; sHP=22; sBR=23; sHD=24; sT=25; sT2=26; sT3=27; sW3=28; sKH=29; sSpin=30; sK=31
sQS=32
sQo=34; sKV0=35; sKV1=44; sF1=45
sXm=46; sWm=50; sKX=52; sKW=53
sCnt=46; sN=47; sMa=48; sMb=49; sF2b=50; sK2=51
_S=Alloc(54)
sKVB,sKVA,sM8,sMw,sFB,sFA,sMsk,sOth,sMskA,sJQ,sQB,sO,sF2,sPi,sOffs,sOb,sFO,sME,sML,sWb,sM4,sSp,sC0,sC1,sC2,sQBo,sQAo,sPm,sPw,sPo,sOc,sOA,sF2A,sWhen,sM1,sM2=[_S(str(i)) for i in range(36)]
sM3=3; sFQ=33; sM0=94; sNMo=96
assert _S.n<=90
vtr=1; lane=2; vl16=3; vst=4; vfl=5; vtag=6
vka=[8,9]; vva=[10,11]; vq=[12,13]; vpoll=14; vkp=16; vidx=17; vos=18; vgo=[19,20]; vwt=21; t=[22,23,24,25,26]; vdum=27
SEL=28; XM=32
NM=[64,48]; Q=[80,88]; O=[96,112]; L=[128,132]; S=[136,152]; KF=[168,176]; VF=[184,192]; QA=200
H=208
OSL=[64*K,96*K,128*K,0,32*K]

def build0(stamps=False,opt={}):
    a=Asm(); tail=Asm(); hot=Asm()
    TR=Trace(a,(stamps and opt.get('trace') is not None) or opt.get('amp'),vtr)
    uid=[0]
    def lab(p):
        uid[0]+=1; return f'{p}{uid[0]}'
    def emit(lst):
        for x in lst:
            if callable(x): x()
            else: a(x)
    def if_young(name): a(f's_cmp_ge_u32 s{sWave}, 4\ns_cbranch_scc1 {name}')
    def if_old(name): a(f's_cmp_lt_u32 s{sWave}, 4\ns_cbranch_scc1 {name}')
    def old_block(lst):
        def f():
            Lb=lab('OB'); if_young(Lb); emit(lst); a(f'{Lb}:')
        return f
    def young_block(lst):
        def f():
            Lb=lab('YB'); if_old(Lb); emit(lst); a(f'{Lb}:')
        return f
    def flag_load(soff,smask):
        return f's_mov_b32 exec_lo, s{smask}\ns_mov_b32 exec_hi, 0\nbuffer_load_dwordx2 {vr(vpoll,2)}, v{vfl}, {sr(sWS,4)}, s{soff} offen sc1\ns_mov_b64 exec, -1'
    def flag_test(smask):
        return f'v_cmp_eq_u64 vcc, {vr(vtag,2)}, {vr(vpoll,2)}\ns_and_b32 s{sT3}, vcc_lo, s{smask}\ns_cmp_eq_u32 s{sT3}, s{smask}'
    def flag_check(soff,smask,tail=tail):
        def f():
            Lc=lab('FC'); D=lab('FD')
            a(flag_test(smask)); a(f's_cbranch_scc0 {Lc}\n{D}:')
            tail(f'{Lc}:\ns_mov_b32 s{sSpin}, 0\n{Lc}x:\ns_andn2_b32 s{sT3}, s{smask}, s{sT3}')
            if opt.get('slp'): tail(f's_sleep {opt["slp"]}')
            tail(flag_load(soff,sT3)); tail('s_waitcnt vmcnt(0)')
            tail(flag_test(smask)); tail(f's_cbranch_scc1 {D}')
            tail(f's_add_u32 s{sSpin}, s{sSpin}, 1\ns_cmp_lt_u32 s{sSpin}, {SPIN}\ns_cbranch_scc1 {Lc}x\ns_branch {D}')
        return f
    def flag_post(soff):
        return f's_mov_b64 exec, 0xff\nbuffer_store_dwordx4 {vr(vtag,4)}, v{vl16}, {sr(sWS,4)}, s{soff} offen sc1\ns_mov_b64 exec, -1'
    pads={}
    def visit(target):
        if not opt.get('visit',1): return []
        r=lab('VR'); p=lab('VP'); pads.setdefault(target,[]).append((p,r))
        return [f's_branch {p}', f'{r}:']
    def entry(target,al=6,skip=0):
        a(f'.p2align {al}')
        if skip: a(f'.fill {skip//4}, 4, 0xbf800000')
        for p,r in pads.get(target,[]): a(f'{p}:\ns_branch {r}')
        pads[target]=None
        a(f'{target}:')
    def post_if(cmp,soff):
        return f'{cmp}\ns_cselect_b64 exec, 0xff, 0\nbuffer_store_dwordx4 {vr(vtag,4)}, v{vl16}, {sr(sWS,4)}, s{soff} offen sc1\ns_mov_b64 exec, -1'
    def masked(cmp,lst): return [cmp,'s_cselect_b64 exec, -1, 0']+lst+['s_mov_b64 exec, -1']
    def when(k,lst):
        def f():
            Lb=lab('WH'); a(f's_cmp_lg_u32 s{sWhen}, {k}\ns_cbranch_scc1 {Lb}'); emit(lst); a(f'{Lb}:')
        return f
    def flag_load64(soff,sm): return f's_mov_b64 exec, s[{sm}:{sm+1}]\nbuffer_load_dwordx2 {vr(vpoll,2)}, v{vfl}, {sr(sWS,4)}, s{soff} offen sc1\ns_mov_b64 exec, -1'
    def flag_check64(soff,sm,tail=tail):
        def f():
            Lc=lab('FC'); D=lab('FD')
            tst=f'v_cmp_eq_u64 vcc, {vr(vtag,2)}, {vr(vpoll,2)}\ns_and_b64 vcc, vcc, s[{sm}:{sm+1}]\ns_cmp_eq_u64 vcc, s[{sm}:{sm+1}]'
            a(tst); a(f's_cbranch_scc0 {Lc}\n{D}:')
            tail(f'{Lc}:\ns_mov_b32 s{sSpin}, 0\n{Lc}x:'); tail(flag_load64(soff,sm)); tail('s_waitcnt vmcnt(0)'); tail(tst); tail(f's_cbranch_scc1 {D}')
            tail(f's_add_u32 s{sSpin}, s{sSpin}, 1\ns_cmp_lt_u32 s{sSpin}, {SPIN}\ns_cbranch_scc1 {Lc}x\ns_branch {D}')
        return f
    def zero(A,r,n):
        for i in range(0,n,2): A(f'v_mov_b64 {vr(r+i,2)}, 0')
    a('s_cmp_ge_u32 s2, 256\ns_cbranch_scc1 END')
    if stamps: a('s_memrealtime s[90:91]\ns_memtime s[92:93]')
    TR.now('start')
    if TR.on: a(f's_getreg_b32 s98, hwreg(HW_REG_XCC_ID, 0, 4)\nv_writelane_b32 v{vtr}, s98, 63\nv_writelane_b32 v{vtr}, s90, 62')
    a(f's_bfe_u32 s{sBR}, s2, 0x10003\ns_mul_i32 s{sT}, s{sBR}, 24\ns_add_u32 s4, s0, s{sT}\ns_addc_u32 s5, s1, 0')
    a(f's_load_dwordx2 s[{sX}:{sX+1}], s[4:5], 0\ns_load_dwordx2 s[{sW}:{sW+1}], s[4:5], 8\ns_load_dwordx2 s[{sWo}:{sWo+1}], s[4:5], 16')
    a(f's_load_dwordx2 s[{sOut}:{sOut+1}], s[0:1], 48\ns_load_dwordx2 s[{pDbg}:{pDbg+1}], s[0:1], 56\ns_load_dwordx2 s[{sWS}:{sWS+1}], s[0:1], 64')
    a(f'v_lshrrev_b32 v{vdum}, 6, v0\nv_and_b32 v{lane}, 63, v0')
    a(f'v_readfirstlane_b32 s{sWave}, v{vdum}')
    if opt.get('rt'): TR.rt=2
    a(f's_bfe_u32 s{sMT}, s2, 0x20004\n{"s_andn2_b32" if opt.get("swp",0) else "s_and_b32"} s{sT}, 1, s2\ns_lshl_b32 s{sT}, s{sT}, 2\ns_add_u32 s{sMT}, s{sMT}, s{sT}')
    a(f's_lshr_b32 s{sHP}, s2, 6\ns_and_b32 s{sT}, s2, 6\ns_lshl_b32 s{sT}, s{sT}, 1\ns_add_u32 s{sHP}, s{sHP}, s{sT}')
    a(f's_and_b32 s{sW3}, s{sWave}, 3\ns_lshr_b32 s{sKH}, s{sWave}, 2')
    a(f's_mov_b32 s{sX+2}, 0x400000\ns_mov_b32 s{sX+3}, 0x20000\ns_mov_b32 s{sW+2}, 0x600000\ns_mov_b32 s{sW+3}, 0x20000')
    vxa=[64,65]; vwa=[66,67]; vgx=list(range(68,76)); vgw=[76,77]; g=[78,79]
    V=Alloc(80)
    acc=[[[None]*2 for s in range(3)] for m in range(4)]
    for m in range(4):
        for s in range(2):
            for fb in range(2): acc[m][s][fb]=V('',4,4)
    for tl in range(2):
        for fb in range(2):
            for mm in range(2): acc[2*tl+mm][2][fb]=V('',4,4)
    XF=[None,None]; WF=[None,None]
    for b in (1,0):
        XF[b]=[V('',4,4) for m in range(4)]; WF[b]=[[V('',4,4) for fb in range(2)] for s in range(3)]
    assert V.n==256
    def g1_dsaddr():
        a(f's_mul_i32 s{sT}, s{sW3}, 24576')
        a(f'v_and_b32 v{t[2]}, 15, v{lane}\nv_lshrrev_b32 v{t[3]}, 4, v{lane}\nv_bfe_u32 v{t[4]}, v{lane}, 1, 3')
        a(f'v_xor_b32 v{t[4]}, v{t[4]}, v{t[3]}\nv_lshlrev_b32 v{t[4]}, 4, v{t[4]}\nv_lshl_add_u32 v{t[4]}, v{t[2]}, 7, v{t[4]}')
        a(f'v_add_u32 v{vxa[0]}, s{sT}, v{t[4]}\nv_xor_b32 v{vxa[1]}, 64, v{vxa[0]}')
        a(f'v_lshlrev_b32 v{vst}, 4, v{t[2]}\nv_lshl_add_u32 v{vst}, v{t[3]}, 9, v{vst}')
        a(f'v_bfe_u32 v{t[2]}, v{lane}, 2, 2\nv_lshl_add_u32 v{t[4]}, v{t[3]}, 3, v{t[2]}\nv_lshlrev_b32 v{t[4]}, 7, v{t[4]}')
        a(f'v_and_b32 v{t[1]}, 3, v{lane}\nv_lshl_add_u32 v{t[4]}, v{t[1]}, 3, v{t[4]}')
        a(f'v_lshrrev_b32 v{t[2]}, 1, v{t[2]}\nv_lshl_add_u32 v{t[4]}, v{t[2]}, 5, v{t[4]}')
        a(f's_xor_b32 s{sT}, s{sKH}, s{sBR}\ns_xor_b32 s{sT}, s{sT}, 1')
        a(f'v_and_b32 v{t[3]}, 1, v{t[3]}\nv_xor_b32 v{t[3]}, s{sT}, v{t[3]}\nv_lshl_add_u32 v{t[4]}, v{t[3]}, 6, v{t[4]}')
        a(f'v_add_u32 v{vwa[0]}, {96*K}, v{t[4]}\nv_xor_b32 v{vwa[1]}, 32, v{vwa[0]}')
    def precompute():
        a=Asm()
        a(f'v_lshlrev_b32 v{vl16}, 4, v{lane}\nv_and_b32 v{vfl}, 31, v{lane}\nv_lshlrev_b32 v{vfl}, 7, v{vfl}\nv_lshrrev_b32 v{t[0]}, 5, v{lane}\nv_mul_u32_u24 v{t[0]}, {WS_FQ-WS_FL}, v{t[0]}\nv_add_u32 v{vfl}, v{vfl}, v{t[0]}')
        a(f's_lshl_b32 s{sHD}, s{sHP}, 1\ns_add_u32 s{sHD}, s{sHD}, 1\ns_sub_u32 s{sHD}, s{sHD}, s{sBR}')
        a(f's_mov_b32 s{sWS+2}, {WS_SIZE}\ns_mov_b32 s{sWS+3}, 0x20000\ns_mov_b32 s{sWo+2}, 0x200000\ns_mov_b32 s{sWo+3}, 0x20000\ns_mov_b32 s{sOut+2}, 0x800000\ns_mov_b32 s{sOut+3}, 0x20000')
        a(f's_mov_b32 s{sQS}, {QSCALE}')
        a(f's_xor_b32 s{sT}, s{sHD}, s{sKH}\ns_lshl_b32 s{sT2}, s{sBR}, 5\ns_add_u32 s{sT}, s{sT}, s{sT2}')
        a(f's_lshl_b32 s{sT2}, s{sMT}, 2\ns_add_u32 s{sT2}, s{sT2}, s{sW3}')
        a(f's_lshl_b32 s{sF1}, s{sT}, 5\ns_add_u32 s{sF1}, s{sF1}, s{sT2}')
        a(f's_lshl_b32 s{sQo}, s{sF1}, 12\ns_lshl_b32 s{sKV0}, s{sF1}, 13\ns_add_u32 s{sKV0}, s{sKV0}, {WS_KV}\ns_add_u32 s{sKV1}, s{sKV0}, 4096')
        a(f's_lshl_b32 s{sF1}, s{sF1}, 7\ns_add_u32 s{sF1}, s{sF1}, {WS_FL}')
        a(f's_lshl_b32 s{sM8}, s{sW3}, 13\ns_lshl_b32 s{sM4}, s{sW3}, 12\ns_lshl_b32 s{sMw}, s{sWave}, 12')
        a(f's_add_u32 s{sT}, s{sM8}, {96*K}\nv_add_u32 v{g[0]}, s{sT}, v{vst}\ns_add_u32 s{sT}, s{sM4}, 8192\nv_add_u32 v{g[1]}, s{sT}, v{vst}')
        a(f's_sub_u32 s{sT3}, s{sT2}, 4\ns_lshl_b32 s{sT3}, 1, s{sT3}\ns_lshl_b32 s{sT}, s{sMT}, 2\ns_lshl_b32 s{sMskA}, 15, s{sT}\ns_lshr_b32 s{sT}, s{sMskA}, 4\ns_or_b32 s{sMskA}, s{sMskA}, s{sT}')
        a(f's_cmp_eq_u32 s{sBR}, 0\ns_cselect_b32 s{sMskA}, s{sT3}, s{sMskA}')
        a(f'v_mov_b32 v{vidx}, 0xdddddddd')
        if opt.get('sel1',1):
            a(f'v_and_b32 v{t[3]}, 7, v{lane}\nv_lshrrev_b32 v{t[4]}, v{t[3]}, 1\nv_mul_u32_u24 v{t[4]}, 0x3f80, v{t[4]}\nv_lshl_or_b32 v{SEL}, v{t[4]}, 16, v{t[4]}\nv_mov_b32 v{SEL+1}, v{SEL}')
            a(f'v_xor_b32 v{t[3]}, 4, v{t[3]}\nv_lshrrev_b32 v{t[4]}, v{t[3]}, 1\nv_mul_u32_u24 v{t[4]}, 0x3f80, v{t[4]}\nv_lshl_or_b32 v{SEL+2}, v{t[4]}, 16, v{t[4]}\nv_mov_b32 v{SEL+3}, v{SEL+2}')
            a(f'v_bfe_u32 v{t[2]}, v{lane}, 2, 1')
        else:
            a(f'v_bfe_u32 v{t[2]}, v{lane}, 2, 1\nv_mul_u32_u24 v{t[3]}, 0x3f80, v{t[2]}\nv_lshl_or_b32 v{SEL+2}, v{t[3]}, 16, v{t[3]}')
            a(f'v_mov_b32 v{SEL+3}, v{SEL+2}\nv_xor_b32 v{SEL}, 0x3f803f80, v{SEL+2}\nv_xor_b32 v{SEL+1}, 0x3f803f80, v{SEL+2}')
        a(f'v_bfe_u32 v{t[3]}, v{lane}, 3, 2\nv_and_b32 v{t[4]}, 35, v{lane}\nv_lshl_add_u32 v{t[4]}, v{t[3]}, 2, v{t[4]}\nv_lshl_add_u32 v{t[4]}, v{t[2]}, 4, v{t[4]}\nv_lshlrev_b32 v{vkp}, 4, v{t[4]}')
        a(f's_lshl_b32 s{sT}, s{sHD}, 18\ns_add_u32 s{sKVA}, s{sT}, {WS_KV}\ns_add_u32 s{sKVB}, s{sT}, {WS_KV+(32<<18)}')
        a(f's_lshl_b32 s{sT}, s{sHD}, 12\ns_add_u32 s{sFA}, s{sT}, {WS_FL}\ns_add_u32 s{sFB}, s{sT}, {WS_FL+32*4096}')
        a(f's_lshr_b32 s{sT}, s{sMT}, 2\ns_lshl_b32 s{sT}, s{sT}, 4\ns_lshl_b32 s{sMsk}, 0xffff, s{sT}\ns_not_b32 s{sOth}, s{sMsk}')
        a(f's_and_b32 s{sT}, s{sHD}, 1\ns_lshl_b32 s{sWb}, s{sT}, 16\ns_lshl_b32 s{sSp}, s{sT}, 15\ns_lshl_b32 s{sT}, s{sT}, 4\ns_add_u32 s{sPi}, s{sT}, s{sHP}')
        a(f's_lshl_b32 s{sME}, 0xffff, s{sT}\ns_not_b32 s{sML}, s{sME}')
        a(f's_mov_b32 s{sC0}, {f2u(2.0**-112)}\ns_mov_b32 s{sC1}, 0x7f800000\ns_mov_b32 s{sC2}, {f2u(2.0**120)}\ns_mov_b32 s{sOffs}, {f2u(-float(opt.get("offs",100)))}')
        a(f's_sub_u32 s{sT}, 11, s{sWave}\ns_cmp_gt_u32 s{sKH}, s{sBR}\ns_cselect_b32 s{sQB}, s{sT}, s{sWave}\ns_lshl_b32 s{sJQ}, s{sMT}, 3\ns_add_u32 s{sJQ}, s{sJQ}, s{sQB}')
        a(f's_lshl_b32 s{sT}, s{sHD}, 6\ns_add_u32 s{sQAo}, s{sT}, s{sJQ}\ns_lshl_b32 s{sQAo}, s{sQAo}, 11')
        a(f's_lshl_b32 s{sT2}, s{sW3}, 1\ns_add_u32 s{sT2}, s{sT2}, s{sKH}\ns_lshl_b32 s{sT3}, s{sMT}, 3\ns_add_u32 s{sT}, s{sT}, s{sT3}\ns_add_u32 s{sT}, s{sT}, s{sT2}\ns_lshl_b32 s{sQBo}, s{sT}, 11\ns_add_u32 s{sQBo}, s{sQBo}, {WS_QF+(32<<17)}')
        a(f's_cmp_eq_u32 s{sBR}, 0\ns_cselect_b32 s{sT2}, s{sQB}, s{sT2}\ns_lshl_b32 s{sT2}, s{sT2}, 11\ns_add_u32 s{sT2}, s{sT2}, 8192\nv_add_u32 v{vq[0]}, s{sT2}, v{vl16}\nv_xor_b32 v{vq[1]}, 0x800, v{vq[0]}')
        a(f's_lshl_b32 s{sT}, s{sKH}, 14\ns_add_u32 s{sT}, s{sT}, {96*K}\ns_lshl_b32 s{sT2}, s{sQB}, 12\ns_add_u32 s{sT2}, s{sT2}, {64*K}\ns_cmp_eq_u32 s{sBR}, 0\ns_cselect_b32 s{sT}, s{sT2}, s{sT}')
        a(f'v_add_u32 v{vka[0]}, s{sT}, v{vkp}\nv_add_u32 v{vva[0]}, s{sT}, v{vl16}')
        a(f'v_bfe_u32 v{t[2]}, v{lane}, 4, 1\nv_lshrrev_b32 v{t[3]}, 5, v{lane}\nv_and_b32 v{vos}, 15, v{lane}\nv_lshlrev_b32 v{vos}, 4, v{vos}\nv_lshl_add_u32 v{vos}, v{t[2]}, 10, v{vos}\nv_lshl_add_u32 v{vos}, v{t[3]}, 8, v{vos}')
        a(f'v_and_b32 v{t[2]}, 31, v{lane}\nv_lshlrev_b32 v{t[3]}, 4, v{t[3]}\nv_sub_u32 v{t[2]}, v{t[2]}, v{t[3]}\nv_cvt_f32_i32 v{t[2]}, v{t[2]}\nv_mul_f32 v{t[2]}, {f2u(2.0**100)}, v{t[2]}')
        for r in range(16): a(f'v_add_f32 v{XM+r}, {f2u((0.5-r)*2.0**100)}, v{t[2]}')
        for r in range(16): a(f'v_min_f32 v{NM[1]+r}, 0, v{XM+r}')
        a(f's_lshl_b32 s{sT}, s{sBR}, 6\ns_lshl_b32 s{sT2}, s{sHP}, 2\ns_add_u32 s{sT}, s{sT}, s{sT2}\ns_add_u32 s{sT}, s{sT}, s{sW3}')
        a(f's_lshl_b32 s{sOb}, s{sT}, 16\ns_add_u32 s{sOb}, s{sOb}, {WS_OF}\ns_lshl_b32 s{sFO}, s{sT}, 12\ns_add_u32 s{sFO}, s{sFO}, {WS_F2}')
        a(f'v_lshrrev_b32 v{t[2]}, 4, v{lane}\nv_and_b32 v{t[3]}, 15, v{lane}\nv_lshlrev_b32 v{t[4]}, 1, v{t[2]}\nv_xor_b32 v{t[3]}, v{t[3]}, v{t[4]}')
        a(f's_lshr_b32 s{sT}, s{sW3}, 1\ns_lshl_b32 s{sT}, s{sT}, 6\ns_and_b32 s{sT2}, s{sW3}, 1\ns_lshl_b32 s{sT2}, s{sT2}, 4\ns_add_u32 s{sT}, s{sT}, s{sT2}')
        a(f'v_add_u32 v{t[2]}, s{sT}, v{t[2]}\nv_lshlrev_b32 v{t[2]}, 11, v{t[2]}\nv_lshl_add_u32 v{vgo[0]}, v{t[3]}, 4, v{t[2]}')
        a(f's_lshl_b32 s{sT}, s{sMT}, 8\nv_add_u32 v{vgo[0]}, s{sT}, v{vgo[0]}')
        a(f'v_xor_b32 v{vgo[1]}, 128, v{vgo[0]}\nv_add_u32 v{vgo[1]}, {4*2048-1024}, v{vgo[1]}')
        a(f's_and_b32 s{sT2}, s{sHP}, 3\ns_lshl_b32 s{sT2}, s{sT2}, 3\ns_add_u32 s{sT2}, s{sT2}, s{sWave}\ns_lshl_b32 s{sT2}, s{sT2}, 16\ns_add_u32 s{sT}, s{sT}, s{sT2}')
        a(f'v_lshrrev_b32 v{t[2]}, 2, v{lane}\nv_and_b32 v{t[3]}, 3, v{lane}\nv_lshlrev_b32 v{t[3]}, 6, v{t[3]}\nv_lshl_add_u32 v{t[2]}, v{t[2]}, 11, v{t[3]}\nv_add_u32 v{vwt}, s{sT}, v{t[2]}')
        a(f's_lshl_b32 s{sT}, s{sKH}, 11\ns_add_u32 s{sPm}, s{sM4}, s{sT}\ns_add_u32 s{sPo}, s{sOb}, s{sT}\ns_lshl_b32 s{sPw}, s{sKH}, 14')
        a(f's_and_b32 s{sT}, s{sW3}, 1\ns_lshl_b32 s{sT}, s{sT}, 13\nv_add_u32 v{vva[1]}, s{sT}, v{vl16}')
        a(f'v_bfe_u32 v{t[0]}, v{lane}, 2, 3\nv_lshrrev_b32 v{t[1]}, 5, v{lane}\nv_lshl_add_u32 v{t[1]}, v{t[1]}, 4, v{t[0]}\nv_lshlrev_b32 v{t[1]}, 8, v{t[1]}')
        a(f'v_and_b32 v{t[2]}, 3, v{lane}\nv_lshl_add_u32 v{t[1]}, v{t[2]}, 3, v{t[1]}')
        a(f's_lshr_b32 s{sT}, s{sW3}, 1\ns_lshl_b32 s{sT}, s{sT}, 2\nv_xor_b32 v{t[0]}, s{sT}, v{t[0]}\nv_lshl_add_u32 v{vka[1]}, v{t[0]}, 5, v{t[1]}')
        a(f's_lshl_b32 s{sT}, s{sJQ}, 5\ns_add_u32 s{sT}, s{sT}, s{sPi}\ns_lshl_b32 s{sOA}, s{sT}, 11\ns_add_u32 s{sOA}, s{sOA}, {WS_OF}\ns_lshl_b32 s{sF2A}, s{sT}, 7\ns_add_u32 s{sF2A}, s{sF2A}, {WS_F2}')
        a(f's_lshl_b32 s{sT}, s{sMT}, 2\ns_add_u32 s{sT}, s{sT}, s{sW3}\ns_lshl_b32 s{sT}, s{sT}, 1\ns_add_u32 s{sT}, s{sT}, s{sKH}\ns_lshl_b32 s{sT}, s{sT}, 5\ns_add_u32 s{sT}, s{sT}, s{sPi}')
        a(f's_lshl_b32 s{sO}, s{sT}, 11\ns_add_u32 s{sO}, s{sO}, {WS_OF+(1<<22)}\ns_lshl_b32 s{sF2}, s{sT}, 7\ns_add_u32 s{sF2}, s{sF2}, {WS_F2+(1<<18)}')
        a(f'v_mov_b64 {vr(vtag,2)}, 0')
        a(f's_or_b32 s{sT}, s{sHD}, 1\ns_lshl_b32 s{sT}, s{sT}, 3\ns_add_u32 s{sT}, s{sT}, s{sMT}\ns_lshl_b32 s{sT}, s{sT}, 2\ns_add_u32 s{sT}, s{sT}, s{sW3}\ns_lshl_b32 s{sNMo}, s{sT}, 9\ns_add_u32 s{sNMo}, s{sNMo}, {WS_NM}')
        a(f's_add_u32 s{sFQ}, s{sF1}, {WS_FQ-WS_FL}\ns_and_b32 s{sT}, s{sMT}, 4\ns_lshl_b32 s{sT}, s{sT}, 2\ns_lshl_b32 s{sM0}, 15, s{sT}')
        a(f's_lshl_b32 s{sT}, s{sMT}, 2\ns_add_u32 s{sT}, s{sT}, s{sW3}\ns_lshl_b32 s{sM0+1}, 1, s{sT}')
        a(f's_and_b32 s{sT}, s{sMT}, 3\ns_mul_i32 s{sT2}, s{sT}, s{sBR}')
        for i,r in ((1,sM1),(2,sM2),(3,sM3)):
            a(f's_cmp_ge_u32 s{sT2}, {i}\ns_cselect_b32 s{sT3}, {4*(i-1)}, {4*i}\ns_lshl_b32 s{r}, s{sM0}, s{sT3}')
        wt=opt.get('when',[0,0,0,2,1,2,3,3]); assert 1 not in wt[:4] and 0 not in wt[4:]
        a(f's_lshl_b32 s{sT2}, s{sKH}, 2\ns_add_u32 s{sT}, s{sT}, s{sT2}\ns_lshl_b32 s{sT}, s{sT}, 1\ns_lshr_b32 s{sWhen}, {sum(w<<(2*i) for i,w in enumerate(wt))}, s{sT}\ns_and_b32 s{sWhen}, s{sWhen}, 3')
        a(f's_lshl_b32 s{sOc}, s{sHP}, 1\ns_and_b32 s{sT}, s{sW3}, 1\ns_add_u32 s{sOc}, s{sOc}, s{sT}\ns_lshl_b32 s{sOc}, s{sOc}, 18')
        a(f's_lshl_b32 s{sT}, s{sBR}, 11\ns_add_u32 s{sOc}, s{sOc}, s{sT}\ns_lshl_b32 s{sT}, s{sMT}, 8\ns_add_u32 s{sOc}, s{sOc}, s{sT}\ns_lshr_b32 s{sT}, s{sW3}, 1\ns_lshl_b32 s{sT}, s{sT}, 7\ns_add_u32 s{sOc}, s{sOc}, s{sT}')
        a(f'v_mov_b32 v{t[4]}, 0')
        return a
    def groups(a_):
        G=[]
        for x in a_.L:
            x=x.strip()
            if G and (x.startswith('s_cselect') or 'exec' in x or (G[-1][-1].startswith('s_mov_b') and 'exec' in G[-1][-1] and not G[-1][-1].endswith('exec, -1'))): G[-1].append(x)
            else: G.append([x])
        return G
    g1a=opt.get('g1a','')
    def dmaX(s,jj,first):
        o=[[f's_add_u32 m0, s{sXm+jj}, {(s%3)*8192}']+([f's_movk_i32 s{sKX}, {s*128}'] if first else [])]
        o+=[[f'buffer_load_dwordx4 v{vgx[2*jj]}, {sr(sX,4)}, s{sKX} offen{g1a} lds'],[f'buffer_load_dwordx4 v{vgx[2*jj+1]}, {sr(sX,4)}, s{sKX} offen offset:1024{g1a} lds']]
        return o
    def dmaW(n,i,setk=True):
        s,seg=divmod(n,3)
        return [[f's_add_u32 m0, s{sWm+i}, {(n%8)*8192}']+([f's_mov_b32 s{sKW}, {s*64*6144+seg*2048}'] if setk else []),[f'buffer_load_dwordx4 v{vgw[i]}, {sr(sW,4)}, s{sKW} offen{g1a} lds']]
    def flat(groups):
        o=[]
        for gr in groups:
            o+=gr
            if len(gr)==1 and 'm0' in gr[0]: o.append('s_nop 0')
        return o
    cols=[(s,fb) for s in range(3) for fb in range(2)]
    def reads(s,j,b):
        def wr(seg,fb):
            off=((3*s+seg)%8)*8192+j*4096
            return [f'ds_read_b64_tr_b16 {vr(WF[b][seg][fb],2)}, v{vwa[fb]} offset:{off}', f'ds_read_b64_tr_b16 {vr(WF[b][seg][fb]+2,2)}, v{vwa[fb]} offset:{off+512}']
        def xr(m): return [f'ds_read_b128 {vr(XF[b][m],4)}, v{vxa[j]} offset:{(s%3)*8192+m*2048}']
        R=xr(0)
        for c in cols: R+=wr(*c)
        return R+xr(1)+xr(2)+xr(3)
    if opt.get('zord',1):
        mord=[]
        for mb in range(2):
            for seg in (range(3) if mb==0 else range(2,-1,-1)): mord+=[(2*mb,seg,0),(2*mb+1,seg,0),(2*mb+1,seg,1),(2*mb,seg,1)]
    else: mord=[(m,seg,fb) for m in range(4) for seg,fb in (cols if m%2==0 else cols[::-1])]
    def mfmas(b, first):
        M=[]
        for m,seg,fb in mord:
            A_,B_=(WF[b][seg][fb],XF[b][m]) if seg<2 else (XF[b][m],WF[b][seg][fb])
            d=vr(acc[m][seg][fb],4)
            M.append(f'v_mfma_f32_16x16x32_bf16 {d}, {vr(A_,4)}, {vr(B_,4)}, {"0" if first else d}')
        return M
    def stage_full(s):
        return dmaX(s,0,True)+dmaW(3*s,0)+dmaW(3*s+1,0)+dmaW(3*s+2,0)+dmaX(s,1,False)+dmaW(3*s,1)+dmaW(3*s+1,1)+dmaW(3*s+2,1)+dmaX(s,2,False)+dmaX(s,3,False)
    pieces=[(acc[0][1][0],'k',0,0),(acc[0][0][0],'q',0,0),(acc[0][2][1],'v',0,1),(acc[0][2][0],'v',0,0),(acc[1][1][0],'k',0,1),(acc[1][0][0],'q',0,1),
            (acc[2][0][0],'q',1,0),(acc[2][1][0],'k',1,0),(acc[2][2][1],'v',1,1),(acc[2][2][0],'v',1,0),(acc[3][1][0],'k',1,1),(acc[3][0][0],'q',1,1)]
    def done(p): return max(i for i,(m,seg,fb) in enumerate(mord) if p[0]<=acc[m][seg][fb]<p[0]+8)
    pieces.sort(key=done)
    done_at=[done(p) for p in pieces]
    assert min(done_at[10:])>=max(i for i,(m,seg,fb) in enumerate(mord) if seg==2)
    hreg=[H+8+4*i for i in range(10)]+[H,H+4]
    def packi(dst,c,kind):
        o=[f'v_mul_f32 v{c+i}, s{sQS}, v{c+i}' for i in range(8)] if kind=='q' else []
        return o+[f'v_cvt_pk_bf16_f32 v{dst+i}, v{c+2*i}, v{c+2*i+1}' for i in range(4)]
    def gstore(reg,kind,tl,sub):
        if kind=='q': so,off=sQo,tl*2048+sub*256
        else: so,off=(sKV0,sKV1)[tl],(2048 if kind=='v' else 0)+sub*256
        return f'buffer_store_dwordx4 {vr(reg,4)}, v{vst}, {sr(sWS,4)}, s{so} offen offset:{off} sc1'
    def lstore(reg,kind,tl,sub):
        if kind=='q': return f'ds_write_b128 v{g[1]}, {vr(reg,4)} offset:{tl*2048+sub*256}'
        return f'ds_write_b128 v{g[0]}, {vr(reg,4)} offset:{tl*4096+(2048 if kind=="v" else 0)+sub*256}'
    held=[gstore(hreg[i],*p[1:]) for i,p in enumerate(pieces)]
    def g1_loop(old, extra={}, carry=[], pre=[]):
        TR.mark('B0')
        emit(reads(0,0,0))
        pend=[]
        if old: pend=list(carry)
        rest=[]; nl=opt.get('nl',10)
        for s in range(16):
            for j in range(2):
                if j==1 and s<15:
                    assert not pend
                    a(f's_waitcnt vmcnt({(w1 if s==0 else 12) if s<14 else 0}) lgkmcnt(0)' if old else ('s_waitcnt vmcnt(0) lgkmcnt(0)' if s==nl+2 else 's_waitcnt lgkmcnt(0)'))
                    if s==nl+2:
                        Lc=lab('DC'); D=lab('DD')
                        a(f'v_cmp_eq_u32 vcc, 1, v{vtag+1}\ns_cmp_eq_u64 vcc, -1\ns_cbranch_scc0 {Lc}\n{D}:\nv_not_b32 v{vtag+1}, v{vtag}')
                        tail(f'{Lc}:\ns_mov_b32 s{sSpin}, 0\n{Lc}x:\nglobal_load_dwordx2 {vr(vtag,2)}, v{t[4]}, s[{pDbg}:{pDbg+1}] sc1\ns_waitcnt vmcnt(0)')
                        tail(f'v_cmp_eq_u32 vcc, 1, v{vtag+1}\ns_cmp_eq_u64 vcc, -1\ns_cbranch_scc1 {D}')
                        tail(f's_add_u32 s{sSpin}, s{sSpin}, 1\ns_cmp_lt_u32 s{sSpin}, {SPIN}\ns_cbranch_scc1 {Lc}x\ns_branch {D}')
                    if old and s==14 and opt.get('visit',1):
                        Lx=lab('VX'); Le=lab('VE')
                        a(f's_cmp_eq_u32 s{sBR}, 1\ns_cbranch_scc1 {Lx}'); emit(visit('YOLD')); a(f's_branch {Le}\n{Lx}:'); emit(visit('XOLD')); a(f'{Le}:')
                    a('s_barrier')
                    if not old:
                        if s+1 in opt.get('gyb',[]): a(f's_branch GYB{s+1}\n.p2align 12')
                        a(f'GYB{s+1}:')
                    if s%2==1 or (s<6 and opt.get('g1tr')): TR.mark(f'B{s+1}')
                    sn=s+1
                    if old:
                        if 3*sn+5<48: pend+=dmaW(3*sn+5,0)+dmaW(3*sn+5,1,False)
                        if sn+2<16: pend+=dmaX(sn+2,0,True)+dmaW(3*sn+6,0)+dmaW(3*sn+7,0)+dmaX(sn+2,1,False)+dmaW(3*sn+6,1)+dmaW(3*sn+7,1)+dmaX(sn+2,2,False)+dmaX(sn+2,3,False)
                else:
                    a('s_waitcnt lgkmcnt(0)'); TR.commit()
                R=reads(s,1,1) if j==0 else (reads(s+1,0,0) if s<15 else [])
                M=mfmas(j, s==0 and j==0)
                fill=[[] for _ in M]
                for q,r_ in enumerate(R): fill[q].append(r_)
                step=1 if (s==0 and j==0) else 2
                for sl in range(0,24,step):
                    if pend: fill[sl]+=pend.pop(0)
                    while s==0 and j==0 and len(pend)>23-sl:
                        if len(fill[sl])>0 and 'm0' in fill[sl][-1]: fill[sl].append('s_nop 0')
                        fill[sl]+=pend.pop(0)
                ser=opt.get('ser',{'0':130,'1':110,'2':70})
                head=[]
                if j==1 and str(s) in ser:
                    k_=0
                    while pre and k_<ser[str(s)]:
                        gr=pre.pop(0); head+=gr; k_+=len(gr)
                if s>=opt.get('pc0',8):
                    for sl in range(16,24):
                        k_=0
                        while pre and k_<opt.get('pcn',2):
                            gr=pre.pop(0); fill[sl]+=gr; k_+=len(gr)
                if (s,j)==(nl,0): assert not pre
                emit(head)
                if (s,j) in extra: fill[18]+=extra[(s,j)]
                if (s,j)==(nl,0): fill[21]+=[f'global_load_dwordx2 {vr(vtag,2)}, v{t[4]}, s[{pDbg}:{pDbg+1}] sc1']
                if (s,j)==(15,1):
                    qq=[]
                    for i,p in enumerate(pieces):
                        qq+=[(done_at[i],x) for x in packi(hreg[i],p[0],p[1])]
                    pos=[0]*24; cnt=0
                    for sl in range(24):
                        pos[sl]=cnt; cnt+=1
                        n_=0
                        while qq and n_<2 and qq[0][0]<=sl and cnt-pos[qq[0][0]]-1>=8:
                            fill[sl].append(qq.pop(0)[1]); cnt+=1; n_+=1
                    for d,x in qq:
                        gap=cnt-pos[d]-1
                        if gap<8: rest.append(f's_nop {7-gap}'); cnt+=8-gap
                        rest.append(x); cnt+=1
                emit(interleave(M,fill))
        assert not pend
        return rest
    if_young('G1Y')
    a(f'v_lshrrev_b32 v{t[2]}, 3, v{lane}\nv_and_b32 v{t[3]}, 7, v{lane}\nv_lshrrev_b32 v{t[4]}, 4, v{lane}')
    a(f's_lshl_b32 s{sT}, s{sMT}, 8\ns_lshl_b32 s{sT2}, s{sWave}, 6\ns_add_u32 s{sT}, s{sT}, s{sT2}')
    a(f'v_add_u32 v{vdum}, s{sT}, v{t[2]}\nv_lshlrev_b32 v{vdum}, 11, v{vdum}')
    a(f'v_xor_b32 v{t[0]}, v{t[3]}, v{t[4]}\nv_lshl_add_u32 v{t[0]}, v{t[0]}, 4, v{vdum}')
    a(f'v_xor_b32 v{t[1]}, 64, v{t[0]}\nv_add_u32 v{t[1]}, {8*2048-1024}, v{t[1]}')
    a(f's_and_b32 s{sT2}, s{sHP}, 3\ns_mul_i32 s{sT3}, s{sWave}, 24576')
    for jj in range(4):
        a(f's_xor_b32 s{sT}, s{sT2}, {jj}\ns_lshl_b32 s{sXm+jj}, s{sT}, 11\ns_add_u32 s{sXm+jj}, s{sXm+jj}, s{sT3}\ns_lshl_b32 s{sT}, s{sT}, 15')
        a(f'v_add_u32 v{vgx[2*jj]}, s{sT}, v{t[0]}\nv_add_u32 v{vgx[2*jj+1]}, s{sT}, v{t[1]}')
    a(f's_and_b32 s{sT2}, s{sMT}, 1\ns_lshl_b32 s{sT}, s{sWave}, 1\ns_add_u32 s{sT}, s{sT}, s{sT2}')
    a(f's_lshl_b32 s{sWm}, s{sT}, 10\ns_add_u32 s{sWm}, s{sWm}, {96*K}\ns_xor_b32 s{sWm+1}, s{sWm}, 1024')
    a(f's_lshl_b32 s{sT}, s{sT}, 3\nv_add_u32 v{vdum}, s{sT}, v{t[2]}\nv_xor_b32 v{t[0]}, 8, v{vdum}')
    a(f'v_mul_u32_u24 v{vdum}, 6144, v{vdum}\nv_mul_u32_u24 v{t[0]}, 6144, v{t[0]}')
    a(f's_lshl_b32 s{sT2}, s{sT2}, 2\nv_and_b32 v{t[4]}, 1, v{t[4]}\nv_lshl_add_u32 v{t[4]}, v{t[4]}, 1, s{sT2}\nv_xor_b32 v{t[4]}, v{t[4]}, v{t[3]}')
    a(f's_lshl_b32 s{sT}, s{sHP}, 7\nv_lshl_add_u32 v{t[4]}, v{t[4]}, 4, s{sT}')
    a(f'v_add_u32 v{vgw[0]}, v{t[4]}, v{vdum}\nv_xor_b32 v{t[4]}, 64, v{t[4]}\nv_add_u32 v{vgw[1]}, v{t[4]}, v{t[0]}')
    a('s_waitcnt lgkmcnt(0)')
    pt=opt.get('ptr') and TR.on
    if pt: TR.now('karg')
    order=opt.get('pro','X00 W00 X01 D W01 X02 X03 X10 W10 X11 W11 X12 X13 | W20 X20 W21 X21 X22 X23').split()
    def tok(x):
        s_,q_=int(x[1]),int(x[2])
        if x[0]=='X': return dmaX(s_,q_,True)
        o=[]
        for seg in range(3 if s_<2 else 2): o+=dmaW(3*s_+seg,q_)
        return o
    nld=lambda x: 0 if x in 'D|' else (2 if x[0]=='X' or x[1]=='2' else 3)
    bi=order.index('|')
    for x in order[:bi]:
        if x=='D': g1_dsaddr()
        else: emit(flat(tok(x)))
    assert not any(x[1]=='0' for x in order[bi+1:])
    l0=max(i for i,x in enumerate(order) if len(x)==3 and x[1]=='0'); l1=max(i for i,x in enumerate(order) if len(x)==3 and x[1]=='1')
    carry=[]
    for x in order[bi+1:]: carry+=tok(x)
    w1=sum(nld(x) for x in order[l1+1:])
    if pt: TR.now('iss')
    if pt: a(f's_waitcnt vmcnt({sum(nld(x) for x in order[l0+1:bi])})'); TR.now('land')
    a(f'G1O:\ns_waitcnt vmcnt({sum(nld(x) for x in order[l0+1:bi])})\ns_barrier')
    ntr0=TR.n
    rest=g1_loop(True,{},carry,groups(precompute()))
    emit(rest)
    TR.now('mainend')
    a(f's_cmp_eq_u32 s{sBR}, 0\ns_cbranch_scc1 YOLD\ns_branch XOLD')
    urg=[held[i] for i,p in enumerate(pieces) if p[1]!='q']
    heldq=[held[i] for i,p in enumerate(pieces) if p[1]=='q']
    def old_epi(X):
        ls=[lstore(hreg[i],*p[1:]) for i,p in enumerate(pieces)]
        mode=opt.get('xurg','first') if X else opt.get('yurg','mix')
        u_=[when(0,urg)] if X else urg
        if mode=='wait': emit(ls+['s_waitcnt lgkmcnt(0)']+u_)
        elif mode=='first': emit(u_+ls)
        else:
            for i,p in enumerate(pieces):
                if p[1]!='q': a(held[i])
                a(ls[i])
    if opt.get('gya',1): a('.p2align 12')
    a('G1Y:')
    ntr1=TR.n; TR.n=ntr0
    if pt: TR.n-=3; TR.now('karg')
    vpf=vgx[4]
    a(f's_lshl_b32 s{sT}, s{sMT}, 4\ns_add_u32 s{sT}, s{sT}, s{sHP}\ns_and_b32 s{sT2}, s{sT}, 1\ns_lshr_b32 s{sT}, s{sT}, 1\ns_lshl_b32 s{sT3}, s{sW3}, 6\ns_add_u32 s{sT}, s{sT}, s{sT3}')
    a(f's_mul_i32 s{sT}, s{sT}, 6144\ns_lshl_b32 s{sT2}, s{sT2}, 10\ns_add_u32 s{sT}, s{sT}, s{sT2}\ns_add_u32 s{sT}, s{sT}, 384')
    a(f'v_min_u32 v{t[2]}, 5, v{lane}\nv_lshrrev_b32 v{t[3]}, 1, v{t[2]}\nv_and_b32 v{t[2]}, 1, v{t[2]}\nv_lshlrev_b32 v{t[2]}, 6, v{t[2]}\nv_lshl_add_u32 v{t[2]}, v{t[3]}, 11, v{t[2]}\nv_add_u32 v{vpf}, s{sT}, v{t[2]}')
    a('s_waitcnt lgkmcnt(0)')
    if opt.get('vp0',0): a(f'buffer_load_dword v{vdum}, v{vpf}, {sr(sW,4)}, 0 offen')
    g1_dsaddr()
    if opt.get('xt'):
        nst=opt['xt']
        a(f's_lshl_b32 s{sT}, s{sMT}, 4\ns_add_u32 s{sT}, s{sT}, s{sHP}\ns_lshl_b32 s{sT}, s{sT}, 2\ns_add_u32 s{sT}, s{sT}, s{sW3}\ns_lshl_b32 s{sT}, s{sT}, 13\ns_add_u32 s{sT}, s{sT}, {opt.get("xt0",1)*128}')
        a(f'v_lshrrev_b32 v{t[2]}, 4, v{lane}\nv_and_b32 v{t[3]}, 15, v{lane}\nv_min_u32 v{t[3]}, {2*nst-1}, v{t[3]}\nv_lshlrev_b32 v{t[3]}, 6, v{t[3]}\nv_lshl_add_u32 v{t[2]}, v{t[2]}, 11, v{t[3]}')
        a(f'buffer_load_dword v{vdum}, v{t[2]}, {sr(sX,4)}, s{sT} offen')
    if opt.get('wt'):
        a(f's_min_u32 s{sT}, s{sW3}, {opt["wt"]-1}\ns_add_u32 s{sT}, s{sT}, {opt.get("xt0",1)}\ns_lshl_b32 s{sT}, s{sT}, 3\ns_add_u32 s{sT}, s{sT}, s{sMT}\ns_mul_i32 s{sT}, s{sT}, {8*6144}\ns_lshl_b32 s{sT2}, s{sHP}, 7\ns_add_u32 s{sT}, s{sT}, s{sT2}')
        a(f'v_min_u32 v{t[2]}, 47, v{lane}\nv_and_b32 v{t[3]}, 1, v{t[2]}\nv_lshrrev_b32 v{t[2]}, 1, v{t[2]}\nv_lshlrev_b32 v{t[3]}, 6, v{t[3]}\nv_lshl_add_u32 v{t[2]}, v{t[2]}, 11, v{t[3]}')
        a(f'buffer_load_dword v{vdum}, v{t[2]}, {sr(sW,4)}, s{sT} offen')
    sp_=opt.get('spf',[])
    if sp_:
        a(f's_lshl_b32 s{sXm}, s{sMT}, 4\ns_add_u32 s{sXm}, s{sXm}, s{sHP}\ns_lshl_b32 s{sXm}, s{sXm}, 2\ns_add_u32 s{sXm}, s{sXm}, s{sW3}\ns_lshl_b32 s{sXm}, s{sXm}, 13')
        a(f's_lshl_b32 s{sXm+1}, s{sMT}, 2\ns_add_u32 s{sXm+1}, s{sXm+1}, s{sW3}\ns_mul_i32 s{sXm+1}, s{sXm+1}, 12288\ns_lshl_b32 s{sT}, s{sHP}, 7\ns_add_u32 s{sXm+1}, s{sXm+1}, s{sT}')
    def spf(s_,what='xw'):
        o=[]
        if 'w' in what: o+=[f's_add_u32 s{sXm+4}, s{sXm+1}, {s_*64*6144}']+[f's_load_dwordx2 s[{sXm+2}:{sXm+3}], s[{sW}:{sW+1}], s{sXm+4} offset:{i*2048+60}' for i in range(6)]
        if 'x' in what: o+=[f's_load_dwordx2 s[{sXm+2}:{sXm+3}], s[{sX}:{sX+1}], s{sXm} offset:{i*2048+s_*128+60}' for i in range(4)]
        return o
    if sp_: emit(spf(sp_[0],opt.get('spw','xw')))
    if opt.get('ctouch0',1):
        a(f's_getpc_b64 s[4:5]\nG1PC:\ns_lshr_b32 s{sT}, s2, 3\ns_lshl_b32 s{sT}, s{sT}, 2\ns_add_u32 s{sT}, s{sT}, s{sW3}\ns_mul_i32 s{sT}, s{sT}, 320')
        a(f's_sub_u32 s4, s4, G1PC-G1O\ns_subb_u32 s5, s5, 0')
        for i in range(5): a(f's_load_dword s{sSpin}, s[4:5], s{sT} offset:{i*64}')
    if opt.get('tlbw',1):
        a(f's_lshl_b32 s{sK}, s{sW3}, 20\ns_add_u32 s{sK}, s{sK}, {2<<20}\ns_load_dword s{sSpin}, s[{sW}:{sW+1}], s{sK}')
    if opt.get('tlb',0)>=1:
        a(f's_bfe_u32 s{sK}, s2, 0x30003\ns_lshl_b32 s{sK}, s{sK}, 2\ns_add_u32 s{sK}, s{sK}, s{sW3}\ns_min_u32 s{sK}, s{sK}, 16\ns_lshl_b32 s{sK}, s{sK}, 21\ns_load_dword s{sSpin}, s[{sWS}:{sWS+1}], s{sK}')
    if opt.get('tlb',0)>=2:
        a(f's_lshl_b32 s{sK}, s{sW3}, 21\ns_load_dword s{sSpin}, s[{sOut}:{sOut+1}], s{sK}\ns_load_dword s{sSpin}, s[{sWo}:{sWo+1}], 0')
    a(f's_lshl_b32 s{sT}, s2, 3\ns_add_u32 s{sT}, s{sT}, s{sWave}\ns_cmp_eq_u32 s{sT}, 7\ns_cbranch_scc0 G1Y1')
    a(f's_mov_b64 exec, 1\nv_mov_b32 v{vgx[2]}, {WS_EP}\nv_mov_b32 v{vgx[3]}, 0')
    a(f'global_load_dword v{vgx[0]}, v{vgx[2]}, s[{sWS}:{sWS+1}] sc1\nv_mov_b32 v{vgx[1]}, 1\ns_waitcnt vmcnt(0)')
    a(f'v_add_u32 v{vgx[0]}, 1, v{vgx[0]}')
    a(f'global_store_dword v{vgx[2]}, v{vgx[0]}, s[{sWS}:{sWS+1}] sc1\nglobal_store_dwordx2 v{vgx[3]}, {vr(vgx[0],2)}, s[{pDbg}:{pDbg+1}] sc1')
    a('s_mov_b64 exec, -1\nG1Y1:')
    pc=precompute()
    vfw=vgx[6]
    pc(f'v_bfe_u32 v{t[2]}, v{lane}, 3, 1\nv_and_b32 v{t[3]}, 0x70, v{vl16}\nv_lshl_add_u32 v{vfw}, v{t[2]}, 12, v{t[3]}\nv_lshl_add_u32 v{t[3]}, v{t[2]}, 14, v{t[3]}')
    pc(f'v_xor_b32 v{t[2]}, s{sF2}, v{vfw}\nv_xor_b32 v{vfw}, s{sF1}, v{vfw}\nv_xor_b32 v{t[3]}, s{sF2A}, v{t[3]}\nv_mov_b32 v{t[1]}, v{vfw}')
    pc(f's_mov_b64 exec, 0xffff0000\nv_mov_b32 v{vfw}, v{t[3]}\ns_mov_b32 exec_lo, 0\ns_mov_b32 exec_hi, -1\nv_mov_b32 v{vfw}, v{t[2]}\ns_mov_b32 exec_hi, 0xffff0000\nv_add_u32 v{vfw}, {WS_FQ-WS_FL}, v{t[1]}\ns_mov_b64 exec, -1')
    if opt.get('fwarm',1): pc(f'buffer_store_dwordx4 {vr(vtag,4)}, v{vfw}, {sr(sWS,4)}, 0 offen sc1')
    pcy=groups(pc)
    if not opt.get('ypre',0):
        for s_ in sp_[1:]: emit(spf(s_,opt.get('spw','xw')))
    if opt.get('ypre',0):
        for i,gr in enumerate(pcy):
            emit(gr)
            for q,s_ in enumerate(sp_[1:]):
                if i==(q+1)*len(pcy)//len(sp_): emit(spf(s_,opt.get('spw','xw')))
        pcy=[]
    ex={}
    for gi,pos in enumerate(opt.get('vp',[0,4,8])):
        ex[(pos,0)]=[f's_mov_b32 s{sK}, {(gi+1)*4*64*6144}', f'buffer_load_dword v{vdum}, v{vpf}, {sr(sW,4)}, s{sK} offen']
    if opt.get('ctouch',1):
        a(f's_getpc_b64 s[4:5]\nG1PD:\ns_add_u32 s4, s4, XOLD-G1PD\ns_addc_u32 s5, s5, 0\ns_lshr_b32 s{sT}, s2, 3\ns_lshl_b32 s{sT}, s{sT}, 11\nv_and_b32 v{vgx[5]}, 31, v{lane}\nv_lshl_add_u32 v{vgx[5]}, v{vgx[5]}, 6, s{sT}')
        a(f'v_min_u32 v{vgx[5]}, CODE_END-XOLD-64, v{vgx[5]}')
        Lc=lab('CT')
        ex[(opt.get('ctpos',13),0)]=[f's_cmp_lg_u32 s{sWave}, 4', f's_cbranch_scc1 {Lc}', f'global_load_dword v{vdum}, v{vgx[5]}, s[4:5]', f'{Lc}:']
    if pt: TR.mark('iss'); a('s_waitcnt lgkmcnt(0)'); TR.commit(); TR.now('land')
    a('s_barrier')
    rest=g1_loop(False,ex,[],pcy)
    emit(rest)
    TR.now('mainend')
    assert TR.n==ntr1
    a(f's_cmp_eq_u32 s{sBR}, 0\ns_cbranch_scc1 YPATH\ns_branch XPATH\nGYB16:')
    import fy2
    fy2.rest_of_kernel(locals())
    a('END:\ns_endpgm')
    entry('YHOT',9); a.L+=hot.L
    build0.trmap=TR.map
    return '; @launch grid=(256,1,1) block=(512,1,1) lds=163840\n.amdgcn_target "amdgcn-amd-amdhsa--gfx950"\n'+kernel_header(NAME)+a.text()+tail.text()+'CODE_END:\n    s_endpgm\n'+'.section .rodata,"a"\n.p2align 6\n'+kernel_desc(NAME,256)
def build(stamps=False,opt={}):
    import subprocess, os, tempfile
    opt=dict(opt)
    if opt.get('auto',1) and 'dx' not in opt:
        src=build0(stamps,opt)
        d=tempfile.mkdtemp(); open(d+'/a.s','w').write(src)
        subprocess.run(['clang','-x','assembler','-target','amdgcn-amd-amdhsa','-mcpu=gfx950','-c',d+'/a.s','-o',d+'/a.o'],check=True)
        sym={}
        for l in subprocess.run(['llvm-readelf','-s',d+'/a.o'],capture_output=True,text=True).stdout.split('\n'):
            f=l.split()
            if len(f)==8 and f[0].endswith(':') and f[0][:-1].isdigit(): sym[f[7]]=int(f[1],16)
        if opt.get('gya',1):
            pos=sym['GYB1']-sym['G1Y']; br_=[]
            for q in range(1,16):
                sz=sym[f'GYB{q+1}']-sym[f'GYB{q}']
                if (pos+sz+8)//4096!=pos//4096: br_.append(q); pos=(pos//4096+1)*4096
                pos+=sz
            opt['gyb']=br_
        for r in 'XY':
            base=sym[r+'OLD']&~4095; sl=[sym[f'{r}S{n}']-base for n in range(65)]; end=sym[r+'END']-base
            best=None
            for dl in range(0,4096,64):
                sc=0
                for c in range(4096,end+dl,4096):
                    p=c-dl
                    if p<sl[0] or p>=sl[64]: sc+=10; continue
                    n=max(i for i in range(64) if sl[i]<=p); fr=(p-sl[n])/(sl[n+1]-sl[n])
                    lead=((n+fr)-0.6)%2
                    if n%8==6 and n<63: lead=0
                    if n<2: lead=min(lead,0.5)
                    sc+=max(0,1.2-lead)
                if best is None or sc<best[0]: best=(sc,dl)
            opt['d'+r.lower()]=best[1]
    src=build0(stamps,opt); build.trmap=build0.trmap; build.pads=(opt.get('dx'),opt.get('dy'))
    return src
if __name__=='__main__':
    opt=json.loads(sys.argv[2]) if len(sys.argv)>2 else {}
    ref=open('concat_heads__sliding_block__softmax_full_mha__prompt.s.ref').read().split('\n')
    open(sys.argv[1],'w').write('\n'.join(ref[:10])+'\n'+build(False,opt))
```

```python
from asm import *
from fy import *
def rest_of_kernel(U):
    a,tail,opt,TR,stamps=U['a'],U['tail'],U['opt'],U['TR'],U['stamps']
    lab,emit,if_young,if_old,old_block,young_block=U['lab'],U['emit'],U['if_young'],U['if_old'],U['old_block'],U['young_block']
    flag_load,flag_test,flag_check,flag_post,zero,held,old_epi=U['flag_load'],U['flag_test'],U['flag_check'],U['flag_post'],U['zero'],U['held'],U['old_epi']
    urg,heldq,when,flag_load64,flag_check64=U['urg'],U['heldq'],U['when'],U['flag_load64'],U['flag_check64']
    post_if,masked=U['post_if'],U['masked']
    cY=f's_cmp_eq_u32 s{sKH}, 1'; cW=lambda k: f's_cmp_eq_u32 s{sWhen}, {k}'
    visit,entry,hot=U['visit'],U['entry'],U['hot']
    def ldws(so,c): return f'buffer_load_dwordx4 v{vl16}, {sr(sWS,4)}, s{so} offen offset:{c*1024} sc1 lds'
    asst=opt.get('asst',0)
    def chunkB(s,X):
        if asst and not X:
            if s==7: return [f's_lshl_b32 s{sK}, s{sMT}, 15', f's_add_u32 s{sK}, s{sK}, s{sKVB}']
            return chunkB(s+1,True)
        if X and 1<=s<=3: su=[f's_and_b32 s{sK}, s{sMT}, 3', f's_cmp_ge_u32 s{sK}, {s}', f's_cselect_b32 s{sK}, {s-1}, {s}', f's_and_b32 s{sT3}, s{sMT}, 4', f's_or_b32 s{sK}, s{sK}, s{sT3}']
        else: su=[f's_and_b32 s{sK}, s{sMT}, 4', f's_xor_b32 s{sK}, s{sK}, {s}']
        return su+[f's_lshl_b32 s{sK}, s{sK}, 15', f's_add_u32 s{sK}, s{sK}, s{sKVB}']
    def chunkA(i):
        su=[f's_max_u32 s{sK}, s{sMT}, 1', f's_sub_u32 s{sK}, s{sK}, 1', f's_lshl_b32 s{sK}, s{sK}, 15'] if i==0 else [f's_lshl_b32 s{sK}, s{sMT}, 15']
        return su+[f's_add_u32 s{sK}, s{sK}, s{sKVA}']
    def dma4(lds,su):
        o=su+[f's_add_u32 s{sK}, s{sK}, s{sM8}']
        for i in range(2):
            o+=[f's_add_u32 m0, s{sM8}, {lds+i*4096}', f's_add_u32 s{sK}, s{sK}, 4096' if i else 's_nop 0']+[ldws(sK,c) for c in range(4)]
        return o
    def dma8(lds,su):
        return [(su+[f's_add_u32 s{sK}, s{sK}, s{sMw}', f's_add_u32 m0, s{sMw}, {lds}'],ldws(sK,0))]+[([],ldws(sK,c)) for c in range(1,4)]
    def ldW(i,off): return f'buffer_load_dwordx4 v{vgo[i]}, {sr(sWo,4)}, s{sK} offen offset:{off}{opt.get("wa","")} lds'
    def outW(s):
        b=OSL[s%5]
        return [([f's_add_u32 m0, s{sM4}, {b+16384}', f's_xor_b32 s{sK}, s{sWb}, {((s>>3)<<16)+(s&7)*128*2048}'],ldW(0,0)),([],ldW(1,1024)),([f's_add_u32 s{sK}, s{sK}, {8*2048-2048}'],ldW(0,2048)),([],ldW(1,3072))]
    def outO(s):
        b=OSL[s%5]
        return [([f's_add_u32 m0, s{sM4}, {b}', f's_xor_b32 s{sK}, s{sSp}, {s*4096}', f's_add_u32 s{sK}, s{sK}, s{sOb}'],ldws(sK,0))]+[([],ldws(sK,c)) for c in range(1,4)]
    def outHalf(s):
        b=OSL[s%5]
        return [([f's_add_u32 m0, s{sPm}, {b+16384}', f's_xor_b32 s{sK}, s{sWb}, {(s&7)*128*2048}', f's_add_u32 s{sK}, s{sK}, s{sPw}'],ldW(0,0)),([],ldW(1,1024)),
                ([f's_add_u32 m0, s{sPm}, {b}', f's_xor_b32 s{sK}, s{sSp}, {s*4096}', f's_add_u32 s{sK}, s{sK}, s{sPo}'],ldws(sK,0)),([],ldws(sK,1))]
    def fl(items):
        o=[]
        for su,v in items: o+=su+[v]
        return o
    def QK(sb,kb,q,c):
        return [f'v_mfma_f32_32x32x16_bf16 {vr(sb,16)}, {vr(kb,4)}, {vr(q,4)}, {c}', f'v_mfma_f32_32x32x16_bf16 {vr(sb,16)}, {vr(kb+4,4)}, {vr(q+4,4)}, {vr(sb,16)}']
    def PV(o,vb,sb,c): return f'v_smfmac_f32_32x32x32_bf16 {vr(o,16)}, {vr(vb+4*c,4)}, {vr(sb+8*c,8)}, v{vidx}'
    def SM(l,sb,c): return f'v_smfmac_f32_16x16x64_bf16 {vr(l,4)}, {vr(SEL,4)}, {vr(sb+8*c,8)}, v{vidx}'
    def maxtree(dst, sb, first):
        o=[]
        if first:
            o.append(f'v_max3_f32 v{dst}, v{sb}, v{sb+1}, v{sb+2}')
            for i in range(3,15,2): o.append(f'v_max3_f32 v{dst}, v{dst}, v{sb+i}, v{sb+i+1}')
            o.append(f'v_max_f32 v{dst}, v{dst}, v{sb+15}')
        else:
            for i in range(0,16,2): o.append(f'v_max3_f32 v{dst}, v{dst}, v{sb+i}, v{sb+i+1}')
        return o
    def finish_max(A,mx,tmp,nm,offs,fill=True):
        A(f'v_mov_b32 v{tmp}, v{mx}\ns_nop 1\nv_permlane32_swap_b32 v{tmp}, v{mx}\ns_nop 1\nv_max_f32 v{mx}, v{mx}, v{tmp}')
        A(f'v_sub_f32 v{nm}, {offs}, v{mx}')
        if fill:
            A(f'v_mov_b32 v{nm+1}, v{nm}')
            for i in range(2,16,2): A(f'v_mov_b64 {vr(nm+i,2)}, {vr(nm,2)}')
    def slot(sc, prev, nxt, cur, F):
        E=[f'v_exp_f32 v{sc+i}, v{sc+i}' for i in range(16)]
        g=lambda k: F.get(k,[])
        seq=E[0:2]
        if prev: seq+=[prev[0]]+g('S1')+E[2:3]+[prev[1]]+g('P1')
        else: seq+=g('S1')+E[2:3]+g('P1')
        seq+=E[3:6]
        if nxt: seq+=[nxt[0]]+g('Q0')+E[6:9]+[nxt[1]]+g('Q1')
        else: seq+=g('Q0')+E[6:9]+g('Q1')
        seq+=E[9:12]+[cur[0]]+g('S0')+E[12:13]+[cur[1]]+g('P0')+E[13:16]
        emit(seq)
    def ostore(dst,isA): return [f'buffer_store_dwordx4 {vr(dst+4*c,4)}, v{vos}, {sr(sWS,4)}, s{sOA if isA else sO} offen offset:{c*512} sc1' for c in range(2)]
    def finalize(o,l,q,dst,isA,lds=False,store=True):
        FB=lab('FB'); RT=lab('RT')
        a(f'v_rcp_f32 v{t[0]}, v{l}\nv_cmp_gt_f32 s[4:5], s{sC2}, v{l}')
        a(f'v_maximum3_f32 v{t[1]}, abs(v{o}), abs(v{o+1}), 0')
        for i in range(2,16,2): a(f'v_maximum3_f32 v{t[1]}, abs(v{o+i}), abs(v{o+i+1}), v{t[1]}')
        a(f'v_cmp_gt_f32 s[6:7], s{sC1}, v{t[1]}\nv_cmp_lt_f32 vcc, s{sC0}, v{t[1]}')
        a(f's_and_b64 s[4:5], s[4:5], s[6:7]\ns_and_b64 s[4:5], s[4:5], vcc\ns_cmp_eq_u64 s[4:5], -1\ns_cbranch_scc0 {FB}\n{RT}:')
        for i in range(16): a(f'v_mul_f32 v{o+i}, v{t[0]}, v{o+i}')
        for i in range(8): a(f'v_cvt_pk_bf16_f32 v{dst+i}, v{o+2*i}, v{o+2*i+1}')
        if store: emit(ostore(dst,isA))
        T=tail; C=NM[0]; nm=t[1]
        T(f'{FB}:')
        if isA: T(f's_min_u32 s{sN}, s{sJQ}, 8\ns_add_u32 s{sN}, s{sN}, 1')
        else: T(f's_mov_b32 s{sN}, 64')
        T(f'v_mov_b32 v{t[4]}, 0xff800000\nv_mov_b32 v{nm}, 0')
        for ps in range(2):
            LP=lab('FL')
            if ps==1:
                finish_max(T,t[4],t[2],nm,'0',fill=False); zero(T,o,16); zero(T,l,4)
            T(f's_mov_b32 s{sCnt}, 0\n{LP}:')
            if isA:
                T(f's_sub_u32 s{sT}, s{sJQ}, s{sCnt}\ns_lshl_b32 s{sT}, s{sT}, 12\ns_add_u32 s{sT}, s{sT}, s{sKVA}')
                T(f's_mov_b32 s{sMa}, 0\ns_mov_b32 s{sMb}, {f2u(2.0**100)}\ns_cmp_eq_u32 s{sCnt}, 0\ns_cselect_b32 s{sMa}, 1.0, s{sMa}\ns_cselect_b32 s{sMb}, 0, s{sMb}')
                T(f's_cmp_eq_u32 s{sCnt}, 8\ns_cselect_b32 s{sMa}, -1.0, s{sMa}\ns_cselect_b32 s{sMb}, 0, s{sMb}')
            else:
                T(f's_lshl_b32 s{sT}, s{sCnt}, 12\ns_add_u32 s{sT}, s{sT}, s{sKVB}\ns_mov_b32 s{sMa}, 0\ns_mov_b32 s{sMb}, {f2u(2.0**100)}')
            if lds:
                T(f's_sub_u32 s{sT}, 8, s{sCnt}\ns_lshl_b32 s{sT}, s{sT}, 12\nv_add_u32 v{t[2]}, s{sT}, v{vka[0]}\nv_add_u32 v{t[3]}, s{sT}, v{vva[0]}')
                for c in range(2): T(f'ds_read_b128 {vr(KF[0]+4*c,4)}, v{t[2]} offset:{c*1024}\nds_read_b128 {vr(VF[0]+4*c,4)}, v{t[3]} offset:{2048+c*1024}')
                T('s_waitcnt lgkmcnt(0)')
            else:
                for c in range(2): T(f'buffer_load_dwordx4 {vr(KF[0]+4*c,4)}, v{vkp}, {sr(sWS,4)}, s{sT} offen offset:{c*1024} sc1')
                if ps==1:
                    for c in range(2): T(f'buffer_load_dwordx4 {vr(VF[0]+4*c,4)}, v{vl16}, {sr(sWS,4)}, s{sT} offen offset:{2048+c*1024} sc1')
            T(f'v_mov_b32 v{t[3]}, s{sMb}')
            for r in range(16): T(f'v_fma_f32 v{C+r}, v{XM+r}, s{sMa}, v{t[3]}\nv_min_f32 v{C+r}, v{C+r}, v{nm}')
            T('s_waitcnt vmcnt(0)\ns_nop 0')
            for x in QK(S[0],KF[0],q,vr(C,16)): T(x)
            T('s_nop 11')
            if ps==0:
                for x in maxtree(t[4],S[0],False): T(x)
            else:
                for i in range(16): T(f'v_exp_f32 v{S[0]+i}, v{S[0]+i}')
                T('s_nop 1')
                for c in range(2): T(SM(l,S[0],c)); T(PV(o,VF[0],S[0],c))
            T(f's_add_u32 s{sCnt}, s{sCnt}, 1\ns_cmp_lt_u32 s{sCnt}, s{sN}\ns_cbranch_scc1 {LP}')
        T(f's_nop 11\nv_rcp_f32 v{t[0]}, v{l}\ns_nop 0')
        T(f's_branch {RT}')
    def o_addr(br_o):
        if br_o: o=[f's_lshl_b32 s{sT}, s{sMT}, 2', f's_add_u32 s{sT}, s{sT}, s{sW3}', f's_lshl_b32 s{sT}, s{sT}, 1', f's_add_u32 s{sT}, s{sT}, s{sKH}', f's_lshl_b32 s{sT}, s{sT}, 5']
        else: o=[f's_lshl_b32 s{sT}, s{sJQ}, 5']
        return o+[f's_add_u32 s{sT}, s{sT}, s{sPi}', f's_lshl_b32 s{sO}, s{sT}, 11', f's_add_u32 s{sO}, s{sO}, {WS_OF+(br_o<<22)}', f's_lshl_b32 s{sF2}, s{sT}, 7', f's_add_u32 s{sF2}, s{sF2}, {WS_F2+(br_o<<18)}']
    W0=['s_waitcnt vmcnt(0)']
    ysi=opt.get('ysi',0)
    wo_=opt.get('wo',[]); wy_=opt.get('wy',[])
    def standin_local():
        pcs,hreg=U['pieces'],U['hreg']
        reg={(p[1],2*p[2]+p[3]):hreg[i] for i,p in enumerate(pcs) if p[1]!='v'}
        D=[NM[1],NM[0],S[0],S[1]]
        a('s_nop 1')
        for mq in range(4):
            for mk in range(4): a(f'v_mfma_f32_16x16x32_bf16 {vr(D[mq]+4*mk,4)}, {vr(reg[("k",mk)],4)}, {vr(reg[("q",mq)],4)}, 0')
        for mq in range(4): emit(maxtree(t[mq],D[mq],True))
        a(f'v_lshlrev_b32 v{vdum}, 2, v{lane}\nv_permlane16_swap_b32 v{t[0]}, v{t[1]}\nv_permlane16_swap_b32 v{t[2]}, v{t[3]}\ns_nop 0')
        a(f'v_max_f32 v{t[0]}, v{t[0]}, v{t[1]}\nv_max_f32 v{t[2]}, v{t[2]}, v{t[3]}\nv_mov_b32 v{t[1]}, v{t[0]}\nv_mov_b32 v{t[3]}, v{t[2]}\ns_nop 0')
        a(f'v_permlane32_swap_b32 v{t[0]}, v{t[1]}\nv_permlane32_swap_b32 v{t[2]}, v{t[3]}\ns_nop 0')
        a(f'v_max_f32 v{t[0]}, v{t[0]}, v{t[1]}\nv_max_f32 v{t[2]}, v{t[2]}, v{t[3]}\nv_sub_f32 v{t[0]}, s{sOffs}, v{t[0]}\nv_sub_f32 v{t[2]}, s{sOffs}, v{t[2]}')
    otouch=[([f's_and_b32 s{sK2}, s{sMT}, 3', f's_lshl_b32 s{sK2}, s{sK2}, 1', f's_add_u32 s{sK2}, s{sK2}, s{sKH}', f's_lshl_b32 s{sK2}, s{sK2}, 12', f's_add_u32 s{sK2}, s{sK2}, s{sSp}', f's_add_u32 s{sK2}, s{sK2}, s{sOb}', f'v_lshlrev_b32 v{t[0]}, 2, v{vl16}'],
             f'buffer_load_dword v{vdum}, v{t[0]}, {sr(sWS,4)}, s{sK2} offen sc1')]
    def assist():
        pcs,hreg=U['pieces'],U['hreg']
        reg={(p[1],2*p[2]+p[3]):hreg[i] for i,p in enumerate(pcs)}
        D=[NM[1],NM[0],S[0],S[1]]; C=KF[0]; VN=VF[0]; LS=Q[0]
        for tl in range(2): a(f'v_mov_b32 v{C+8*tl}, v{t[2*tl]}\nv_mov_b32 v{C+8*tl+4}, v{t[2*tl]}')
        zero(a,LS,16)
        for tl in range(2): a(f'v_permlane16_swap_b32 v{C+8*tl}, v{C+8*tl+4}')
        for i in range(4): a(f'v_mov_b64 {vr(VN+4*i,2)}, {vr(reg[("v",i)],2)}\nv_mov_b64 {vr(VN+4*i+2,2)}, {vr(reg[("v",i)]+2,2)}')
        for mq in range(4): a(f'v_mov_b32 v{C+4*mq+1}, v{C+4*mq}\nv_mov_b64 {vr(C+4*mq+2,2)}, {vr(C+4*mq,2)}')
        sw=[f'v_permlane{w}_swap_b32 v{VN+4*i+e}, v{VN+4*i+2+e}' for w in (32,16) for i in range(4) for e in range(2)]
        for mq in range(4):
            for mk in range(4):
                a(f'v_mfma_f32_16x16x32_bf16 {vr(D[mq]+4*mk,4)}, {vr(reg[("k",mk)],4)}, {vr(reg[("q",mq)],4)}, {vr(C+4*mq,4)}'); a(sw.pop(0))
        for r in PA: zero(a,r,4)
        mm=[]
        for mq in range(4):
            for i in range(16):
                a(f'v_exp_f32 v{D[mq]+i}, v{D[mq]+i}')
                if i%2==1 and i>1 and mm: a(mm.pop(0))
            for kp in range(2):
                mm+=[f'v_smfmac_f32_16x16x64_bf16 {vr(PA[2*mq+fb],4)}, {vr(VN+8*kp+4*fb,4)}, {vr(D[mq]+8*kp,8)}, v{vidx}' for fb in range(2)]
                mm+=[f'v_smfmac_f32_16x16x64_bf16 {vr(LS+4*mq,4)}, {vr(SEL,4)}, {vr(D[mq]+8*kp,8)}, v{vidx}']
        a('s_nop 1')
        emit(mm)
        a('s_nop 7')
        for tl in range(2): a(f'v_permlane16_swap_b32 v{LS+8*tl}, v{LS+8*tl+4}')
        for tl in range(2): a(f'v_add_f32 v{QA+tl}, v{LS+8*tl}, v{LS+8*tl+4}')
        a(f'v_mov_b32 v{QA+2}, v{vdum}')
    PA=[U['hreg'][i] for i,p in enumerate(U['pieces']) if p[1]!='v']
    heldk=[held[i] for i,p in enumerate(U['pieces']) if p[1]=='k']; heldv=[held[i] for i,p in enumerate(U['pieces']) if p[1]=='v']
    def pstores(tl):
        o=[f's_sub_u32 s{sT}, s{sNMo}, {WS_NM}', f's_lshl_b32 s{sT}, s{sT}, 4', f's_add_u32 s{sT}, s{sT}, {WS_PO+tl*4096}', f's_add_u32 s{sT2}, s{sNMo}, {WS_PL-WS_NM}']
        o+=[f'buffer_store_dwordx4 {vr(PA[4*tl+2*mm+fb],4)}, v{vst}, {sr(sWS,4)}, s{sT} offen offset:{fb*2048+mm*256} sc1' for mm in range(2) for fb in range(2)]
        return o+[f'buffer_store_dword v{QA+tl}, v{QA+2}, {sr(sWS,4)}, s{sT2} offen offset:{tl*256} sc1']
    def phaseB(X):
        ring=96*K if X else 0
        area=0
        def rdK(buf,T): return [f'ds_read_b128 {vr(KF[buf]+4*c,4)}, v{vka[0]} offset:{((T//4)&1)*32768+(T%4)*4096+c*1024}' for c in range(2)]
        def rdV(buf,T): return [f'ds_read_b128 {vr(VF[buf]+4*c,4)}, v{vva[0]} offset:{((T//4)&1)*32768+(T%4)*4096+2048+c*1024}' for c in range(2)]
        if not X: a(f's_lshl_b32 s{sT}, s{sKH}, 14\nv_add_u32 v{vka[0]}, s{sT}, v{vkp}\nv_add_u32 v{vva[0]}, s{sT}, v{vl16}')
        nmb=32*K if X else 144*K
        a(f's_lshr_b32 s{sT}, s{sPm}, 3\ns_add_u32 s{sT}, s{sT}, {nmb}\nv_lshl_add_u32 v{t[4]}, v{lane}, 2, s{sT}\nv_xor_b32 v{vpoll}, 0x100, v{t[4]}')
        zero(a,O[0],40)
        if X:
            if opt.get('xp0',0)==1: when(0,W0+[flag_post(sF1)])()
            a('s_waitcnt lgkmcnt(0)')
            a('s_barrier'); TR.now('T1')
        else:
            a(f's_add_u32 s{sT}, s{sPm}, {128*K}\nv_add_u32 v{vq[0]}, s{sT}, v{vl16}\nv_xor_b32 v{vq[1]}, 0x800, v{vq[0]}')
            young_block(W0+held[:opt.get('yhe',0)])()
            a('s_barrier'); TR.now('YB0')
        nms=[f'buffer_store_dword v{t[2*i]}, v{vdum}, {sr(sWS,4)}, s{sNMo} offen offset:{i*256} sc1' for i in range(2)]
        if X and asst:
            young_block(['s_setprio 3']+W0+heldq+[standin_local]+nms+heldk+[when(1,heldv),f's_setprio {opt.get("asp",3)}',assist]+(W0+[flag_post(sFQ),when(1,[flag_post(sF1)])] if opt.get('xyf',-1)<0 else [])+['s_setprio 0'])()
        for i in range(2):
            for c in range(2): a(f'ds_read_b128 {vr(Q[i]+4*c,4)}, v{vq[i]} offset:{c*1024}')
        emit(rdK(0,0)+rdV(0,0))
        if X and not asst:
            if ysi: young_block(heldq+[when(1,urg)])()
            else: young_block(['s_setprio 3']+W0+heldq+[standin_local]+nms+[when(1,urg),'s_setprio 0'])()
        xlate=X and opt.get('xp0',0)==2
        if X or not ysi:
            a(f'ds_read_b32 v{NM[0]}, v{t[4]}\nds_read_b32 v{NM[1]}, v{vpoll}')
            if X and opt.get('xp0',0)==0: when(0,W0+[flag_post(sF1)])()
            a('s_waitcnt lgkmcnt(0)')
            if not X: a(flag_load(sFB,sM1))
            def fillnm(nm): return [f'v_mov_b32 v{nm+1}, v{nm}']+[f'v_mov_b64 {vr(nm+i,2)}, {vr(nm,2)}' for i in range(2,16,2)]
            f1=fillnm(NM[1])
            emit(fillnm(NM[0])+f1[:2]+QK(S[0],KF[0],Q[0],vr(NM[0],16))+f1[2:])
            a('s_nop 5')
        else:
            a(f'v_xor_b32 v{t[4]}, 0x4000, v{vka[0]}')
            for c in range(2): a(f'ds_read_b128 {vr(KF[1]+4*c,4)}, v{t[4]} offset:{c*1024}')
            a(flag_load(sFB,sM1))
            a('s_waitcnt lgkmcnt(4)')
            emit(QK(S[0],KF[0],Q[0],'0')+QK(S[1],KF[0],Q[1],'0'))
            a('s_waitcnt lgkmcnt(0)')
            emit(QK(NM[0],KF[1],Q[0],'0')+QK(NM[1],KF[1],Q[1],'0'))
            a('s_nop 4')
            emit(maxtree(t[0],S[0],True)+maxtree(t[0],NM[0],False))
            finish_max(a,t[0],t[2],NM[0],f's{sOffs}')
            mt_=maxtree(t[1],S[1],True)+maxtree(t[1],NM[1],False)
            emit(mt_[:2]+QK(S[0],KF[0],Q[0],vr(NM[0],16))+mt_[2:])
            finish_max(a,t[1],t[2],NM[1],f's{sOffs}')
        TR.now('standin')
        NT=31 if (asst and not X) else 32
        wot=lambda i: [([f's_mov_b32 s{sK2}, {i*16*2048}'],f'buffer_load_dword v{vdum}, v{vwt}, {sr(sWo,4)}, s{sK2} offen')]
        st=lambda s: dma8(ring+(s&1)*32768,chunkB(s,X))
        sched={n:[] for n in range(64)}
        def put(n,items,tag,pos='P0'):
            for i,(su,v) in enumerate(items): sched[n+i].append((pos,su,v,tag))
        pre={n:[] for n in range(64)}
        d0=opt.get('xd0',3) if X else opt.get('yd0',1)
        for s in range(1,7): put(8*s-2,st(s+1),f'st{s+1}')
        if X:
            if xlate: put(0,[([],when(0,W0+[flag_post(sF1)]))],'none')
            put(opt.get('xf1',2),[([],old_block([flag_load(sFB,sM1)]))],'none')
            put(d0,[([],old_block(W0+[flag_check(sFB,sM1)]+dma4(ring+32768,chunkB(1,X))))],'st1')
            xyf=opt.get('xyf',-1 if asst else 1)
            if xyf>=0: put(xyf,[([],young_block(W0+[flag_post(sFQ),when(1,[flag_post(sF1)])]))],'none','P1')
            if asst:
                for tl,n_ in enumerate(opt.get('xps',[16,18])): put(n_,[([],young_block(pstores(tl)))],'none','P1')
                pre[23].append(('fo',[f's_xor_b32 s{sT}, s{sFQ}, 4096',post_if(cY,sT)]))
        else:
            s1=st(1); put(d0,s1[0:1],'st1'); put(d0+1,s1[1:2],'st1','P1'); put(d0+1,s1[2:3],'st1'); put(d0+2,s1[3:4],'st1','P1')
            if opt.get('ysp',1) and opt.get('yod',-1)>=0:
                assert not asst
                pre[d0].append((None,W0+[flag_check(sFB,sM1)]))
                put(opt.get('yod',-1),[([],'\n'.join(ostore(QA,True)))],'none')
                pre[15].append(('f3',[flag_post(sF2A)]))
            else: pre[d0].append((None,W0+[flag_post(sF2A),flag_check(sFB,sM1)]))
        if (not X) and opt.get('ymg',0):
            put(opt.get('yf2',4),[([f's_or_b32 s{sM2}, s{sM2}, s{sM3}',f's_or_b32 s{sM2}, s{sM2}, s{sOth}'],flag_load(sFB,sM2))],'f2'); pre[6].append(('f2',[flag_check(sFB,sM2)]))
        else:
            put(opt.get('f2',5) if X else opt.get('yf2',4),[([],flag_load(sFB,sM2))],'f2'); pre[6].append(('f2',([post_if(cW(2),sF1)] if X else [])+[flag_check(sFB,sM2)]))
            put(11,[([],flag_load(sFB,sM3))],'f3'); pre[14].append(('f3',([post_if(cW(3),sF1)] if X else [])+[flag_check(sFB,sM3)]))
            if X or not asst: put(20,[([],flag_load(sFB,sOth))],'fo'); pre[22].append(('fo',[flag_check(sFB,sOth)]))
        if opt.get('wot',2): put(opt.get('wtp',26),wot(0),'wt')
        if opt.get('wot',2)==1: put(34,wot(1),'wt')
        if wo_:
            cw=lambda s_: ((s_>>3)<<16)+(s_&7)*128*2048
            it=[]
            for q in range(3):
                su=[f's_mul_i32 s{sT2}, s{sKH}, {(cw((wy_ or wo_)[q])-cw(wo_[q]))&0xffffffff}', f's_add_u32 s{sT2}, s{sT2}, {cw(wo_[q])}', f's_xor_b32 s{sT2}, s{sT2}, s{sWb}']
                for j in range(4):
                    v=f'buffer_load_dwordx4 {vr(H+16*q+4*j,4)}, v{vgo[j&1]}, {sr(sWo,4)}, s{sT2} offen offset:{j*1024}'
                    it.append(([],'\n'.join((su if j==0 else [f's_add_u32 s{sT2}, s{sT2}, {8*2048-2048}'] if j==2 else [])+[v])))
            put(opt.get('wr0',40),it,'wr','P1')
        if opt.get('ct2',1):
            Lc=lab('PC')
            put(35,[([f's_getpc_b64 s[4:5]\n{Lc}:', f's_add_u32 s4, s4, OUTC-{Lc}\ns_addc_u32 s5, s5, 0', f's_andn2_b32 s{sK2}, s2, 7', f's_add_u32 s{sK2}, s{sK2}, s{sWave}', f's_lshl_b32 s{sK2}, s{sK2}, 6', f's_min_u32 s{sK2}, s{sK2}, CODE_END-OUTC-64', f'v_mov_b32 v{t[0]}, s{sK2}'],f'global_load_dword v{vdum}, v{t[0]}, s[4:5]')],'ct')
        yh=opt.get('yh',[8,10,16,18]); hl=held[opt.get('yhe',0):]; kk=len(hl)//len(yh); assert kk*len(yh)==len(hl)
        if X:
            (put(48,[([],flag_load(sFA,sMskA))],'fa','P1'),pre[50].append(('fa',[flag_check(sFA,sMskA)]))) if max(yh)>20 else (put(44,[([],flag_load(sFA,sMskA))],'fa'),pre[46].append(('fa',[flag_check(sFA,sMskA)])))
            put(50,dma8(area,chunkA(0)),'a'); put(54,dma8(area+32768,chunkA(1)),'a')
            put(58,[([],f'buffer_load_dwordx4 {vr(QA+4*c,4)}, v{vl16}, {sr(sWS,4)}, s{sQAo} offen offset:{c*1024} sc1') for c in range(2)],'a')
        else:
            if asst:
                su=[f's_lshl_b32 s{sT}, s{sKH}, 8', f's_add_u32 s{sT}, s{sT}, s{sNMo}', f's_add_u32 s{sK2}, s{sT}, {WS_PL-WS_NM}', f's_sub_u32 s{sT}, s{sT}, {WS_NM}', f's_lshl_b32 s{sT}, s{sT}, 4', f's_add_u32 s{sT2}, s{sT}, {WS_PO}', f'v_lshrrev_b32 v{t[0]}, 2, v{vl16}']
                po=[f'buffer_load_dwordx4 {vr(H+4*j,4)}, v{vl16}, {sr(sWS,4)}, s{sT2} offen offset:{j*1024} sc1' for j in range(4)]
                tj=lambda j,r: [f's_mul_i32 s{r}, s{sKH}, 3', f's_add_u32 s{r}, s{r}, {j}', f's_lshr_b32 s{sT}, s{r}, 1', f's_cmp_ge_u32 s{sT}, s{sW3}\ns_cselect_b32 s{sT}, 10, 8', f's_add_u32 s{r}, s{r}, s{sT}', f's_lshl_b32 s{r}, s{r}, 12']
                put(21,[([f's_xor_b32 s{sQBo}, s{sFB}, 4096', f's_add_u32 s{sQBo}, s{sQBo}, {WS_FQ-WS_FL}'],flag_load(sQBo,sM0+1))],'fo')
                pre[27].append(('fo',[flag_check(sQBo,sM0+1)]))
                put(27,[(su,f'buffer_load_dword v{QA}, v{t[0]}, {sr(sWS,4)}, s{sK2} offen sc1')],'po')
                put(28,[(tj(0,sM1),po[0]),(tj(1,sM2),po[1])],'po'); put(34,[(tj(2,sM3),po[2])],'po'); put(37,[([],po[3])],'po')
            (pre[opt.get('yhp',29)].append(('st4',[young_block([flag_post(sF1)])])) if (opt.get('ymg',0) or max(yh)>20) else pre[23].append(('fo',[post_if(cY,sF1)])))
            put(36,[([],flag_load(sFO,sME))],'fe'); pre[38].append(('fe',[flag_check(sFO,sME)]))
            put(42,outHalf(0),'o'); put(50,outHalf(1),'o'); put(54,outHalf(2),'o')
            if opt.get('p4',1):
                o3=outHalf(3)
                if asst: put(58,o3[0:1],'o'); put(59,o3[1:2],'o','P1'); put(59,o3[2:3],'o')
                else: put(58,o3[:3],'o')
            if opt.get('otouch',1): put(41,[([],'\n'.join(otouch[0][0]+[otouch[0][1]]))],'o','P1')
        ops=[]
        def waitfor(tag):
            last=max(i for i,x in enumerate(ops) if x==tag)
            return sum(x!='none' for x in ops[last+1:])
        for T in range(NT):
            kb=T&1
            for qb in range(2):
                n=2*T+qb
                F={k:[] for k in ('S1','P1','Q0','Q1','S0','P0')}
                if qb==0:
                    prev=(SM(L[1],S[1],1),PV(O[1],VF[kb^1],S[1],1)) if T>0 else None
                    nxt=QK(S[1],KF[kb],Q[1],vr(NM[1],16))
                    R=rdK(kb^1,T+1) if T+1<NT else []
                else:
                    prev=(SM(L[0],S[0],1),PV(O[0],VF[kb],S[0],1))
                    nxt=QK(S[0],KF[kb^1],Q[0],vr(NM[0],16)) if T+1<NT else None
                    R=rdV(kb^1,T+1) if T+1<NT else []
                if NT==31 and 28<=T+1<31:
                    r_=(sM1,sM2,sM3)[T+1-28]
                    R=[f'ds_read_b128 {vr((KF,VF)[qb][kb^1]+4*c,4)}, v{t[1+qb]} offset:{qb*2048+c*1024}' for c in range(2)]
                    R[0]=f'v_add_u32 v{t[1+qb]}, s{r_}, v{(vkp,vl16)[qb]}\n'+R[0]
                if n%8==6 and n<62:
                    s=n//8+1
                    F['S1']+=[f's_waitcnt vmcnt({waitfor(f"st{s}")}) lgkmcnt(0)']
                    F['S1']+=['s_barrier',lambda s=s: TR.mark(f'B{s}')]
                elif (not X) and n==2*NT-2:
                    F['S1']+=['s_waitcnt lgkmcnt(0)','s_barrier']
                else:
                    F['S1']+=['s_waitcnt lgkmcnt(0)',TR.commit]
                F['P1']+=R[0:1]; F['Q0']+=R[1:2]
                for pos,su,v,tg in sched[n]:
                    if pos=='P1': F['P1']+=[v]; ops.append(tg)
                for tg,code in pre[n]:
                    if tg: F['Q0']+=[f's_waitcnt vmcnt({waitfor(tg)})']
                    F['Q0']+=code
                for pos,su,v,tg in sched[n]:
                    if pos=='P0':
                        assert not F['P0']
                        h=(len(su)+1)//2
                        F['Q1']+=su[:h]; F['S0']+=su[h:]; F['P0']+=[v]; ops.append(tg)
                if X and n==opt.get('xc',3): F['P1']+=[when(2,heldv+[old_block(heldk)] if asst else urg)]
                if X and n==opt.get('xdd',10): F['P1']+=[when(3,heldv+[old_block(heldk)] if asst else urg)]
                if (not X) and n in yh:
                    assert n<25
                    hs=hl[yh.index(n)*kk:(yh.index(n)+1)*kk]
                    F['P1']+=masked(cY,hs) if opt.get('msk') else [young_block(hs)]
                if opt.get('prio',1) and n%2==0:
                    F['Q1']+=[f's_setprio {3-((n+2)%8)//2}' if (n<54 or NT==31) else f's_setprio {max(0,3-(n-54)//3)}']
                for k in ('Q1','S0','P0'):
                    if not F[k]: F[k]=['s_nop 0']
                a(f'{"X" if X else "Y"}S{n}:')
                slot(S[qb],prev,nxt,(SM(L[qb],S[qb],0),PV(O[qb],VF[kb],S[qb],0)),F)
        a(f'{"X" if X else "Y"}S64:\ns_add_u32 s{sT}, s{sMw}, {ring if X else 32*K}\ns_setprio 0')
        a(SM(L[1],S[1],1)); a(PV(O[1],VF[(NT-1)&1],S[1],1))
        TR.now('Bmain')
        a(f'v_add_u32 v{t[2]}, s{sT}, v{vl16}\nv_xor_b32 v{t[3]}, 0x4000, v{t[2]}')
        a(f's_add_u32 s{sT}, s{sPm}, {64*K if X else 1024}\ns_nop 0\nv_lshl_add_u32 v{t[4]}, v{lane}, 2, s{sT}\nv_xor_b32 v{t[0]}, 0x800, v{t[4]}')
        if X:
            a(f'v_add_u32 v{vka[0]}, s{sMw}, v{vkp}\nv_add_u32 v{vva[0]}, s{sMw}, v{vl16}')
            for r in range(16): a(f'v_min_f32 v{NM[1]+r}, 0, v{XM+r}')
        else: a('s_nop 5')
        a(f'ds_write_b32 v{t[4]}, v{L[1]}')
        for i in range(4): a(f'ds_write_b128 v{t[2]}, {vr(O[1]+4*i,4)} offset:{i*1024}')
        if opt.get('visit',1): old_block(visit('OUTC')+visit('OUTL0' if X else 'OUTLY'))()
        a('s_waitcnt vmcnt(0) lgkmcnt(0)\ns_barrier')
        a(f'ds_read_b32 v{L[1]}, v{t[0]}')
        for i in range(4): a(f'ds_read_b128 {vr(O[1]+4*i,4)}, v{t[3]} offset:{i*1024}')
        if not X: young_block(['s_setprio 1'])()
        if NT==31:
            a(f'v_add_f32 v{L[0]}, v{L[0]}, v{QA}')
            for i in range(16): a(f'v_add_f32 v{O[0]+i}, v{O[0]+i}, v{H+i}')
        a('s_waitcnt lgkmcnt(0)\ns_barrier')
        a(f'v_add_f32 v{L[0]}, v{L[0]}, v{L[1]}')
        for i in range(16): a(f'v_add_f32 v{O[0]+i}, v{O[0]+i}, v{O[1]+i}')
        finalize(O[0],L[0],Q[0],Q[1],False)
        TR.now('Bend')
    def phaseA(X):
        area=0 if X else 64*K
        def rdKA(buf,tt): return [f'ds_read_b128 {vr(KF[buf]+4*c,4)}, v{vka[0]} offset:{(8-tt)*4096+c*1024}' for c in range(2)]
        def rdVA(buf,tt): return [f'ds_read_b128 {vr(VF[buf]+4*c,4)}, v{vva[0]} offset:{(8-tt)*4096+2048+c*1024}' for c in range(2)]
        CD=NM[1]; NA=NM[0]; OA=O[1]; LA=L[0]
        if not X:
            zero(a,OA,20)
            Ls=lab('YN'); Ls2=lab('YN')
            if opt.get('ypost',1)==0: old_block(W0+[flag_post(sF1)])()
            a('s_waitcnt lgkmcnt(0)\ns_barrier'); TR.now('T1')
            for c in range(2): a(f'ds_read_b128 {vr(QA+4*c,4)}, v{vq[0]} offset:{c*1024}')
        emit(rdKA(0,0)+rdVA(0,0))
        if X:
            if opt.get('aprio',1): a('s_setprio 3')
            emit(rdKA(1,1)); zero(a,OA,20)
        elif opt.get('ypost',1)==1: old_block(W0+[flag_post(sF1)])()
        a('s_waitcnt lgkmcnt(0)')
        emit(QK(S[0],KF[0],QA,vr(CD,16)))
        two=opt.get('two',1)
        def second(A,qb):
            Lc=lab('FC'); D=lab('FD')
            A(flag_test(sMsk)); A(f's_cbranch_scc0 {Lc}\n{D}:')
            tail(f'{Lc}:\ns_mov_b32 s{sSpin}, 0\n{Lc}x:'); tail(flag_load(sFA,sMsk)); tail('s_waitcnt vmcnt(0)'); tail(flag_test(sMsk)); tail(f's_cbranch_scc1 {D}')
            tail(f's_add_u32 s{sSpin}, s{sSpin}, 1\ns_cmp_lt_u32 s{sSpin}, {SPIN}\ns_cbranch_scc1 {Lc}x\ns_branch {D}')
            for j in range(3,qb-1,-1):
                A(f's_mov_b32 m0, {area+j*4096}\ns_add_u32 s{sK2}, s{sK}, {j*4096}')
                for c in range(4): A(ldws(sK2,c))
        def sync(p):
            def f():
                Lk=lab('YK')
                a(f's_cmp_lg_u32 s{sQB}, {p-1}\ns_cbranch_scc1 {Lk}')
                if p<=4: a('s_waitcnt vmcnt(0)')
                a('s_barrier')
                if p>4: a('s_setprio 1')
                n_=TR.n; TR.now('YAsync'); TR.n=n_
                if two: a(f's_cmp_eq_u32 s{sMT}, 0\ns_cbranch_scc1 {Lk}'); second(a,p-1)
                a(f'{Lk}:')
            return f
        if X:
            emit(QK(S[1],KF[1],QA,'0'))
            a('s_nop 9')
            emit(maxtree(t[4],S[0],True))
        else:
            a('s_nop 11')
            emit(maxtree(t[4],S[0],True))
            old_block([f's_cmp_eq_u32 s{sMT}, 0',f's_cbranch_scc1 {Ls2}',flag_load(sFA,sMskA)]+W0+[flag_check(sFA,sMskA,hot),lambda: TR.now('yok')]+(chunkA(0)+[f's_add_u32 s{sK2}, s{sK}, s{sM4}', f's_add_u32 m0, s{sM4}, {area+16384}', f's_add_u32 s{sK2}, s{sK2}, 16384']+[ldws(sK2,c) for c in range(4)]+[flag_load(sFA,sMsk)] if two else dma4(area,chunkA(0)))+[f'{Ls2}:'])()
            if opt.get('ya'): TR.now('ya0')
            sync(1)()
            emit(rdKA(1,1))
            a('s_waitcnt lgkmcnt(0)')
            emit(QK(S[1],KF[1],QA,'0'))
            a('s_nop 9')
        Lm=lab('AM')
        a(f's_cmp_eq_u32 s{sJQ}, 0\ns_cbranch_scc1 {Lm}')
        emit(maxtree(t[4],S[1],False))
        a(f'{Lm}:')
        finish_max(a,t[4],t[2],NA,f's{sOffs}')
        for r in range(16): a(f'v_add_f32 v{S[0]+r}, v{S[0]+r}, v{NA}')
        def poison(T_):
            T_(f'v_mov_b32 v{NA}, {f2u(-2.0**120)}\nv_mov_b32 v{NA+1}, v{NA}')
            for r in range(2,16,2): T_(f'v_mov_b64 {vr(NA+r,2)}, {vr(NA,2)}')
        if not X:
            Lp=lab('AP'); Lr=lab('AR')
            a(f's_cmp_eq_u32 s{sJQ}, 0\ns_cbranch_scc1 {Lp}\n{Lr}:'); tail(f'{Lp}:'); poison(tail); tail(f's_branch {Lr}')
        yblk=young_block([f's_waitcnt vmcnt({2 if opt.get("ychk",8)==10 else 0})',flag_check64(sFB,sM0,hot)]+dma4(0,chunkB(0,False))+[f's_add_u32 m0, s{sM4}, {128*K}',f's_xor_b32 s{sK}, s{sQBo}, 0x800']+[ldws(sK,c) for c in range(4)]+([] if ysi else [f's_lshr_b32 s{sK}, s{sM4}, 3',f's_add_u32 m0, s{sK}, {144*K}','s_mov_b32 exec_hi, 0',ldws(sNMo,0),'s_mov_b32 exec_hi, -1']))
        if X: TR.now('Aprep')
        for tt in range(9):
            b=tt&1
            F={k:[] for k in ('S1','P1','Q0','Q1','S0','P0')}
            prev=(SM(LA,S[b^1],1),PV(OA,VF[b^1],S[b^1],1)) if tt>0 else None
            nxt=None
            F['P1']=['s_waitcnt lgkmcnt(0)']
            if tt<8:
                if X:
                    Lp=lab('AP'); Lr=lab('AR')
                    F['S1']=[f's_cmp_eq_u32 s{sJQ}, {tt}', f's_cbranch_scc1 {Lp}', f'{Lr}:']
                    tail(f'{Lp}:\ns_nop 7'); poison(tail); tail(f's_branch {Lr}')
                if tt==7: F['P1']+=[f'v_min_f32 v{CD+r}, v{NA}, -v{XM+r}' for r in range(16)]
                nxt=QK(S[b^1],KF[b^1],QA,vr(CD if tt==7 else NA,16))
                RV=rdVA(b^1,tt+1); RK=rdKA(b,tt+2) if tt+2<=8 else ['s_nop 0','s_nop 0']
                F['Q0']=RV[0:1]; F['Q1']=RV[1:2]; F['S0']=RK[0:1]; F['P0']=RK[1:2]
            if (not X) and tt<=6:
                Lp=lab('YP'); Lr=lab('YR'); p=tt+2
                F['S1']=[f's_cmp_eq_u32 s{sQB}, {p-1}']
                F['S0']=[f's_cbranch_scc1 {Lp}', f'{Lr}:']+F['S0']
                Lz=lab('YZ')
                hot(f'{Lp}:')
                if p<=4: hot('s_waitcnt vmcnt(0)')
                hot('s_barrier')
                if p>4: hot('s_setprio 1')
                if TR.on and not TR.wl: hot(f's_memtime s[98:99]\ns_waitcnt lgkmcnt(0)\nv_writelane_b32 v{vtr}, s98, {TR.n}')
                if two and p<=4:
                    hot(f's_cmp_eq_u32 s{sMT}, 0\ns_cbranch_scc1 {Lz}'); second(hot,p-1); hot(f's_branch {Lr}')
                else: hot(f's_cmp_lg_u32 s{sMT}, 0\ns_cbranch_scc1 {Lr}\ns_branch {Lz}')
                tail(f'{Lz}:'); poison(tail); tail(f's_branch {Lr}')
                if two and tt==3: F['Q1']+=W0
            if X:
                xp,xf,xc_=opt.get('xa',[0,4,6])
                if tt<3: F['P1']+=fl(outHalf(tt)[0:1]); F['P0']+=fl(outHalf(tt)[1:2])
                if opt.get('xw4',1):
                    if tt==3: F['P1']+=['s_barrier']; F['P0']+=fl(outHalf(4)[0:1])
                    if tt==4: F['P1']+=fl(outHalf(4)[1:2])
                if tt==xp: F['P0']+=[f's_waitcnt vmcnt({2*min(3,tt+1)})',flag_post(sF2)]
                if tt==xf: F['P0']+=[flag_load(sFO,sME)]
                if tt==xc_: F['P1']+=W0+[flag_check(sFO,sME)]
                if xc_<=tt<xc_+3: F['P1']+=fl(outHalf(tt-xc_)[2:3]); F['P0']+=fl(outHalf(tt-xc_)[3:4])
                if tt==xc_+opt.get('xot',9): F['S0' if tt<xc_+2 else 'S0']+=fl(otouch)
                if opt.get('aprio',1) and tt in (0,2,4,6): F['Q1']+=[f's_setprio {max(0,2-tt//2) if opt.get("aprio",1)==1 else 3-tt//2}']
            if not X:
                if tt==opt.get('yfl',7): F['P0']+=[young_block([flag_load64(sFB,sM0)])]
                if tt==opt.get('ychk',8): F['P0']+=[yblk]
            slot(S[b],prev,nxt,(SM(LA,S[b],0),PV(OA,VF[b],S[b],0)),F)
        a('s_nop 1')
        a(SM(LA,S[0],1)); a(PV(OA,VF[0],S[0],1))
        if (not X) and opt.get('ya'): TR.n+=1; TR.now('ya8'); TR.n-=1
        if (not X) and opt.get('ychk',8)==9: yblk()
        a('s_nop 11')
        finalize(OA,LA,QA,S[1],True)
        if (not X) and opt.get('ychk',8)==10: yblk()
        if not X: a('s_setprio 0'); TR.n+=1
        TR.now('Aend')
    def phaseAY(old):
        area=64*K
        def rdKA(buf,tt): return [f'ds_read_b128 {vr(KF[buf]+4*c,4)}, v{vka[0]} offset:{(8-tt)*4096+c*1024}' for c in range(2)]
        def rdVA(buf,tt): return [f'ds_read_b128 {vr(VF[buf]+4*c,4)}, v{vva[0]} offset:{(8-tt)*4096+2048+c*1024}' for c in range(2)]
        CD=NM[1]; NA=NM[0]; OA=O[1]; LA=L[0]
        def poison(T_):
            T_(f'v_mov_b32 v{NA}, {f2u(-2.0**120)}\nv_mov_b32 v{NA+1}, v{NA}')
            for r in range(2,16,2): T_(f'v_mov_b64 {vr(NA+r,2)}, {vr(NA,2)}')
        def spin(A,test,load):
            Lc=lab('FC'); D=lab('FD')
            A(test); A(f's_cbranch_scc0 {Lc}\n{D}:')
            tail(f'{Lc}:\ns_mov_b32 s{sSpin}, 0\n{Lc}x:'); tail(load); tail('s_waitcnt vmcnt(0)'); tail(test); tail(f's_cbranch_scc1 {D}')
            tail(f's_add_u32 s{sSpin}, s{sSpin}, 1\ns_cmp_lt_u32 s{sSpin}, {SPIN}\ns_cbranch_scc1 {Lc}x\ns_branch {D}')
        def second(A,qb):
            spin(A,flag_test(sMsk),flag_load(sFA,sMsk))
            for j in range(3,qb-1,-1):
                A(f's_mov_b32 m0, {area+j*4096}\ns_add_u32 s{sK2}, s{sK}, {j*4096}')
                for c in range(4): A(ldws(sK2,c))
        def bpre(A):
            spin(A,f'v_cmp_eq_u64 vcc, {vr(vtag,2)}, {vr(vpoll,2)}\ns_and_b64 vcc, vcc, s[{sM0}:{sM0+1}]\ns_cmp_eq_u64 vcc, s[{sM0}:{sM0+1}]',flag_load64(sFB,sM0))
            for x in dma4(0,chunkB(0,False))+[f's_add_u32 m0, s{sM4}, {128*K}',f's_xor_b32 s{sK}, s{sQBo}, 0x800']+[ldws(sK,c) for c in range(4)]+[f's_lshr_b32 s{sK}, s{sM4}, 3',f's_add_u32 m0, s{sK}, {144*K}','s_mov_b32 exec_hi, 0',ldws(sNMo,0),'s_mov_b32 exec_hi, -1']: A(x)
        yp=opt.get('ypost',1); yb=opt.get('yb','late')
        zero(a,OA,20)
        if old and yp==2:
            Lq=lab('YQ'); a(f's_cmp_lt_u32 s{sWave}, 2\ns_cbranch_scc1 {Lq}'); emit(W0+[flag_post(sF1)]); a(f'{Lq}:')
        a('s_waitcnt lgkmcnt(0)\ns_barrier'); TR.now('T1')
        for c in range(2): a(f'ds_read_b128 {vr(QA+4*c,4)}, v{vq[0]} offset:{c*1024}')
        emit(rdKA(0,0)+([] if old else rdKA(1,1))+rdVA(0,0))
        a('s_setprio 3')
        if old:
            if yp==2:
                Lq=lab('YQ'); a(f's_cmp_ge_u32 s{sWave}, 2\ns_cbranch_scc1 {Lq}'); emit(W0+[flag_post(sF1)]); a(f'{Lq}:')
            else: emit(W0+[flag_post(sF1)])
            a('s_waitcnt lgkmcnt(0)')
            emit(QK(S[0],KF[0],QA,vr(CD,16))); a('s_nop 11'); emit(maxtree(t[4],S[0],True))
            Ls=lab('YN'); Lk=lab('YK')
            emit([f's_cmp_eq_u32 s{sMT}, 0',f's_cbranch_scc1 {Ls}',flag_load(sFA,sMskA)]+W0+[flag_check(sFA,sMskA,hot),lambda: TR.now('yok')])
            emit(chunkA(0)+[f's_add_u32 s{sK2}, s{sK}, s{sM4}', f's_add_u32 m0, s{sM4}, {area+16384}', f's_add_u32 s{sK2}, s{sK2}, 16384']+[ldws(sK2,c) for c in range(4)]+[flag_load(sFA,sMsk),f'{Ls}:'])
            a(f's_cmp_lg_u32 s{sQB}, 0\ns_cbranch_scc1 {Lk}\ns_waitcnt vmcnt(0)\ns_barrier')
            n_=TR.n; TR.now('YAsync'); TR.n=n_
            emit(rdKA(1,1))
            Lk2=lab('YK')
            a(f's_cmp_eq_u32 s{sMT}, 0\ns_cbranch_scc1 {Lk2}'); second(a,0); a(f's_branch {Lk2}\n{Lk}:')
            emit(rdKA(1,1)); a(f'{Lk2}:\ns_waitcnt lgkmcnt(0)')
            emit(QK(S[1],KF[1],QA,'0')); a('s_nop 9')
            Lm=lab('AM')
            a(f's_cmp_eq_u32 s{sJQ}, 0\ns_cbranch_scc1 {Lm}'); emit(maxtree(t[4],S[1],False)); a(f'{Lm}:')
        else:
            if TR.on and not TR.wl: TR.n+=1
            a('s_waitcnt lgkmcnt(2)')
            emit(QK(S[0],KF[0],QA,vr(CD,16))+QK(S[1],KF[1],QA,'0')); a('s_nop 9')
            emit(maxtree(t[4],S[0],True)+maxtree(t[4],S[1],False))
        finish_max(a,t[4],t[2],NA,f's{sOffs}')
        for r in range(16): a(f'v_add_f32 v{S[0]+r}, v{S[0]+r}, v{NA}')
        if old:
            Lp=lab('AP'); Lr=lab('AR')
            a(f's_cmp_eq_u32 s{sJQ}, 0\ns_cbranch_scc1 {Lp}\n{Lr}:'); tail(f'{Lp}:'); poison(tail); tail(f's_branch {Lr}')
        pr=opt.get('ypr',{'3':2,'5':1,'7':0})
        for tt in range(9):
            b=tt&1
            F={k:[] for k in ('S1','P1','Q0','Q1','S0','P0')}
            prev=(SM(LA,S[b^1],1),PV(OA,VF[b^1],S[b^1],1)) if tt>0 else None
            nxt=None
            F['P1']=['s_waitcnt lgkmcnt(0)' if not (old and 3<=tt<=6) else f's_waitcnt vmcnt({12-4*(tt-3)}) lgkmcnt(0)']
            if tt<8:
                if tt==7: F['P1']+=[f'v_min_f32 v{CD+r}, v{NA}, -v{XM+r}' for r in range(16)]
                nxt=QK(S[b^1],KF[b^1],QA,vr(CD if tt==7 else NA,16))
                RV=rdVA(b^1,tt+1); RK=rdKA(b,tt+2) if tt+2<=8 else ['s_nop 0','s_nop 0']
                F['Q0']=RV[0:1]; F['Q1']=RV[1:2]; F['S0']=RK[0:1]; F['P0']=RK[1:2]
            if (tt<=2 if old else 3<=tt<=6):
                Lp=lab('YP'); Lr=lab('YR'); Lz=lab('YZ')
                F['S1']=[f's_cmp_eq_u32 s{sQB}, {tt+1}']
                F['S0']=[f's_cbranch_scc1 {Lp}', f'{Lr}:']+F['S0']
                hot(f'{Lp}:')
                if old: hot('s_waitcnt vmcnt(0)')
                hot('s_barrier')
                if TR.on and not TR.wl: hot(f's_memtime s[98:99]\ns_waitcnt lgkmcnt(0)\nv_writelane_b32 v{vtr}, s98, {TR.n}')
                if old:
                    hot(f's_cmp_eq_u32 s{sMT}, 0\ns_cbranch_scc1 {Lz}'); second(hot,tt+1); hot(f's_branch {Lr}')
                else:
                    if yb=='stub': hot(flag_load64(sFB,sM0)); hot('s_waitcnt vmcnt(0)'); bpre(hot)
                    else: hot('s_setprio 3')
                    hot(f's_cmp_lg_u32 s{sMT}, 0\ns_cbranch_scc1 {Lr}\ns_branch {Lz}')
                tail(f'{Lz}:'); poison(tail); tail(f's_branch {Lr}')
            if yb=='stub':
                if str(tt) in pr: F['S1']=F['S1']+[f's_setprio {pr[str(tt)]}']
            else:
                if tt==0: F['S1']=F['S1']+['s_setprio 0']
                if not old and tt==7: F['P0']+=[flag_load64(sFB,sM0)]
                if not old and tt==8: F['P0']+=W0+[lambda: bpre(a)]
            slot(S[b],prev,nxt,(SM(LA,S[b],0),PV(OA,VF[b],S[b],0)),F)
        a('s_nop 1')
        a(SM(LA,S[0],1)); a(PV(OA,VF[0],S[0],1))
        if not old:
            a('s_branch YJOIN\nGYB16:'); return
        a('YJOIN:\ns_nop 11')
        if opt.get('yod',-1)>=0: finalize(OA,LA,QA,QA,True,True,False)
        else: finalize(OA,LA,QA,S[1],True,True)
        a('s_setprio 0'); TR.n+=1
        TR.now('Aend')
    n0=TR.n
    ysp=opt.get('ysp',1)
    if ysp:
        a(f's_cmp_eq_u32 s{sBR}, 1\ns_cbranch_scc1 XPATH')
        TR.path='Y'; phaseAY(False); TR.n=n0
    else: a(f's_cmp_eq_u32 s{sBR}, 0\ns_cbranch_scc1 YPATH\ns_branch XPATH\nGYB16:')
    TR.path='X'
    entry('XOLD',12,opt.get('dx',0)); old_epi(True); standin_local()
    a(f's_lshr_b32 s{sT}, s{sM4}, 3\nv_add_u32 v{vdum}, s{sT}, v{vdum}\nds_write_b32 v{vdum}, v{t[0]} offset:{32*K}\nds_write_b32 v{vdum}, v{t[2]} offset:{32*K+256}')
    a('XPATH:')
    phaseB(True); phaseA(True)
    a(f's_mov_b32 s{sF2}, s{sF2A}')
    def tag(s,items): return [(s,su,v) for su,v in items]
    def stream(s0,s1,items,per,issued,hooks={},hooks0={}):
        for s in range(s0,s1+1):
            if s>s0:
                need=max([i for i,x in enumerate(issued) if x<=s],default=-1)
                assert not any(x[0]<=s for x in items)
                if need>=0: a(f's_waitcnt vmcnt({min(63,len(issued)-1-need)})')
                a('s_barrier')
            if s in hooks0: hooks0[s](issued)
            k=0; p=per[s] if isinstance(per,dict) else per
            while items and items[0][0]<=s+4 and (k<p or items[0][0]<=s+1):
                st_,su,v=items.pop(0); emit(su+[v]); issued.append(st_); k+=1
            if s in hooks: hooks[s](issued)
        assert not items
    def full(s0,s1):
        o=[]
        for s in range(s0,s1): o+=tag(s,outW(s)+outO(s))
        return o
    inreg=set(wo_)|set(wy_)
    outW_=outW
    outW=lambda s_: [] if s_ in inreg else outW_(s_)
    early=full(3,7)+tag(7,outW(7))+[(7,[],flag_load(sFO,sML))]+tag(7,outO(7))
    def wput(q,s_,vaddr): return [f'v_add_u32 v{vaddr}, {OSL[s_%5]+16384}, v{vdum}']+[f'ds_write_b128 v{vaddr}, {vr(H+16*q+4*j,4)} offset:{j*1024}' for j in range(4)]
    ofl=opt.get('ofl',1)
    def postP(issued):
        a(flag_post(sK2)); issued.append(99)
    a('s_waitcnt vmcnt(6)\ns_barrier')
    if_young('OUTC')
    a(f's_xor_b32 s{sK2}, s{sF2}, 16384\ns_branch OUTL0\nXEND:')
    nX=TR.n; TR.n=n0
    TR.path='Y'
    entry('YOLD',12,opt.get('dy',0)); old_epi(False); emit(visit('YHOT') if opt.get('vhot',1) else []); a('YPATH:')
    phaseAY(True) if ysp else phaseA(False)
    phaseB(False)
    TR.n=max(TR.n,nX); TR.path='XY'
    def loader():
        def postY(issued):
            a(f's_waitcnt vmcnt({len(issued)-6})'); a(flag_post(sF2)); issued.append(99); postP(issued)
        def estream(items,key):
            ne=len(items); ep=opt.get(key,[6,7,8,8,8,0] if ne==37 else [(ne+4-i)//5 for i in range(5)]+[0])
            stream(0,5,list(items),dict(enumerate(ep)),[1,1,2,2,98,98],{},{ofl:postY})
        entry('OUTL0',12); estream(early[:8]+early[12:] if opt.get('xw4',1) else early,'eper'); a('s_branch OUTL')
        entry('OUTLY'); a(f's_xor_b32 s{sK2}, s{sF2}, 4096')
        if opt.get('p4',1):
            o3=outO(3); estream([(3,o3[0][0],o3[1][1]),(3,[],o3[3][1])]+early[8:],'epery')
        else: estream(early,'eper')
        a('OUTL:')
        Lv=lab('LV'); Lw=lab('LW')
        emit(['s_waitcnt vmcnt(4)',flag_test(sML),f's_cbranch_scc0 {Lv}'])
        it=full(8,16); stream(5,15,it,opt.get('oper',7),[7]*4)
        a(f's_branch LEND\n{Lv}:')
        n9=len(outW(9))
        emit(fl(outW(8))+[flag_load(sFO,sML)]+fl(outW(9))+['s_barrier',f's_waitcnt vmcnt({n9})',flag_test(sML),f's_cbranch_scc0 {Lw}'])
        it=tag(8,outO(8))+tag(9,outO(9))+full(10,16); stream(6,15,it,(len(it)+7)//8,[9]*n9)
        a(f's_branch LEND\n{Lw}:')
        emit(fl(outW(10))+[flag_load(sFO,sML),'s_barrier']+W0+[flag_check(sFO,sML)])
        it=tag(8,outO(8))+tag(9,outO(9))+tag(10,outO(10))+full(11,16); stream(7,15,it,(len(it)+6)//7,[])
        a('LEND:')
        if stamps: TR.dump(0,sWS,vdum)
        a('s_endpgm')

    if_young('OUTC')
    a('s_branch OUTLY\nYEND:')
    entry('OUTC',12)
    voa=[8,10,vva[1]]; vwa=[[12,13,14,15],[16,17,18,19],[20,21,22,23]]; u=[24,vka[1],25]; vo=26
    V=Alloc(28)
    acc=[[V('',4,4) for f in range(4)] for m in range(4)]
    V.n=96
    OFr=[[V('',4,4) for m in range(4)] for b in range(2)]
    WFr=[[V('',4,4) for f in range(4)] for b in range(2)]
    bases=[64*K,128*K,0]; sel=[(0,0),(0,32768),(1,0),(2,0),(2,32768)]
    a(f'v_add_u32 v{voa[0]}, {bases[0]}, v{voa[2]}')
    for f in range(4): a(f'v_xor_b32 v{vwa[0][f]}, {bases[0]+16384+32*f}, v{u[1]}')
    def reads(s,j,b):
        bi,o0=sel[s%5]
        def wr(f):
            off=o0+j*8192
            return [f'ds_read_b64_tr_b16 {vr(WFr[b][f],2)}, v{vwa[bi][f]} offset:{off}', f'ds_read_b64_tr_b16 {vr(WFr[b][f]+2,2)}, v{vwa[bi][f]} offset:{off+2048}']
        def xr(m): return [f'ds_read_b128 {vr(OFr[b][m],4)}, v{voa[bi]} offset:{o0+(m>>1)*4096+j*2048+(m&1)*1024}']
        return xr(0)+wr(0)+wr(1)+wr(2)+wr(3)+xr(1)+xr(2)+xr(3)
    def mfmas(b,first,last):
        M=[]
        if opt.get('zord',1) and not last: od=[(0,0),(1,0),(1,1),(0,1),(0,2),(1,2),(1,3),(0,3),(2,3),(3,3),(3,2),(2,2),(2,1),(3,1),(3,0),(2,0)]
        else: od=[(m,f) for m in range(4) for f in (range(4) if m%2==0 else range(3,-1,-1))]
        for m,f in od:
            d=vr(acc[m][f],4)
            M.append(f'v_mfma_f32_16x16x32_bf16 {d}, {vr(WFr[b][f],4)}, {vr(OFr[b][m],4)}, {"0" if first else d}')
        return M
    TR.mark('OB0')
    emit(reads(0,0,0))
    a(f'v_add_u32 v{voa[1]}, {bases[1]}, v{voa[2]}\nv_add_u32 v{vdum}, s{sM4}, v{vl16}')
    for i in (1,2):
        for f in range(4): a(f'v_xor_b32 v{vwa[i][f]}, {bases[i]+16384+32*f}, v{u[1]}')
    vtw=u[0]; vtr_=u[1]
    epi=[f'v_and_b32 v{u[2]}, 15, v{lane}', f'v_bfe_u32 v{vtw}, v{lane}, 4, 1', f'v_lshrrev_b32 v{vo}, 5, v{lane}', f'v_lshl_add_u32 v{vtw}, v{vtw}, 1, v{vo}',
         f'v_and_b32 v{vo}, 7, v{lane}', f'v_xor_b32 v{vtw}, v{vtw}, v{vo}', f'v_lshlrev_b32 v{vtw}, 4, v{vtw}', f'v_lshl_add_u32 v{vtw}, v{u[2]}, 7, v{vtw}', f'v_add_u32 v{vtw}, s{sM8}, v{vtw}',
         f'v_lshrrev_b32 v{u[2]}, 3, v{lane}', f'v_xor_b32 v{vtr_}, v{vo}, v{u[2]}', f'v_lshlrev_b32 v{vtr_}, 4, v{vtr_}', f'v_lshl_add_u32 v{vtr_}, v{u[2]}, 7, v{vtr_}', f'v_add_u32 v{vtr_}, s{sM8}, v{vtr_}',
         f'v_lshlrev_b32 v{vo}, 4, v{vo}', f'v_lshl_add_u32 v{vo}, v{u[2]}, 12, v{vo}', f'v_xor_b32 v{u[2]}, 64, v{vtw}']
    def packm(m):
        o=[]
        for p in range(2):
            c0=acc[m][2*p]; o+=[f'v_cvt_pk_bf16_f32 v{c0+i}, v{c0+2*i}, v{c0+2*i+1}' for i in range(4)]
        for p in range(2):
            c0=acc[m][2*p]; o+=(['s_nop 0'] if p else [])+[f'v_permlane16_swap_b32 v{c0}, v{c0+2}', f'v_permlane16_swap_b32 v{c0+1}, v{c0+3}']
        for p in range(2): o+=[f'ds_write_b128 v{(vtw,u[2])[p]}, {vr(acc[m][2*p],4)} offset:{m*2048}']
        return o
    oloop=opt.get('oloop',1) and (not TR.on or TR.wl)
    def ostep(s,j):
        a('s_waitcnt lgkmcnt(0)')
        TR.commit()
        if j==1 and s<15:
            if s+1==ofl: a('s_waitcnt vmcnt(0)')
            elif s<2: a(f's_waitcnt vmcnt({4-2*s})')
            a('s_barrier')
            if s%2==1: TR.mark(f'OB{s+1}')
        R=reads(s,1,1) if j==0 else (reads(s+1,0,0) if s<15 else [])
        M=mfmas(j,s==0 and j==0,s==15 and j==1)
        fill=[[r] for r in R]+[[] for _ in range(16-len(R))]
        if s==0:
            for q in range(7,16):
                if epi: fill[q].append(epi.pop(0))
        if oloop and (s,j)==(5,0): fill[13]+=[f's_sub_u32 s{sT2}, s{sT2}, 1']; fill[15]+=['s_cbranch_scc1 OFIN']
        if oloop and (s,j)==(5,1): fill[15]+=['s_branch OLOOP']
        if s==15 and j==1:
            pm=packm(0)
            for q in range(11,16): fill[q]+=pm[(q-11)*3:(q-10)*3]
        emit(interleave(M,fill))
    assert not wy_
    if oloop:
        a(f's_mov_b32 s{sT2}, 2')
        ostep(0,0); ostep(0,1); a('OLOOP:')
        for s in range(1,6): ostep(s,0); ostep(s,1)
        a('OFIN:'); ostep(15,1)
    else:
        for s in range(16): ostep(s,0); ostep(s,1)
    assert not epi
    TR.now('omain')
    ost=opt.get('k3st',' sc1')
    D=OFr[0][0]
    def rd(m): return [f'ds_read_b128 {vr(D+8*m+4*i,4)}, v{vtr_} offset:{m*2048+i*1024}' for i in range(2)]
    def stq(m):
        o=[]
        for i in range(2): o+=[f's_add_u32 s{sT}, s{sOc}, {(m*16+i*8)*4096}', f'buffer_store_dwordx4 {vr(D+8*m+4*i,4)}, v{vo}, {sr(sOut,4)}, s{sT} offen{ost}']
        return o
    emit(rd(0)+packm(1)+rd(1)+['s_waitcnt lgkmcnt(4)']+stq(0)+packm(2)+rd(2)+['s_waitcnt lgkmcnt(4)']+stq(1)+packm(3)+rd(3)+['s_waitcnt lgkmcnt(4)']+stq(2)+['s_waitcnt lgkmcnt(0)']+stq(3))
    if opt.get('amp'):
        role,k0,k1,mult=opt['amp']
        a('s_waitcnt vmcnt(0)'); TR.now('end')
        f=lambda k: [i for i in TR.map[role] if TR.map[role][i]==k][-1]
        a(f's_cmp_lg_u32 s{sBR}, {1 if role=="X" else 0}\ns_cbranch_scc1 END')
        a(f's_nop 1\nv_readlane_b32 s4, v{vtr}, {f(k0)}\nv_readlane_b32 s5, v{vtr}, {f(k1)}\ns_nop 3\ns_sub_u32 s4, s5, s4\ns_min_u32 s4, s4, 200000\ns_mul_i32 s4, s4, {mult}\ns_lshr_b32 s4, s4, 1')
        a('s_memrealtime s[6:7]\ns_waitcnt lgkmcnt(0)\nAMPL:\ns_memrealtime s[46:47]\ns_waitcnt lgkmcnt(0)\ns_sub_u32 s46, s46, s6\ns_cmp_lt_u32 s46, s4\ns_cbranch_scc1 AMPL')
    if stamps:
        a('s_waitcnt vmcnt(0)'); TR.now('end'); TR.dump(0,sWS,vdum)
        a('s_memrealtime s[4:5]\ns_memtime s[6:7]\ns_waitcnt lgkmcnt(0)\ns_sub_u32 s6, s6, s92')
        a(f'v_mov_b32 v28, s90\nv_mov_b32 v29, s4\nv_mov_b32 v30, s6\nv_mov_b32 v31, 0\ns_lshl_b32 s4, s2, 5\ns_add_u32 s4, s4, {WS_STAMP}\nv_mov_b32 v32, s4')
        a(f'global_store_dwordx4 v32, v[28:31], s[{sWS}:{sWS+1}]')
    a('s_endpgm')
    loader()
```

```python
import sys, json, struct, math
from asm import *
from k1 import WS_STAMP, WS_TRACE, Trace
NAME='concat_heads__sliding_block__softmax_full_mha__prompt_kernel'
WS_QF=0; WS_KV=8<<20; WS_OF=24<<20; WS_FL=32<<20; WS_F2=WS_FL+(256<<10); WS_FQ=WS_F2+(512<<10); WS_NM=WS_FQ+(256<<10); WS_PL=WS_NM+(512<<10); WS_EP=WS_PL+(512<<10); WS_PO=36<<20; WS_SIZE=WS_PO+(8<<20)
def f2u(x): return struct.unpack('<I',struct.pack('<f',x))[0]
QSCALE=f2u((32**-0.5)*math.log2(math.e))
OFFS=88.0
SPIN=1<<20
K=1024
pDbg=6; sX=8; sW=12; sWS=16; sWo=36; sOut=40
sWave=20; sMT=21; sHP=22; sBR=23; sHD=24; sT=25; sT2=26; sT3=27; sW3=28; sKH=29; sSpin=30; sK=31
sQS=32
sQo=34; sKV0=35; sKV1=44; sF1=45
sXm=46; sWm=50; sKX=52; sKW=53
sCnt=46; sN=47; sMa=48; sMb=49; sF2b=50; sK2=51
_S=Alloc(54)
sKVB,sKVA,sM8,sMw,sFB,sFA,sMsk,sOth,sMskA,sJQ,sQB,sO,sF2,sPi,sOffs,sOb,sFO,sME,sML,sWb,sM4,sSp,sC0,sC1,sC2,sQBo,sQAo,sPm,sPw,sPo,sOc,sOA,sF2A,sWhen,sM1,sM2=[_S(str(i)) for i in range(36)]
sM3=3; sFQ=33; sM0=94; sNMo=96
assert _S.n<=90
vtr=1; lane=2; vl16=3; vst=4; vfl=5; vtag=6
vka=[8,9]; vva=[10,11]; vq=[12,13]; vpoll=14; vkp=16; vidx=17; vos=18; vgo=[19,20]; vwt=21; t=[22,23,24,25,26]; vdum=27
SEL=28; XM=32
NM=[64,48]; Q=[80,88]; O=[96,112]; L=[128,132]; S=[136,152]; KF=[168,176]; VF=[184,192]; QA=200
H=208
OSL=[64*K,96*K,128*K,0,32*K]

def build0(stamps=False,opt={}):
    a=Asm(); tail=Asm(); hot=Asm()
    TR=Trace(a,(stamps and opt.get('trace') is not None) or opt.get('amp'),vtr)
    TR.wl=opt.get('wl')
    uid=[0]
    def lab(p):
        uid[0]+=1; return f'{p}{uid[0]}'
    def emit(lst):
        for x in lst:
            if callable(x): x()
            else: a(x)
    def if_young(name): a(f's_cmp_ge_u32 s{sWave}, 4\ns_cbranch_scc1 {name}')
    def if_old(name): a(f's_cmp_lt_u32 s{sWave}, 4\ns_cbranch_scc1 {name}')
    def old_block(lst):
        def f():
            Lb=lab('OB'); if_young(Lb); emit(lst); a(f'{Lb}:')
        return f
    def young_block(lst):
        def f():
            Lb=lab('YB'); if_old(Lb); emit(lst); a(f'{Lb}:')
        return f
    def flag_load(soff,smask):
        return f's_mov_b32 exec_lo, s{smask}\ns_mov_b32 exec_hi, 0\nbuffer_load_dwordx2 {vr(vpoll,2)}, v{vfl}, {sr(sWS,4)}, s{soff} offen sc1\ns_mov_b64 exec, -1'
    def flag_test(smask):
        return f'v_cmp_eq_u64 vcc, {vr(vtag,2)}, {vr(vpoll,2)}\ns_and_b32 s{sT3}, vcc_lo, s{smask}\ns_cmp_eq_u32 s{sT3}, s{smask}'
    def flag_check(soff,smask,tail=tail):
        def f():
            Lc=lab('FC'); D=lab('FD')
            a(flag_test(smask)); a(f's_cbranch_scc0 {Lc}\n{D}:')
            tail(f'{Lc}:\ns_mov_b32 s{sSpin}, 0\n{Lc}x:\ns_andn2_b32 s{sT3}, s{smask}, s{sT3}')
            if opt.get('slp'): tail(f's_sleep {opt["slp"]}')
            tail(flag_load(soff,sT3)); tail('s_waitcnt vmcnt(0)')
            tail(flag_test(smask)); tail(f's_cbranch_scc1 {D}')
            tail(f's_add_u32 s{sSpin}, s{sSpin}, 1\ns_cmp_lt_u32 s{sSpin}, {SPIN}\ns_cbranch_scc1 {Lc}x\ns_branch {D}')
        return f
    def flag_post(soff):
        return f's_mov_b64 exec, 0xff\nbuffer_store_dwordx4 {vr(vtag,4)}, v{vl16}, {sr(sWS,4)}, s{soff} offen sc1\ns_mov_b64 exec, -1'
    pads={}
    def visit(target):
        if not opt.get('visit',1): return []
        r=lab('VR'); p=lab('VP'); pads.setdefault(target,[]).append((p,r))
        return [f's_branch {p}', f'{r}:']
    def entry(target,al=6,skip=0):
        a(f'.p2align {al}')
        if skip: a(f'.fill {skip//4}, 4, 0xbf800000')
        for p,r in pads.get(target,[]): a(f'{p}:\ns_branch {r}')
        pads[target]=None
        a(f'{target}:')
    def post_if(cmp,soff):
        return f'{cmp}\ns_cselect_b64 exec, 0xff, 0\nbuffer_store_dwordx4 {vr(vtag,4)}, v{vl16}, {sr(sWS,4)}, s{soff} offen sc1\ns_mov_b64 exec, -1'
    def masked(cmp,lst): return [cmp,'s_cselect_b64 exec, -1, 0']+lst+['s_mov_b64 exec, -1']
    def when(k,lst):
        def f():
            Lb=lab('WH'); a(f's_cmp_lg_u32 s{sWhen}, {k}\ns_cbranch_scc1 {Lb}'); emit(lst); a(f'{Lb}:')
        return f
    def flag_load64(soff,sm): return f's_mov_b64 exec, s[{sm}:{sm+1}]\nbuffer_load_dwordx2 {vr(vpoll,2)}, v{vfl}, {sr(sWS,4)}, s{soff} offen sc1\ns_mov_b64 exec, -1'
    def flag_check64(soff,sm,tail=tail):
        def f():
            Lc=lab('FC'); D=lab('FD')
            tst=f'v_cmp_eq_u64 vcc, {vr(vtag,2)}, {vr(vpoll,2)}\ns_and_b64 vcc, vcc, s[{sm}:{sm+1}]\ns_cmp_eq_u64 vcc, s[{sm}:{sm+1}]'
            a(tst); a(f's_cbranch_scc0 {Lc}\n{D}:')
            tail(f'{Lc}:\ns_mov_b32 s{sSpin}, 0\n{Lc}x:'); tail(flag_load64(soff,sm)); tail('s_waitcnt vmcnt(0)'); tail(tst); tail(f's_cbranch_scc1 {D}')
            tail(f's_add_u32 s{sSpin}, s{sSpin}, 1\ns_cmp_lt_u32 s{sSpin}, {SPIN}\ns_cbranch_scc1 {Lc}x\ns_branch {D}')
        return f
    def zero(A,r,n):
        for i in range(0,n,2): A(f'v_mov_b64 {vr(r+i,2)}, 0')
    a('s_cmp_ge_u32 s2, 256\ns_cbranch_scc1 END')
    if stamps: a('s_memrealtime s[90:91]\ns_memtime s[92:93]')
    TR.now('start')
    if TR.on: a(f's_getreg_b32 s98, hwreg(HW_REG_XCC_ID, 0, 4)\nv_writelane_b32 v{vtr}, s98, 63\nv_writelane_b32 v{vtr}, s90, 62')
    mp=opt.get('map',4)
    a([None,f's_bfe_u32 s{sBR}, s2, 0x10003',None,f's_and_b32 s{sBR}, 1, s2',f's_andn2_b32 s{sBR}, 1, s2',f's_and_b32 s{sBR}, 1, s2',f's_andn2_b32 s{sBR}, 1, s2'][mp])
    a(f's_mul_i32 s{sT}, s{sBR}, 24\ns_add_u32 s4, s0, s{sT}\ns_addc_u32 s5, s1, 0')
    a(f's_load_dwordx2 s[{sX}:{sX+1}], s[4:5], 0\ns_load_dwordx2 s[{sW}:{sW+1}], s[4:5], 8\ns_load_dwordx2 s[{sWo}:{sWo+1}], s[4:5], 16')
    a(f's_load_dwordx2 s[{sOut}:{sOut+1}], s[0:1], 48\ns_load_dwordx2 s[{pDbg}:{pDbg+1}], s[0:1], 56\ns_load_dwordx2 s[{sWS}:{sWS+1}], s[0:1], 64')
    a(f'v_lshrrev_b32 v{vdum}, 6, v0\nv_and_b32 v{lane}, 63, v0')
    a(f'v_readfirstlane_b32 s{sWave}, v{vdum}')
    if opt.get('rt'): TR.rt=2
    if mp==1:
        a(f's_bfe_u32 s{sMT}, s2, 0x20004\n{"s_andn2_b32" if opt.get("swp",0) else "s_and_b32"} s{sT}, 1, s2\ns_lshl_b32 s{sT}, s{sT}, 2\ns_add_u32 s{sMT}, s{sMT}, s{sT}')
        a(f's_lshr_b32 s{sHP}, s2, 6\ns_and_b32 s{sT}, s2, 6\ns_lshl_b32 s{sT}, s{sT}, 1\ns_add_u32 s{sHP}, s{sHP}, s{sT}')
    elif mp>=5:
        a(f's_bfe_u32 s{sMT}, s2, 0x30003')
        a(f's_lshr_b32 s{sHP}, s2, 6\ns_and_b32 s{sT}, s2, 6\ns_lshl_b32 s{sT}, s{sT}, 1\ns_add_u32 s{sHP}, s{sHP}, s{sT}')
    else:
        a(f's_bfe_u32 s{sMT}, s2, 0x20003\ns_and_b32 s{sT}, s2, 2\ns_lshl_b32 s{sT}, s{sT}, 1\ns_add_u32 s{sMT}, s{sMT}, s{sT}')
        a(f's_lshr_b32 s{sHP}, s2, 5\ns_and_b32 s{sT}, s2, 4\ns_lshl_b32 s{sT}, s{sT}, 1\ns_add_u32 s{sHP}, s{sHP}, s{sT}')
    a(f's_and_b32 s{sW3}, s{sWave}, 3\ns_lshr_b32 s{sKH}, s{sWave}, 2')
    a(f's_mov_b32 s{sX+2}, 0x400000\ns_mov_b32 s{sX+3}, 0x20000\ns_mov_b32 s{sW+2}, 0x600000\ns_mov_b32 s{sW+3}, 0x20000')
    vxa=[64,65]; vwa=[66,67]; vgx=list(range(68,76)); vgw=[76,77]; g=[78,79]
    V=Alloc(80)
    acc=[[[None]*2 for s in range(3)] for m in range(4)]
    for m in range(4):
        for s in range(2):
            for fb in range(2): acc[m][s][fb]=V('',4,4)
    for tl in range(2):
        for fb in range(2):
            for mm in range(2): acc[2*tl+mm][2][fb]=V('',4,4)
    XF=[None,None]; WF=[None,None]
    for b in (1,0):
        XF[b]=[V('',4,4) for m in range(4)]; WF[b]=[[V('',4,4) for fb in range(2)] for s in range(3)]
    assert V.n==256
    def g1_dsaddr():
        a(f's_mul_i32 s{sT}, s{sW3}, 24576')
        a(f'v_and_b32 v{t[2]}, 15, v{lane}\nv_lshrrev_b32 v{t[3]}, 4, v{lane}\nv_bfe_u32 v{t[4]}, v{lane}, 1, 3')
        a(f'v_xor_b32 v{t[4]}, v{t[4]}, v{t[3]}\nv_lshlrev_b32 v{t[4]}, 4, v{t[4]}\nv_lshl_add_u32 v{t[4]}, v{t[2]}, 7, v{t[4]}')
        a(f'v_add_u32 v{vxa[0]}, s{sT}, v{t[4]}\nv_xor_b32 v{vxa[1]}, 64, v{vxa[0]}')
        a(f'v_lshlrev_b32 v{vst}, 4, v{t[2]}\nv_lshl_add_u32 v{vst}, v{t[3]}, 9, v{vst}')
        a(f'v_bfe_u32 v{t[2]}, v{lane}, 2, 2\nv_lshl_add_u32 v{t[4]}, v{t[3]}, 3, v{t[2]}\nv_lshlrev_b32 v{t[4]}, 7, v{t[4]}')
        a(f'v_and_b32 v{t[1]}, 3, v{lane}\nv_lshl_add_u32 v{t[4]}, v{t[1]}, 3, v{t[4]}')
        a(f'v_lshrrev_b32 v{t[2]}, 1, v{t[2]}\nv_lshl_add_u32 v{t[4]}, v{t[2]}, 5, v{t[4]}')
        a(f's_xor_b32 s{sT}, s{sKH}, s{sBR}\ns_xor_b32 s{sT}, s{sT}, 1')
        a(f'v_and_b32 v{t[3]}, 1, v{t[3]}\nv_xor_b32 v{t[3]}, s{sT}, v{t[3]}\nv_lshl_add_u32 v{t[4]}, v{t[3]}, 6, v{t[4]}')
        a(f'v_add_u32 v{vwa[0]}, {96*K}, v{t[4]}\nv_xor_b32 v{vwa[1]}, 32, v{vwa[0]}')
    def precompute():
        a=Asm()
        a(f'v_lshlrev_b32 v{vl16}, 4, v{lane}\nv_and_b32 v{vfl}, 31, v{lane}\nv_lshlrev_b32 v{vfl}, 7, v{vfl}\nv_lshrrev_b32 v{t[0]}, 5, v{lane}\nv_mul_u32_u24 v{t[0]}, {WS_FQ-WS_FL}, v{t[0]}\nv_add_u32 v{vfl}, v{vfl}, v{t[0]}')
        a(f's_lshl_b32 s{sHD}, s{sHP}, 1\ns_add_u32 s{sHD}, s{sHD}, 1\ns_sub_u32 s{sHD}, s{sHD}, s{sBR}')
        a(f's_mov_b32 s{sWS+2}, {WS_SIZE}\ns_mov_b32 s{sWS+3}, 0x20000\ns_mov_b32 s{sWo+2}, 0x200000\ns_mov_b32 s{sWo+3}, 0x20000\ns_mov_b32 s{sOut+2}, 0x800000\ns_mov_b32 s{sOut+3}, 0x20000')
        a(f's_mov_b32 s{sQS}, {QSCALE}')
        a(f's_xor_b32 s{sT}, s{sHD}, s{sKH}\ns_lshl_b32 s{sT2}, s{sBR}, 5\ns_add_u32 s{sT}, s{sT}, s{sT2}')
        a(f's_lshl_b32 s{sT2}, s{sMT}, 2\ns_add_u32 s{sT2}, s{sT2}, s{sW3}')
        a(f's_lshl_b32 s{sF1}, s{sT}, 5\ns_add_u32 s{sF1}, s{sF1}, s{sT2}')
        a(f's_lshl_b32 s{sQo}, s{sF1}, 12\ns_lshl_b32 s{sKV0}, s{sF1}, 13\ns_add_u32 s{sKV0}, s{sKV0}, {WS_KV}\ns_add_u32 s{sKV1}, s{sKV0}, 4096')
        a(f's_lshl_b32 s{sF1}, s{sF1}, 7\ns_add_u32 s{sF1}, s{sF1}, {WS_FL}')
        a(f's_lshl_b32 s{sM8}, s{sW3}, 13\ns_lshl_b32 s{sM4}, s{sW3}, 12\ns_lshl_b32 s{sMw}, s{sWave}, 12')
        a(f's_add_u32 s{sT}, s{sM8}, {96*K}\nv_add_u32 v{g[0]}, s{sT}, v{vst}\ns_add_u32 s{sT}, s{sM4}, 8192\nv_add_u32 v{g[1]}, s{sT}, v{vst}')
        a(f's_sub_u32 s{sT3}, s{sT2}, 4\ns_lshl_b32 s{sT3}, 1, s{sT3}\ns_lshl_b32 s{sT}, s{sMT}, 2\ns_lshl_b32 s{sMskA}, 15, s{sT}\ns_lshr_b32 s{sT}, s{sMskA}, 4\ns_or_b32 s{sMskA}, s{sMskA}, s{sT}')
        a(f's_cmp_eq_u32 s{sBR}, 0\ns_cselect_b32 s{sMskA}, s{sT3}, s{sMskA}')
        a(f'v_mov_b32 v{vidx}, 0xdddddddd')
        if opt.get('sel1',1):
            a(f'v_and_b32 v{t[3]}, 7, v{lane}\nv_lshrrev_b32 v{t[4]}, v{t[3]}, 1\nv_mul_u32_u24 v{t[4]}, 0x3f80, v{t[4]}\nv_lshl_or_b32 v{SEL}, v{t[4]}, 16, v{t[4]}\nv_mov_b32 v{SEL+1}, v{SEL}')
            a(f'v_xor_b32 v{t[3]}, 4, v{t[3]}\nv_lshrrev_b32 v{t[4]}, v{t[3]}, 1\nv_mul_u32_u24 v{t[4]}, 0x3f80, v{t[4]}\nv_lshl_or_b32 v{SEL+2}, v{t[4]}, 16, v{t[4]}\nv_mov_b32 v{SEL+3}, v{SEL+2}')
            a(f'v_bfe_u32 v{t[2]}, v{lane}, 2, 1')
        else:
            a(f'v_bfe_u32 v{t[2]}, v{lane}, 2, 1\nv_mul_u32_u24 v{t[3]}, 0x3f80, v{t[2]}\nv_lshl_or_b32 v{SEL+2}, v{t[3]}, 16, v{t[3]}')
            a(f'v_mov_b32 v{SEL+3}, v{SEL+2}\nv_xor_b32 v{SEL}, 0x3f803f80, v{SEL+2}\nv_xor_b32 v{SEL+1}, 0x3f803f80, v{SEL+2}')
        a(f'v_bfe_u32 v{t[3]}, v{lane}, 3, 2\nv_and_b32 v{t[4]}, 35, v{lane}\nv_lshl_add_u32 v{t[4]}, v{t[3]}, 2, v{t[4]}\nv_lshl_add_u32 v{t[4]}, v{t[2]}, 4, v{t[4]}\nv_lshlrev_b32 v{vkp}, 4, v{t[4]}')
        a(f's_lshl_b32 s{sT}, s{sHD}, 18\ns_add_u32 s{sKVA}, s{sT}, {WS_KV}\ns_add_u32 s{sKVB}, s{sT}, {WS_KV+(32<<18)}')
        a(f's_lshl_b32 s{sT}, s{sHD}, 12\ns_add_u32 s{sFA}, s{sT}, {WS_FL}\ns_add_u32 s{sFB}, s{sT}, {WS_FL+32*4096}')
        a(f's_lshr_b32 s{sT}, s{sMT}, 2\ns_lshl_b32 s{sT}, s{sT}, 4\ns_lshl_b32 s{sMsk}, 0xffff, s{sT}\ns_not_b32 s{sOth}, s{sMsk}')
        a(f's_and_b32 s{sT}, s{sHD}, 1\ns_lshl_b32 s{sWb}, s{sT}, 16\ns_lshl_b32 s{sSp}, s{sT}, 15\ns_lshl_b32 s{sT}, s{sT}, 4\ns_add_u32 s{sPi}, s{sT}, s{sHP}')
        a(f's_lshl_b32 s{sME}, 0xffff, s{sT}\ns_not_b32 s{sML}, s{sME}')
        a(f's_mov_b32 s{sC0}, {f2u(2.0**-112)}\ns_mov_b32 s{sC1}, 0x7f800000\ns_mov_b32 s{sC2}, {f2u(2.0**120)}\ns_mov_b32 s{sOffs}, {f2u(-float(opt.get("offs",100)))}')
        a(f's_sub_u32 s{sT}, 11, s{sWave}\ns_cmp_gt_u32 s{sKH}, s{sBR}\ns_cselect_b32 s{sQB}, s{sT}, s{sWave}\ns_lshl_b32 s{sJQ}, s{sMT}, 3\ns_add_u32 s{sJQ}, s{sJQ}, s{sQB}')
        a(f's_lshl_b32 s{sT}, s{sHD}, 6\ns_add_u32 s{sQAo}, s{sT}, s{sJQ}\ns_lshl_b32 s{sQAo}, s{sQAo}, 11')
        a(f's_lshl_b32 s{sT2}, s{sW3}, 1\ns_add_u32 s{sT2}, s{sT2}, s{sKH}\ns_lshl_b32 s{sT3}, s{sMT}, 3\ns_add_u32 s{sT}, s{sT}, s{sT3}\ns_add_u32 s{sT}, s{sT}, s{sT2}\ns_lshl_b32 s{sQBo}, s{sT}, 11\ns_add_u32 s{sQBo}, s{sQBo}, {WS_QF+(32<<17)}')
        a(f's_cmp_eq_u32 s{sBR}, 0\ns_cselect_b32 s{sT2}, s{sQB}, s{sT2}\ns_lshl_b32 s{sT2}, s{sT2}, 11\ns_add_u32 s{sT2}, s{sT2}, 8192\nv_add_u32 v{vq[0]}, s{sT2}, v{vl16}\nv_xor_b32 v{vq[1]}, 0x800, v{vq[0]}')
        a(f's_lshl_b32 s{sT}, s{sKH}, 14\ns_add_u32 s{sT}, s{sT}, {96*K}\ns_lshl_b32 s{sT2}, s{sQB}, 12\ns_add_u32 s{sT2}, s{sT2}, {64*K}\ns_cmp_eq_u32 s{sBR}, 0\ns_cselect_b32 s{sT}, s{sT2}, s{sT}')
        a(f'v_add_u32 v{vka[0]}, s{sT}, v{vkp}\nv_add_u32 v{vva[0]}, s{sT}, v{vl16}')
        a(f'v_bfe_u32 v{t[2]}, v{lane}, 4, 1\nv_lshrrev_b32 v{t[3]}, 5, v{lane}\nv_and_b32 v{vos}, 15, v{lane}\nv_lshlrev_b32 v{vos}, 4, v{vos}\nv_lshl_add_u32 v{vos}, v{t[2]}, 10, v{vos}\nv_lshl_add_u32 v{vos}, v{t[3]}, 8, v{vos}')
        a(f'v_and_b32 v{t[2]}, 31, v{lane}\nv_lshlrev_b32 v{t[3]}, 4, v{t[3]}\nv_sub_u32 v{t[2]}, v{t[2]}, v{t[3]}\nv_cvt_f32_i32 v{t[2]}, v{t[2]}\nv_mul_f32 v{t[2]}, {f2u(2.0**100)}, v{t[2]}')
        for r in range(16): a(f'v_add_f32 v{XM+r}, {f2u((0.5-r)*2.0**100)}, v{t[2]}')
        for r in range(16): a(f'v_min_f32 v{NM[1]+r}, 0, v{XM+r}')
        a(f's_lshl_b32 s{sT}, s{sBR}, 6\ns_lshl_b32 s{sT2}, s{sHP}, 2\ns_add_u32 s{sT}, s{sT}, s{sT2}\ns_add_u32 s{sT}, s{sT}, s{sW3}')
        a(f's_lshl_b32 s{sOb}, s{sT}, 16\ns_add_u32 s{sOb}, s{sOb}, {WS_OF}\ns_lshl_b32 s{sFO}, s{sT}, 12\ns_add_u32 s{sFO}, s{sFO}, {WS_F2}')
        a(f'v_lshrrev_b32 v{t[2]}, 4, v{lane}\nv_and_b32 v{t[3]}, 15, v{lane}\nv_lshlrev_b32 v{t[4]}, 1, v{t[2]}\nv_xor_b32 v{t[3]}, v{t[3]}, v{t[4]}')
        a(f's_lshr_b32 s{sT}, s{sW3}, 1\ns_lshl_b32 s{sT}, s{sT}, 6\ns_and_b32 s{sT2}, s{sW3}, 1\ns_lshl_b32 s{sT2}, s{sT2}, 4\ns_add_u32 s{sT}, s{sT}, s{sT2}')
        a(f'v_add_u32 v{t[2]}, s{sT}, v{t[2]}\nv_lshlrev_b32 v{t[2]}, 11, v{t[2]}\nv_lshl_add_u32 v{vgo[0]}, v{t[3]}, 4, v{t[2]}')
        a(f's_lshl_b32 s{sT}, s{sMT}, 8\nv_add_u32 v{vgo[0]}, s{sT}, v{vgo[0]}')
        a(f'v_xor_b32 v{vgo[1]}, 128, v{vgo[0]}\nv_add_u32 v{vgo[1]}, {4*2048-1024}, v{vgo[1]}')
        w8=opt.get('wot',2)==2
        a(f's_and_b32 s{sT2}, s{sHP}, {7 if w8 else 3}\ns_lshl_b32 s{sT2}, s{sT2}, 3\ns_add_u32 s{sT2}, s{sT2}, s{sWave}\ns_lshl_b32 s{sT2}, s{sT2}, {15 if w8 else 16}\ns_add_u32 s{sT}, s{sT}, s{sT2}')
        a(f'v_lshrrev_b32 v{t[2]}, 2, v{lane}\nv_and_b32 v{t[3]}, 3, v{lane}\nv_lshlrev_b32 v{t[3]}, 6, v{t[3]}\nv_lshl_add_u32 v{t[2]}, v{t[2]}, 11, v{t[3]}\nv_add_u32 v{vwt}, s{sT}, v{t[2]}')
        a(f's_lshl_b32 s{sT}, s{sKH}, 11\ns_add_u32 s{sPm}, s{sM4}, s{sT}\ns_add_u32 s{sPo}, s{sOb}, s{sT}\ns_lshl_b32 s{sPw}, s{sKH}, 14')
        a(f's_and_b32 s{sT}, s{sW3}, 1\ns_lshl_b32 s{sT}, s{sT}, 13\nv_add_u32 v{vva[1]}, s{sT}, v{vl16}')
        a(f'v_bfe_u32 v{t[0]}, v{lane}, 2, 3\nv_lshrrev_b32 v{t[1]}, 5, v{lane}\nv_lshl_add_u32 v{t[1]}, v{t[1]}, 4, v{t[0]}\nv_lshlrev_b32 v{t[1]}, 8, v{t[1]}')
        a(f'v_and_b32 v{t[2]}, 3, v{lane}\nv_lshl_add_u32 v{t[1]}, v{t[2]}, 3, v{t[1]}')
        a(f's_lshr_b32 s{sT}, s{sW3}, 1\ns_lshl_b32 s{sT}, s{sT}, 2\nv_xor_b32 v{t[0]}, s{sT}, v{t[0]}\nv_lshl_add_u32 v{vka[1]}, v{t[0]}, 5, v{t[1]}')
        a(f's_lshl_b32 s{sT}, s{sJQ}, 5\ns_add_u32 s{sT}, s{sT}, s{sPi}\ns_lshl_b32 s{sOA}, s{sT}, 11\ns_add_u32 s{sOA}, s{sOA}, {WS_OF}\ns_lshl_b32 s{sF2A}, s{sT}, 7\ns_add_u32 s{sF2A}, s{sF2A}, {WS_F2}')
        a(f's_lshl_b32 s{sT}, s{sMT}, 2\ns_add_u32 s{sT}, s{sT}, s{sW3}\ns_lshl_b32 s{sT}, s{sT}, 1\ns_add_u32 s{sT}, s{sT}, s{sKH}\ns_lshl_b32 s{sT}, s{sT}, 5\ns_add_u32 s{sT}, s{sT}, s{sPi}')
        a(f's_lshl_b32 s{sO}, s{sT}, 11\ns_add_u32 s{sO}, s{sO}, {WS_OF+(1<<22)}\ns_lshl_b32 s{sF2}, s{sT}, 7\ns_add_u32 s{sF2}, s{sF2}, {WS_F2+(1<<18)}')
        a(f'v_mov_b64 {vr(vtag,2)}, 0')
        a(f's_or_b32 s{sT}, s{sHD}, 1\ns_lshl_b32 s{sT}, s{sT}, 3\ns_add_u32 s{sT}, s{sT}, s{sMT}\ns_lshl_b32 s{sT}, s{sT}, 2\ns_add_u32 s{sT}, s{sT}, s{sW3}\ns_lshl_b32 s{sNMo}, s{sT}, 9\ns_add_u32 s{sNMo}, s{sNMo}, {WS_NM}')
        if opt.get('two',1):
            a(f's_lshl_b32 s{sT}, s{sMT}, 2\ns_sub_u32 s{sT}, s{sT}, 4\ns_lshl_b32 s{sMsk}, 3, s{sT}\ns_lshr_b32 s{sT2}, s{sW3}, 1\ns_add_u32 s{sT}, s{sT}, s{sT2}\ns_lshl_b32 s{sT}, 4, s{sT}')
            a(f's_cmp_eq_u32 s{sBR}, 0\ns_cselect_b32 s{sMskA}, s{sT}, s{sMskA}')
        a(f's_add_u32 s{sFQ}, s{sF1}, {WS_FQ-WS_FL}\ns_and_b32 s{sT}, s{sMT}, 4\ns_lshl_b32 s{sT}, s{sT}, 2\ns_lshl_b32 s{sM0}, 15, s{sT}')
        a(f's_lshl_b32 s{sT}, s{sMT}, 2\ns_add_u32 s{sT}, s{sT}, s{sW3}\ns_lshl_b32 s{sM0+1}, 1, s{sT}')
        if opt.get('asst',0):
            a(f's_and_b32 s{sT}, s{sMT}, 3')
            for i,r in ((1,sM1),(2,sM2),(3,sM3)):
                a(f's_cmp_ge_u32 s{sT}, {i}\ns_cselect_b32 s{sT3}, {4*(i-1)}, {4*i}\ns_lshl_b32 s{r}, s{sM0}, s{sT3}')
            a(f's_lshl_b32 s{sT3}, s{sT}, 2\ns_lshl_b32 s{sT3}, s{sM0}, s{sT3}\ns_or_b32 s{sT3}, s{sT3}, s{sOth}\ns_mov_b32 s{sM0}, s{sM1}')
            a(f's_cmp_eq_u32 s{sBR}, 0\ns_cselect_b32 s{sM1}, s{sM2}, s{sM1}\ns_cselect_b32 s{sM2}, s{sM3}, s{sM2}\ns_cselect_b32 s{sM3}, s{sT3}, s{sM3}')
        else:
            a(f's_and_b32 s{sT}, s{sMT}, 3\ns_mul_i32 s{sT2}, s{sT}, s{sBR}')
            for i,r in ((1,sM1),(2,sM2),(3,sM3)):
                a(f's_cmp_ge_u32 s{sT2}, {i}\ns_cselect_b32 s{sT3}, {4*(i-1)}, {4*i}\ns_lshl_b32 s{r}, s{sM0}, s{sT3}')
        wt=opt.get('when',[0,0,0,2,1,1,2,3] if opt.get('asst',0) else [0,0,0,2,1,2,3,3]); assert 1 not in wt[:4] and 0 not in wt[4:]
        a(f's_lshl_b32 s{sT2}, s{sKH}, 2\ns_add_u32 s{sT}, s{sT}, s{sT2}\ns_lshl_b32 s{sT}, s{sT}, 1\ns_lshr_b32 s{sWhen}, {sum(w<<(2*i) for i,w in enumerate(wt))}, s{sT}\ns_and_b32 s{sWhen}, s{sWhen}, 3')
        a(f's_lshl_b32 s{sOc}, s{sHP}, 1\ns_and_b32 s{sT}, s{sW3}, 1\ns_add_u32 s{sOc}, s{sOc}, s{sT}\ns_lshl_b32 s{sOc}, s{sOc}, 18')
        a(f's_lshl_b32 s{sT}, s{sBR}, 11\ns_add_u32 s{sOc}, s{sOc}, s{sT}\ns_lshl_b32 s{sT}, s{sMT}, 8\ns_add_u32 s{sOc}, s{sOc}, s{sT}\ns_lshr_b32 s{sT}, s{sW3}, 1\ns_lshl_b32 s{sT}, s{sT}, 7\ns_add_u32 s{sOc}, s{sOc}, s{sT}')
        a(f'v_mov_b32 v{t[4]}, 0')
        return a
    def groups(a_):
        G=[]
        for x in a_.L:
            x=x.strip()
            if G and (x.startswith('s_cselect') or 'exec' in x or (G[-1][-1].startswith('s_mov_b') and 'exec' in G[-1][-1] and not G[-1][-1].endswith('exec, -1'))): G[-1].append(x)
            else: G.append([x])
        return G
    g1a=opt.get('g1a','')
    def dmaX(s,jj,first):
        o=[[f's_add_u32 m0, s{sXm+jj}, {(s%3)*8192}']+([f's_movk_i32 s{sKX}, {s*128}'] if first else [])]
        o+=[[f'buffer_load_dwordx4 v{vgx[2*jj]}, {sr(sX,4)}, s{sKX} offen{g1a} lds'],[f'buffer_load_dwordx4 v{vgx[2*jj+1]}, {sr(sX,4)}, s{sKX} offen offset:1024{g1a} lds']]
        return o
    def dmaW(n,i,setk=True):
        s,seg=divmod(n,3)
        return [[f's_add_u32 m0, s{sWm+i}, {(n%8)*8192}']+([f's_mov_b32 s{sKW}, {s*64*6144+seg*2048}'] if setk else []),[f'buffer_load_dwordx4 v{vgw[i]}, {sr(sW,4)}, s{sKW} offen{g1a} lds']]
    def flat(groups):
        o=[]
        for gr in groups:
            o+=gr
            if len(gr)==1 and 'm0' in gr[0]: o.append('s_nop 0')
        return o
    cols=[(s,fb) for s in range(3) for fb in range(2)]
    def reads(s,j,b):
        def wr(seg,fb):
            off=((3*s+seg)%8)*8192+j*4096
            return [f'ds_read_b64_tr_b16 {vr(WF[b][seg][fb],2)}, v{vwa[fb]} offset:{off}', f'ds_read_b64_tr_b16 {vr(WF[b][seg][fb]+2,2)}, v{vwa[fb]} offset:{off+512}']
        def xr(m): return [f'ds_read_b128 {vr(XF[b][m],4)}, v{vxa[j]} offset:{(s%3)*8192+m*2048}']
        R=xr(0)
        for c in cols: R+=wr(*c)
        return R+xr(1)+xr(2)+xr(3)
    if opt.get('zord',1):
        mord=[]
        for mb in range(2):
            for seg in (range(3) if mb==0 else range(2,-1,-1)): mord+=[(2*mb,seg,0),(2*mb+1,seg,0),(2*mb+1,seg,1),(2*mb,seg,1)]
    else: mord=[(m,seg,fb) for m in range(4) for seg,fb in (cols if m%2==0 else cols[::-1])]
    def mfmas(b, first):
        M=[]
        for m,seg,fb in mord:
            A_,B_=(WF[b][seg][fb],XF[b][m]) if seg<2 else (XF[b][m],WF[b][seg][fb])
            d=vr(acc[m][seg][fb],4)
            M.append(f'v_mfma_f32_16x16x32_bf16 {d}, {vr(A_,4)}, {vr(B_,4)}, {"0" if first else d}')
        return M
    def stage_full(s):
        return dmaX(s,0,True)+dmaW(3*s,0)+dmaW(3*s+1,0)+dmaW(3*s+2,0)+dmaX(s,1,False)+dmaW(3*s,1)+dmaW(3*s+1,1)+dmaW(3*s+2,1)+dmaX(s,2,False)+dmaX(s,3,False)
    pieces=[(acc[0][1][0],'k',0,0),(acc[0][0][0],'q',0,0),(acc[0][2][1],'v',0,1),(acc[0][2][0],'v',0,0),(acc[1][1][0],'k',0,1),(acc[1][0][0],'q',0,1),
            (acc[2][0][0],'q',1,0),(acc[2][1][0],'k',1,0),(acc[2][2][1],'v',1,1),(acc[2][2][0],'v',1,0),(acc[3][1][0],'k',1,1),(acc[3][0][0],'q',1,1)]
    def done(p): return max(i for i,(m,seg,fb) in enumerate(mord) if p[0]<=acc[m][seg][fb]<p[0]+8)
    pieces.sort(key=done)
    done_at=[done(p) for p in pieces]
    assert min(done_at[10:])>=max(i for i,(m,seg,fb) in enumerate(mord) if seg==2)
    hreg=[H+8+4*i for i in range(10)]+[H,H+4]
    def packi(dst,c,kind):
        o=[f'v_mul_f32 v{c+i}, s{sQS}, v{c+i}' for i in range(8)] if kind=='q' else []
        return o+[f'v_cvt_pk_bf16_f32 v{dst+i}, v{c+2*i}, v{c+2*i+1}' for i in range(4)]
    def gstore(reg,kind,tl,sub):
        if kind=='q': so,off=sQo,tl*2048+sub*256
        else: so,off=(sKV0,sKV1)[tl],(2048 if kind=='v' else 0)+sub*256
        return f'buffer_store_dwordx4 {vr(reg,4)}, v{vst}, {sr(sWS,4)}, s{so} offen offset:{off} sc1'
    def lstore(reg,kind,tl,sub):
        if kind=='q': return f'ds_write_b128 v{g[1]}, {vr(reg,4)} offset:{tl*2048+sub*256}'
        return f'ds_write_b128 v{g[0]}, {vr(reg,4)} offset:{tl*4096+(2048 if kind=="v" else 0)+sub*256}'
    held=[gstore(hreg[i],*p[1:]) for i,p in enumerate(pieces)]
    def g1_loop(old, extra={}, carry=[], pre=[]):
        TR.mark('B0')
        emit(reads(0,0,0))
        pend=[]
        if old: pend=list(carry)
        rest=[]; nl=opt.get('nl',10)
        for s in range(16):
            for j in range(2):
                if j==1 and s<15:
                    assert not pend
                    a(f's_waitcnt vmcnt({(w1 if s==0 else 12) if s<14 else 0}) lgkmcnt(0)' if old else ('s_waitcnt vmcnt(0) lgkmcnt(0)' if s==nl+2 else 's_waitcnt lgkmcnt(0)'))
                    if s==nl+2:
                        Lc=lab('DC'); D=lab('DD')
                        a(f'v_cmp_eq_u32 vcc, 1, v{vtag+1}\ns_cmp_eq_u64 vcc, -1\ns_cbranch_scc0 {Lc}\n{D}:\nv_not_b32 v{vtag+1}, v{vtag}')
                        tail(f'{Lc}:\ns_mov_b32 s{sSpin}, 0\n{Lc}x:\nglobal_load_dwordx2 {vr(vtag,2)}, v{t[4]}, s[{pDbg}:{pDbg+1}] sc1\ns_waitcnt vmcnt(0)')
                        tail(f'v_cmp_eq_u32 vcc, 1, v{vtag+1}\ns_cmp_eq_u64 vcc, -1\ns_cbranch_scc1 {D}')
                        tail(f's_add_u32 s{sSpin}, s{sSpin}, 1\ns_cmp_lt_u32 s{sSpin}, {SPIN}\ns_cbranch_scc1 {Lc}x\ns_branch {D}')
                    if old and s==14 and opt.get('visit',1):
                        Lx=lab('VX'); Le=lab('VE')
                        a(f's_cmp_eq_u32 s{sBR}, 1\ns_cbranch_scc1 {Lx}'); emit(visit('YOLD')); a(f's_branch {Le}\n{Lx}:'); emit(visit('XOLD')); a(f'{Le}:')
                    a('s_barrier')
                    if not old:
                        if s+1 in opt.get('gyb',[]): a(f's_branch GYB{s+1}\n.p2align 12')
                        a(f'GYB{s+1}:')
                    if s%2==1 or (s<6 and opt.get('g1tr')): TR.mark(f'B{s+1}')
                    sn=s+1
                    if old:
                        if 3*sn+5<48: pend+=dmaW(3*sn+5,0)+dmaW(3*sn+5,1,False)
                        if sn+2<16: pend+=dmaX(sn+2,0,True)+dmaW(3*sn+6,0)+dmaW(3*sn+7,0)+dmaX(sn+2,1,False)+dmaW(3*sn+6,1)+dmaW(3*sn+7,1)+dmaX(sn+2,2,False)+dmaX(sn+2,3,False)
                else:
                    a('s_waitcnt lgkmcnt(0)'); TR.commit()
                R=reads(s,1,1) if j==0 else (reads(s+1,0,0) if s<15 else [])
                M=mfmas(j, s==0 and j==0)
                fill=[[] for _ in M]
                t2=opt.get('tail2',2)
                if t2 and not old and (s,j)==(14,1):
                    if t2==1: a('s_setprio 2')
                    else: emit(R); R=[]
                if t2 and not old and (s,j)==(15,0): emit(R); R=[]; a('s_setprio 0')
                for q,r_ in enumerate(R): fill[q].append(r_)
                step=1 if (s==0 and j==0) else 2
                for sl in range(0,24,step):
                    if pend: fill[sl]+=pend.pop(0)
                    while s==0 and j==0 and len(pend)>23-sl:
                        if len(fill[sl])>0 and 'm0' in fill[sl][-1]: fill[sl].append('s_nop 0')
                        fill[sl]+=pend.pop(0)
                ser=opt.get('ser',{'0':130,'1':110,'2':70})
                head=[]; foot=[]
                def take(n_):
                    o=[]
                    while pre and len(o)<n_: o+=pre.pop(0)
                    return o
                if j==1 and str(s) in ser: head=take(ser[str(s)])
                if (s,j)==(0,0): head=take(ser.get('h',0)); foot=take(ser.get('f',0))
                if s>=opt.get('pc0',8):
                    for sl in range(16,24):
                        k_=0
                        while pre and k_<opt.get('pcn',2):
                            gr=pre.pop(0); fill[sl]+=gr; k_+=len(gr)
                if (s,j)==(nl,0): assert not pre
                emit(head)
                if (s,j) in extra: fill[18]+=extra[(s,j)]
                if (s,j)==(nl,0): fill[21]+=[f'global_load_dwordx2 {vr(vtag,2)}, v{t[4]}, s[{pDbg}:{pDbg+1}] sc1']
                if (s,j)==(15,1):
                    qq=[]
                    for i,p in enumerate(pieces):
                        qq+=[(done_at[i],x) for x in packi(hreg[i],p[0],p[1])]
                    pos=[0]*24; cnt=0
                    for sl in range(24):
                        pos[sl]=cnt; cnt+=1
                        n_=0
                        while qq and n_<2 and qq[0][0]<=sl and cnt-pos[qq[0][0]]-1>=8:
                            fill[sl].append(qq.pop(0)[1]); cnt+=1; n_+=1
                    for d,x in qq:
                        gap=cnt-pos[d]-1
                        if gap<8: rest.append(f's_nop {7-gap}'); cnt+=8-gap
                        rest.append(x); cnt+=1
                emit(interleave(M,fill)); emit(foot)
        assert not pend
        return rest
    if_young('G1Y')
    a(f'v_lshrrev_b32 v{t[2]}, 3, v{lane}\nv_and_b32 v{t[3]}, 7, v{lane}\nv_lshrrev_b32 v{t[4]}, 4, v{lane}')
    a(f's_lshl_b32 s{sT}, s{sMT}, 8\ns_lshl_b32 s{sT2}, s{sWave}, 6\ns_add_u32 s{sT}, s{sT}, s{sT2}')
    a(f'v_add_u32 v{vdum}, s{sT}, v{t[2]}\nv_lshlrev_b32 v{vdum}, 11, v{vdum}')
    a(f'v_xor_b32 v{t[0]}, v{t[3]}, v{t[4]}\nv_lshl_add_u32 v{t[0]}, v{t[0]}, 4, v{vdum}')
    a(f'v_xor_b32 v{t[1]}, 64, v{t[0]}\nv_add_u32 v{t[1]}, {8*2048-1024}, v{t[1]}')
    a(f's_and_b32 s{sT2}, s{sHP}, 3\ns_mul_i32 s{sT3}, s{sWave}, 24576')
    for jj in range(4):
        a(f's_xor_b32 s{sT}, s{sT2}, {jj}\ns_lshl_b32 s{sXm+jj}, s{sT}, 11\ns_add_u32 s{sXm+jj}, s{sXm+jj}, s{sT3}\ns_lshl_b32 s{sT}, s{sT}, 15')
        a(f'v_add_u32 v{vgx[2*jj]}, s{sT}, v{t[0]}\nv_add_u32 v{vgx[2*jj+1]}, s{sT}, v{t[1]}')
    a(f's_and_b32 s{sT2}, s{sMT}, 1\ns_lshl_b32 s{sT}, s{sWave}, 1\ns_add_u32 s{sT}, s{sT}, s{sT2}')
    a(f's_lshl_b32 s{sWm}, s{sT}, 10\ns_add_u32 s{sWm}, s{sWm}, {96*K}\ns_xor_b32 s{sWm+1}, s{sWm}, 1024')
    a(f's_lshl_b32 s{sT}, s{sT}, 3\nv_add_u32 v{vdum}, s{sT}, v{t[2]}\nv_xor_b32 v{t[0]}, 8, v{vdum}')
    a(f'v_mul_u32_u24 v{vdum}, 6144, v{vdum}\nv_mul_u32_u24 v{t[0]}, 6144, v{t[0]}')
    a(f's_lshl_b32 s{sT2}, s{sT2}, 2\nv_and_b32 v{t[4]}, 1, v{t[4]}\nv_lshl_add_u32 v{t[4]}, v{t[4]}, 1, s{sT2}\nv_xor_b32 v{t[4]}, v{t[4]}, v{t[3]}')
    a(f's_lshl_b32 s{sT}, s{sHP}, 7\nv_lshl_add_u32 v{t[4]}, v{t[4]}, 4, s{sT}')
    a(f'v_add_u32 v{vgw[0]}, v{t[4]}, v{vdum}\nv_xor_b32 v{t[4]}, 64, v{t[4]}\nv_add_u32 v{vgw[1]}, v{t[4]}, v{t[0]}')
    a('s_waitcnt lgkmcnt(0)')
    pt=opt.get('ptr') and TR.on
    if pt: TR.now('karg')
    order=opt.get('pro','X00 W00 X01 D W01 X02 X03 X10 W10 X11 W11 X12 X13 | W20 X20 W21 X21 X22 X23').split()
    def tok(x):
        s_,q_=int(x[1]),int(x[2])
        if x[0]=='X': return dmaX(s_,q_,True)
        o=[]
        for seg in range(3 if s_<2 else 2): o+=dmaW(3*s_+seg,q_)
        return o
    nld=lambda x: 0 if x in 'D|' else (2 if x[0]=='X' or x[1]=='2' else 3)
    bi=order.index('|')
    for x in order[:bi]:
        if x=='D': g1_dsaddr()
        else: emit(flat(tok(x)))
    assert not any(x[1]=='0' for x in order[bi+1:])
    l0=max(i for i,x in enumerate(order) if len(x)==3 and x[1]=='0'); l1=max(i for i,x in enumerate(order) if len(x)==3 and x[1]=='1')
    carry=[]
    for x in order[bi+1:]: carry+=tok(x)
    w1=sum(nld(x) for x in order[l1+1:])
    if pt: TR.now('iss')
    if pt: a(f's_waitcnt vmcnt({sum(nld(x) for x in order[l0+1:bi])})'); TR.now('land')
    a(f'G1O:\ns_waitcnt vmcnt({sum(nld(x) for x in order[l0+1:bi])})\ns_barrier')
    ntr0=TR.n
    rest=g1_loop(True,{},carry,groups(precompute()))
    emit(rest)
    TR.now('mainend')
    a(f's_cmp_eq_u32 s{sBR}, 0\ns_cbranch_scc1 YOLD\ns_branch XOLD')
    urg=[held[i] for i,p in enumerate(pieces) if p[1]!='q']
    heldq=[held[i] for i,p in enumerate(pieces) if p[1]=='q']
    def old_epi(X):
        ls=[lstore(hreg[i],*p[1:]) for i,p in enumerate(pieces)]
        mode=opt.get('xurg','first') if X else opt.get('yurg','first')
        u_=[when(0,urg)] if X else urg
        if not X and opt.get('ysp',1) and opt.get('y7',1):
            def sk():
                L7=lab('Y7'); a(f's_cmp_eq_u32 s{sMT}, 7\ns_cbranch_scc1 {L7}'); emit(urg); a(f'{L7}:')
            u_=[sk]
        if mode=='wait': emit(ls+['s_waitcnt lgkmcnt(0)']+u_)
        elif mode=='first': emit(u_+ls)
        elif mode=='split':
            L1=lab('SP'); L2=lab('SP')
            a(f's_cmp_lt_u32 s{sWave}, 2\ns_cbranch_scc1 {L1}'); emit(u_); a(f'{L1}:'); emit(ls)
            a(f's_cmp_ge_u32 s{sWave}, 2\ns_cbranch_scc1 {L2}'); emit(u_); a(f'{L2}:')
        else:
            for i,p in enumerate(pieces):
                if p[1]!='q': a(held[i])
                a(ls[i])
    if opt.get('gya',1): a('.p2align 12')
    a('G1Y:')
    ntr1=TR.n; TR.n=ntr0
    if pt: TR.n-=3; TR.now('karg')
    vpf=vgx[4]
    a(f's_lshl_b32 s{sT}, s{sMT}, 4\ns_add_u32 s{sT}, s{sT}, s{sHP}\ns_and_b32 s{sT2}, s{sT}, 1\ns_lshr_b32 s{sT}, s{sT}, 1\ns_lshl_b32 s{sT3}, s{sW3}, 6\ns_add_u32 s{sT}, s{sT}, s{sT3}')
    a(f's_mul_i32 s{sT}, s{sT}, 6144\ns_lshl_b32 s{sT2}, s{sT2}, 10\ns_add_u32 s{sT}, s{sT}, s{sT2}\ns_add_u32 s{sT}, s{sT}, 384')
    a(f'v_min_u32 v{t[2]}, 5, v{lane}\nv_lshrrev_b32 v{t[3]}, 1, v{t[2]}\nv_and_b32 v{t[2]}, 1, v{t[2]}\nv_lshlrev_b32 v{t[2]}, 6, v{t[2]}\nv_lshl_add_u32 v{t[2]}, v{t[3]}, 11, v{t[2]}\nv_add_u32 v{vpf}, s{sT}, v{t[2]}')
    a('s_waitcnt lgkmcnt(0)')
    if opt.get('vp0',0): a(f'buffer_load_dword v{vdum}, v{vpf}, {sr(sW,4)}, 0 offen')
    g1_dsaddr()
    if opt.get('xt'):
        nst=opt['xt']
        a(f's_lshl_b32 s{sT}, s{sMT}, 4\ns_add_u32 s{sT}, s{sT}, s{sHP}\ns_lshl_b32 s{sT}, s{sT}, 2\ns_add_u32 s{sT}, s{sT}, s{sW3}\ns_lshl_b32 s{sT}, s{sT}, 13\ns_add_u32 s{sT}, s{sT}, {opt.get("xt0",1)*128}')
        a(f'v_lshrrev_b32 v{t[2]}, 4, v{lane}\nv_and_b32 v{t[3]}, 15, v{lane}\nv_min_u32 v{t[3]}, {2*nst-1}, v{t[3]}\nv_lshlrev_b32 v{t[3]}, 6, v{t[3]}\nv_lshl_add_u32 v{t[2]}, v{t[2]}, 11, v{t[3]}')
        a(f'buffer_load_dword v{vdum}, v{t[2]}, {sr(sX,4)}, s{sT} offen')
    if opt.get('wt'):
        a(f's_min_u32 s{sT}, s{sW3}, {opt["wt"]-1}\ns_add_u32 s{sT}, s{sT}, {opt.get("xt0",1)}\ns_lshl_b32 s{sT}, s{sT}, 3\ns_add_u32 s{sT}, s{sT}, s{sMT}\ns_mul_i32 s{sT}, s{sT}, {8*6144}\ns_lshl_b32 s{sT2}, s{sHP}, 7\ns_add_u32 s{sT}, s{sT}, s{sT2}')
        a(f'v_min_u32 v{t[2]}, 47, v{lane}\nv_and_b32 v{t[3]}, 1, v{t[2]}\nv_lshrrev_b32 v{t[2]}, 1, v{t[2]}\nv_lshlrev_b32 v{t[3]}, 6, v{t[3]}\nv_lshl_add_u32 v{t[2]}, v{t[2]}, 11, v{t[3]}')
        a(f'buffer_load_dword v{vdum}, v{t[2]}, {sr(sW,4)}, s{sT} offen')
    sp_=opt.get('spf',[])
    if sp_:
        a(f's_lshl_b32 s{sXm}, s{sMT}, 4\ns_add_u32 s{sXm}, s{sXm}, s{sHP}\ns_lshl_b32 s{sXm}, s{sXm}, 2\ns_add_u32 s{sXm}, s{sXm}, s{sW3}\ns_lshl_b32 s{sXm}, s{sXm}, 13')
        a(f's_lshl_b32 s{sXm+1}, s{sMT}, 2\ns_add_u32 s{sXm+1}, s{sXm+1}, s{sW3}\ns_mul_i32 s{sXm+1}, s{sXm+1}, 12288\ns_lshl_b32 s{sT}, s{sHP}, 7\ns_add_u32 s{sXm+1}, s{sXm+1}, s{sT}')
    def spf(s_,what='xw'):
        o=[]
        if 'w' in what: o+=[f's_add_u32 s{sXm+4}, s{sXm+1}, {s_*64*6144}']+[f's_load_dwordx2 s[{sXm+2}:{sXm+3}], s[{sW}:{sW+1}], s{sXm+4} offset:{i*2048+60}' for i in range(6)]
        if 'x' in what: o+=[f's_load_dwordx2 s[{sXm+2}:{sXm+3}], s[{sX}:{sX+1}], s{sXm} offset:{i*2048+s_*128+60}' for i in range(4)]
        return o
    if sp_: emit(spf(sp_[0],opt.get('spw','xw')))
    if opt.get('ctouch0',1):
        a(f's_getpc_b64 s[4:5]\nG1PC:\ns_lshr_b32 s{sT}, s2, 3\ns_lshl_b32 s{sT}, s{sT}, 2\ns_add_u32 s{sT}, s{sT}, s{sW3}\ns_mul_i32 s{sT}, s{sT}, 320')
        a(f's_sub_u32 s4, s4, G1PC-G1O\ns_subb_u32 s5, s5, 0')
        for i in range(5): a(f's_load_dword s{sSpin}, s[4:5], s{sT} offset:{i*64}')
    if opt.get('tlbw',1):
        a(f's_lshl_b32 s{sK}, s{sW3}, 20\ns_add_u32 s{sK}, s{sK}, {2<<20}\ns_load_dword s{sSpin}, s[{sW}:{sW+1}], s{sK}')
    if opt.get('tlb',0)>=1:
        a(f's_bfe_u32 s{sK}, s2, 0x30003\ns_lshl_b32 s{sK}, s{sK}, 2\ns_add_u32 s{sK}, s{sK}, s{sW3}\ns_min_u32 s{sK}, s{sK}, 16\ns_lshl_b32 s{sK}, s{sK}, 21\ns_load_dword s{sSpin}, s[{sWS}:{sWS+1}], s{sK}')
    if opt.get('tlb',0)>=2:
        a(f's_lshl_b32 s{sK}, s{sW3}, 21\ns_load_dword s{sSpin}, s[{sOut}:{sOut+1}], s{sK}\ns_load_dword s{sSpin}, s[{sWo}:{sWo+1}], 0')
    a(f's_lshl_b32 s{sT}, s2, 3\ns_add_u32 s{sT}, s{sT}, s{sWave}\ns_cmp_eq_u32 s{sT}, 7\ns_cbranch_scc0 G1Y1')
    a(f's_mov_b64 exec, 1\nv_mov_b32 v{vgx[2]}, {WS_EP}\nv_mov_b32 v{vgx[3]}, 0')
    a(f'global_load_dword v{vgx[0]}, v{vgx[2]}, s[{sWS}:{sWS+1}] sc1\nv_mov_b32 v{vgx[1]}, 1\ns_waitcnt vmcnt(0)')
    a(f'v_add_u32 v{vgx[0]}, 1, v{vgx[0]}')
    a(f'global_store_dword v{vgx[2]}, v{vgx[0]}, s[{sWS}:{sWS+1}] sc1\nglobal_store_dwordx2 v{vgx[3]}, {vr(vgx[0],2)}, s[{pDbg}:{pDbg+1}] sc1')
    a('s_mov_b64 exec, -1\nG1Y1:')
    pc=precompute()
    vfw=vgx[6]
    pc(f'v_bfe_u32 v{t[2]}, v{lane}, 3, 1\nv_and_b32 v{t[3]}, 0x70, v{vl16}\nv_lshl_add_u32 v{vfw}, v{t[2]}, 12, v{t[3]}\nv_lshl_add_u32 v{t[3]}, v{t[2]}, 14, v{t[3]}')
    pc(f'v_xor_b32 v{t[2]}, s{sF2}, v{vfw}\nv_xor_b32 v{vfw}, s{sF1}, v{vfw}\nv_xor_b32 v{t[3]}, s{sF2A}, v{t[3]}\nv_mov_b32 v{t[1]}, v{vfw}')
    pc(f's_mov_b64 exec, 0xffff0000\nv_mov_b32 v{vfw}, v{t[3]}\ns_mov_b32 exec_lo, 0\ns_mov_b32 exec_hi, -1\nv_mov_b32 v{vfw}, v{t[2]}\ns_mov_b32 exec_hi, 0xffff0000\nv_add_u32 v{vfw}, {WS_FQ-WS_FL}, v{t[1]}\ns_mov_b64 exec, -1')
    if opt.get('fwarm',1): pc(f'buffer_store_dwordx4 {vr(vtag,4)}, v{vfw}, {sr(sWS,4)}, 0 offen sc1')
    pcy=groups(pc)
    if not opt.get('ypre',0):
        for s_ in sp_[1:]: emit(spf(s_,opt.get('spw','xw')))
    if opt.get('ypre',0):
        for i,gr in enumerate(pcy):
            emit(gr)
            for q,s_ in enumerate(sp_[1:]):
                if i==(q+1)*len(pcy)//len(sp_): emit(spf(s_,opt.get('spw','xw')))
        pcy=[]
    ex={}
    for gi,pos in enumerate(opt.get('vp',[0,4,8])):
        ex[(pos,0)]=[f's_mov_b32 s{sK}, {(gi+1)*4*64*6144}', f'buffer_load_dword v{vdum}, v{vpf}, {sr(sW,4)}, s{sK} offen']
    if opt.get('ctouch',1):
        a(f's_getpc_b64 s[4:5]\nG1PD:\ns_add_u32 s4, s4, GYB15-G1PD\ns_addc_u32 s5, s5, 0\ns_lshr_b32 s{sT}, s2, 3\ns_lshl_b32 s{sT}, s{sT}, 11\nv_and_b32 v{vgx[5]}, 31, v{lane}\nv_lshl_add_u32 v{vgx[5]}, v{vgx[5]}, 6, s{sT}')
        a(f'v_min_u32 v{vgx[5]}, CODE_END-GYB15-64, v{vgx[5]}')
        Lc=lab('CT')
        ex[(opt.get('ctpos',13),0)]=[f's_cmp_lg_u32 s{sWave}, 4', f's_cbranch_scc1 {Lc}', f'global_load_dword v{vdum}, v{vgx[5]}, s[4:5]', f'{Lc}:']
    if pt: TR.mark('iss'); a('s_waitcnt lgkmcnt(0)'); TR.commit(); TR.now('land')
    a('s_barrier')
    rest=g1_loop(False,ex,[],pcy)
    emit(rest)
    TR.now('mainend')
    assert TR.n==ntr1
    import fy2
    fy2.rest_of_kernel(locals())
    a('END:\ns_endpgm')
    entry('YHOT',11); a.L+=hot.L
    build0.trmap=TR.map
    return '; @launch grid=(256,1,1) block=(512,1,1) lds=163840\n.amdgcn_target "amdgcn-amd-amdhsa--gfx950"\n'+kernel_header(NAME)+a.text()+tail.text()+'CODE_END:\n    s_endpgm\n'+'.section .rodata,"a"\n.p2align 6\n'+kernel_desc(NAME,256)
def build(stamps=False,opt={}):
    import subprocess, os, tempfile
    opt=dict(opt)
    if opt.get('auto',1) and 'dx' not in opt:
        src=build0(stamps,opt)
        d=tempfile.mkdtemp(); open(d+'/a.s','w').write(src)
        subprocess.run(['clang','-x','assembler','-target','amdgcn-amd-amdhsa','-mcpu=gfx950','-c',d+'/a.s','-o',d+'/a.o'],check=True)
        sym={}
        for l in subprocess.run(['llvm-readelf','-s',d+'/a.o'],capture_output=True,text=True).stdout.split('\n'):
            f=l.split()
            if len(f)==8 and f[0].endswith(':') and f[0][:-1].isdigit(): sym[f[7]]=int(f[1],16)
        if opt.get('gya',1):
            pos=sym['GYB1']-sym['G1Y']; br_=[]
            for q in range(1,16):
                sz=sym[f'GYB{q+1}']-sym[f'GYB{q}']
                if (pos+sz+8)//4096!=pos//4096: br_.append(q); pos=(pos//4096+1)*4096
                pos+=sz
            opt['gyb']=br_
        for r in 'XY':
            base=sym[r+'OLD']&~4095; sl=[sym.get(f'{r}S{n}',sym[f'{r}S64'])-base for n in range(65)]; end=sym[r+'END']-base
            best=None
            for dl in range(0,4096,64):
                sc=0
                for c in range(4096,end+dl,4096):
                    p=c-dl
                    if p<sl[0] or p>=sl[64]: sc+=10; continue
                    n=max(i for i in range(64) if sl[i]<=p and sl[i]<sl[64]); fr=(p-sl[n])/(sl[n+1]-sl[n])
                    lead=((n+fr)-0.6)%2
                    if n%8==6 and n<63: lead=0
                    if n<2: lead=min(lead,0.5)
                    sc+=max(0,1.2-lead)
                if best is None or sc<best[0]: best=(sc,dl)
            opt['d'+r.lower()]=best[1]
    src=build0(stamps,opt); build.trmap=build0.trmap; build.pads=(opt.get('dx'),opt.get('dy'))
    return src
if __name__=='__main__':
    opt=json.loads(sys.argv[2]) if len(sys.argv)>2 else {}
    ref=open('concat_heads__sliding_block__softmax_full_mha__prompt.s.ref').read().split('\n')
    open(sys.argv[1],'w').write('\n'.join(ref[:10])+'\n'+build(False,opt))
```
